```python
import torch

def _softmax(x, axis=-1):
    return torch.softmax(x, dim=axis)

def _gelu(x):
    return torch.nn.functional.gelu(x, approximate='tanh')

def _silu(x):
    return torch.nn.functional.silu(x)

def _sigmoid(x):
    return torch.sigmoid(x)

def _layernorm(x, axis=-1, eps=1e-05):
    m = x.mean(dim=axis, keepdim=True)
    v = x.var(dim=axis, keepdim=True, unbiased=False)
    return (x - m) / torch.sqrt(v + eps)

def _scatter_add(tgt, idx, src, axis=0):
    return tgt.clone().index_add_(axis, idx, src)

def _segment_sum(src, seg, n):
    out = torch.zeros((n,) + src.shape[1:], dtype=src.dtype)
    return out.index_add_(0, seg, src)

def _pad(x, pw):
    flat = tuple((v for pair in reversed(pw) for v in pair))
    return torch.nn.functional.pad(x, flat)
kernel_name = 'adaLN_cond__sliding_local_dilated__mixer_channel_mlp__prompt'

def setup_inputs():

    _w = lambda a: (lambda t: t.to(torch.bfloat16) if t.is_floating_point() else t)(torch.as_tensor(a))

    def _A_setup():
        B, S, D = (1, 2048, 512)
        return {'x': _w((lambda *s: torch.randn(*s, dtype=torch.bfloat16) * 0.05)(B, S, D)), 'wqkv': _w((lambda *s: torch.randn(*s, dtype=torch.bfloat16) * 0.05)(D, 3 * D)), 'wo': _w((lambda *s: torch.randn(*s, dtype=torch.bfloat16) * 0.05)(D, D))}
    _A_in = _A_setup()

    def _B_setup():
        B, S, D, F = (1, 2048, 512, 1376)
        return {'x': _w((lambda *s: torch.randn(*s, dtype=torch.bfloat16) * 0.05)(B, S, D)), 'w1': _w((lambda *s: torch.randn(*s, dtype=torch.bfloat16) * 3.2)(D, F) * D ** (-0.5)), 'b1': _w((lambda *s: torch.randn(*s, dtype=torch.bfloat16) * 1.6)(F)), 'w2': _w((lambda *s: torch.randn(*s, dtype=torch.bfloat16) * 1.6)(F, D) * F ** (-0.5)), 'b2': _w((lambda *s: torch.randn(*s, dtype=torch.bfloat16) * 1.6)(D))}
    _B_in = _B_setup()
    return {'A_x': _A_in['x'], 'A_wqkv': _A_in['wqkv'], 'A_wo': _A_in['wo'], 'B_x': _B_in['x'], 'B_w1': _B_in['w1'], 'B_b1': _B_in['b1'], 'B_w2': _B_in['w2'], 'B_b2': _B_in['b2'], 'c': _w((lambda *s: torch.randn(*s, dtype=torch.bfloat16) * 0.2)(1, 512) * 8.0), 'w_mod': _w((lambda *s: torch.randn(*s, dtype=torch.bfloat16) * 0.2)(512, 6 * 512) * 512 ** (-0.5) * 8.0)}

def reference(A_x, A_wqkv, A_wo, B_x, B_w1, B_b1, B_w2, B_b2, c, w_mod):

    def _A_ref(x, wqkv, wo):
        B, S, D = x.shape
        H = 32
        Dh = D // H
        W, dil = (8, 2)
        qkv = (lambda x, *d: x.permute(*d))((x @ wqkv).reshape(B, S, 3, H, Dh), 2, 0, 3, 1, 4)
        q, k, v = (qkv[0], qkv[1], qkv[2])
        scale = Dh ** (-0.5)
        pos = torch.arange(S)
        off = torch.arange(W) * dil
        idx = pos[:, None] - off[None, :]
        mask = idx >= 0
        idx_c = torch.where(mask, idx, 0).reshape(-1)
        kg = k[:, :, idx_c, :].reshape(B, H, S, W, Dh)
        vg = v[:, :, idx_c, :].reshape(B, H, S, W, Dh)
        logits = torch.einsum('bhsd,bhswd->bhsw', q, kg) * scale
        logits = torch.where(mask[None, None, :, :], logits, -1000000000.0)
        attn = _softmax(logits, axis=-1)
        o = torch.einsum('bhsw,bhswd->bhsd', attn, vg)
        return (lambda x, *d: x.permute(*d))(o, 0, 2, 1, 3).reshape(B, S, D) @ wo

    def _B_ref(x, w1, b1, w2, b2):
        y = _layernorm(x, axis=-1)
        h = _gelu(torch.einsum('bsd,df->bsf', y, w1) + b1)
        return torch.einsum('bsf,fd->bsd', h, w2) + b2
    x = A_x
    mod = (_silu(c) @ w_mod).reshape(c.shape[0], 6, 1, -1)
    sa, ca, ga, sb, cb, gb = (mod[:, 0].clone(), mod[:, 1].clone(), mod[:, 2].clone(), mod[:, 3].clone(), mod[:, 4].clone(), mod[:, 5].clone())
    h = _layernorm(x, axis=-1) * (1 + ca) + sa
    x = x + ga * _A_ref(h, A_wqkv, A_wo)
    h = _layernorm(x, axis=-1) * (1 + cb) + sb
    x = x + gb * _B_ref(h, B_w1, B_b1, B_w2, B_b2)
    return x
```

```python
import re

REG_RE = re.compile(r'^(-|abs\()?([vas])(?:(\d+)|\[(\d+):(\d+)\])\)?$')

def regs_of(tok):
    tok = tok.strip()
    if tok in ('vcc',):
        return [('s', 106), ('s', 107)]
    if tok == 'vcc_lo':
        return [('s', 106)]
    if tok == 'exec':
        return [('s', 126), ('s', 127)]
    if tok == 'm0':
        return [('s', 124)]
    m = REG_RE.match(tok)
    if not m:
        return []
    f = m.group(2)
    if m.group(3) is not None:
        return [(f, int(m.group(3)))]
    return [(f, i) for i in range(int(m.group(4)), int(m.group(5)) + 1)]

TRANS = ('v_exp_f32', 'v_log_f32', 'v_rcp_f32', 'v_rsq_f32', 'v_sqrt_f32', 'v_sin_f32', 'v_cos_f32')

class Ins:
    __slots__ = ('text', 'op', 'kind', 'dst', 'src', 'srcab', 'srcc', 'states', 'dpp', 'wide_store', 'data', 'lds')

def split_ops(s):
    out, depth, cur = [], 0, ''
    for ch in s:
        if ch in '[(':
            depth += 1
        if ch in '])':
            depth -= 1
        if ch == ',' and depth == 0:
            out.append(cur.strip()); cur = ''
        else:
            cur += ch
    if cur.strip():
        out.append(cur.strip())
    return out

def parse(text):
    I = Ins()
    I.text = text
    t = text.split(';')[0].strip()
    parts = t.split(None, 1)
    op = parts[0]
    I.op = op
    rest = parts[1] if len(parts) > 1 else ''
    ops = split_ops(rest)
    mods = ''
    if ops:
        last = ops[-1].split(None, 1)
        if len(last) > 1 and not ops[-1].startswith('hwreg') and op != 's_waitcnt':
            ops[-1] = last[0]; mods = last[1]
    I.dst, I.src, I.srcab, I.srcc, I.data = [], [], [], [], []
    I.states = 1
    I.dpp = 'row_' in mods or 'quad_perm' in mods or op.endswith('_dpp')
    I.wide_store = False
    I.lds = False
    R = [regs_of(o) for o in ops]
    flat = lambda L: [x for l in L for x in l]
    if op == 's_nop':
        I.kind = 'nop'; I.states = int(ops[0], 0) + 1
    elif op.startswith('v_mfma'):
        I.kind = 'sgemm' if op.endswith('_f32') and 'x4_f32' in op else 'xdl'
        I.dst = R[0]; I.srcab = R[1] + R[2]; I.srcc = R[3]; I.src = I.srcab + I.srcc
    elif op.startswith('v_'):
        I.kind = 'valu'
        if op.startswith('v_dot'):
            I.kind = 'dot'
        base = op.replace('_e32', '').replace('_e64', '').replace('_dpp', '')
        if base in TRANS:
            I.kind = 'trans'
        I.dst = R[0]; I.src = flat(R[1:])
        if 'permlane' in op and 'swap' in op:
            I.dst = R[0] + R[1]; I.src = R[0] + R[1]
        if base.startswith('v_fmac') or base.startswith('v_dot2c') or I.dpp:
            I.src = I.src + R[0]
        if base.startswith('v_add_co') or base.startswith('v_addc_co') or base.startswith('v_sub_co'):
            I.dst = R[0] + R[1]; I.src = flat(R[2:])
        if I.kind == 'dot':
            I.srcab = R[1] + R[2]; I.srcc = R[3] if len(R) > 3 else R[0]
    elif op.startswith('ds_read') or op.startswith('ds_bpermute') or op.startswith('ds_swizzle'):
        I.kind = 'ds'; I.dst = R[0]; I.src = flat(R[1:])
    elif op.startswith('ds_write'):
        I.kind = 'ds'; I.src = flat(R)
    elif op.startswith('buffer_load'):
        I.kind = 'vmem'
        if ' lds' in (' ' + mods):
            I.lds = True; I.src = flat(R) + [('s', 124)]
        else:
            I.dst = R[0]; I.src = flat(R[1:])
    elif op.startswith('buffer_store'):
        I.kind = 'vmem'; I.src = flat(R); I.data = R[0]
        I.wide_store = op.endswith('x4') or op.endswith('x3')
    elif op.startswith('global_load_lds'):
        I.kind = 'vmem'; I.lds = True; I.src = flat(R) + [('s', 124)]
    elif op.startswith('global_load'):
        I.kind = 'vmem'; I.dst = R[0]; I.src = flat(R[1:])
    elif op.startswith('global_store'):
        I.kind = 'vmem'; I.src = flat(R); I.data = R[1]
        I.wide_store = op.endswith('x4') or op.endswith('x3')
    elif op.startswith('s_'):
        I.kind = 'salu'
        if op.startswith('s_cmp') or op.startswith('s_cbranch') or op in ('s_branch', 's_barrier', 's_waitcnt', 's_endpgm', 's_sleep', 's_setprio', 's_bitcmp1_b32', 's_bitcmp0_b32'):
            I.src = flat(R)
        else:
            I.dst = R[0] if R else []; I.src = flat(R[1:])
    else:
        raise ValueError('unknown op ' + text)
    return I

def need(P, C):
    n = 0
    pd = set(P.dst)
    isv = lambda k: k in ('valu', 'trans', 'dot')
    ism = lambda k: k in ('xdl', 'sgemm')
    if isv(P.kind):
        pv = {r for r in pd if r[0] in 'va'}
        ps = {r for r in pd if r[0] == 's'}
        if pv:
            if ism(C.kind) and pv & set(C.src): n = max(n, 2)
            if isv(C.kind):
                if 'permlane' in C.op and pv & set(C.src): n = max(n, 2)
                if C.dpp and pv & set(C.src): n = max(n, 2)
                if ('readlane' in C.op or 'readfirstlane' in C.op) and pv & set(C.src): n = max(n, 1)
                if P.kind == 'trans' and C.kind != 'trans' and pv & set(C.src): n = max(n, 1)
                if P.kind == 'trans' and C.kind == 'trans' and pv & set(C.src): n = max(n, 1)
            if P.kind == 'trans' and C.kind in ('vmem', 'ds') and pv & set(C.src): n = max(n, 1)
            if P.kind == 'dot':
                if C.kind == 'dot' and C.op == P.op:
                    if pv & set(C.srcab): n = max(n, 3)
                elif pv & (set(C.src) | set(C.dst)): n = max(n, 3)
        if ps:
            if isv(C.kind) and ps & set(C.src): n = max(n, 4 if ('readlane' in C.op or 'writelane' in C.op) else 2)
            if isv(C.kind) and 'cndmask' in C.op and C.text.split(';')[0].strip().endswith('vcc') and ('s', 106) in ps: n = max(n, 2)
            if C.kind == 'vmem' and ps & set(C.src): n = max(n, 5)
            if C.kind == 'salu' and ps & set(C.src): n = max(n, 1)
            if C.kind == 'salu' and C.op.startswith('s_cbranch_vcc') and ('s', 106) in ps: n = max(n, 1)
    if ism(P.kind):
        big = 8 if P.kind == 'xdl' else 10
        if ism(C.kind):
            if pd & set(C.srcab): n = max(n, big)
            if pd & set(C.srcc):
                if P.kind == 'xdl':
                    if C.kind == 'xdl' and P.dst == C.srcc: pass
                    else: n = max(n, 6)
                else:
                    if C.kind == 'sgemm' and P.dst != C.srcc: n = max(n, 8)
            elif pd & set(C.dst): n = max(n, big)
        elif isv(C.kind) or C.kind in ('vmem', 'ds'):
            if pd & (set(C.src) | set(C.dst)): n = max(n, big)
        if P.kind == 'xdl' and isv(C.kind) and set(P.srcc) & set(C.dst): n = max(n, 3)
    if P.wide_store and set(P.data) & set(C.dst):
        n = max(n, 2)
    if P.kind == 'salu' and ('s', 124) in pd and C.lds: n = max(n, 1)
    return n

class Asm:
    def __init__(self):
        self.lines = []
        self.uid = 0
    def __call__(self, text):
        for l in text.split('\n'):
            l = l.strip()
            if not l: continue
            if l.startswith(';') or l.startswith('.') or l.endswith(':'):
                self.lines.append(l)
            else:
                self.lines.append(parse(l))
    def label(self, p='L'):
        self.uid += 1
        return f'{p}_{self.uid}'
    def render(self):
        out = []
        hist = []
        nnop = 0
        for x in self.lines:
            if isinstance(x, str):
                out.append(x if (x.endswith(':') or x.startswith('.')) else '    ' + x)
                continue
            req = 0
            dist = 0
            for P in reversed(hist):
                k = need(P, x)
                if k > dist: req = max(req, k - dist)
                dist += P.states
                if dist > 12: break
            if req > 0:
                nop = parse(f's_nop {req-1}')
                out.append('    ' + nop.text); hist.append(nop); nnop += 1
            out.append('    ' + x.text)
            hist.append(x)
            if len(hist) > 16: hist.pop(0)
        self.nnop = nnop
        return '\n'.join(out) + '\n'
```

```python
import sys, struct
from asmlib import Asm

NAME = 'adaLN_cond__sliding_local_dilated__mixer_channel_mlp__prompt'
STAMP = '--stamp' in sys.argv
FORCE_GLOBAL = '--global' in sys.argv

def f2u(x): return struct.unpack('<I', struct.pack('<f', x))[0]
def hx(x): return '0x%08x' % (x & 0xffffffff)

WS_EPOCH = 0
WS_XCC   = 0x1000
WS_MOD   = 0x2000
WS_FLAG  = 0x8000
WS_STAMP = 0x20000
WS_O     = 0x100000
WS_U     = 0x400000
WS_ST    = 0x700000
WS_H     = 0x800000
HRT      = 43*1024
HCL      = 4*HRT
WS_SIZE  = 0x1000000

L_A1   = 0
L_B    = 81920
L_MISC = 147456
L_MODT = L_MISC
L_ONES = L_MISC + 6144
L_ST1  = L_MISC + 7168
L_ST2  = L_MISC + 9216
L_P0S  = L_MISC + 11264
LDS_BYTES = 163840

sWAVE = 3
SX, SWQKV, SWO, SW1, SW2, SWS, SOUT, SWMOD = 32, 36, 40, 44, 48, 52, 56, 60
sB1, sB2, sC = 14, 18, 20
sCL, sJ, sTAG, sLOCAL, sR0 = 64, 65, 66, 67, 68
sT0, sT1, sT2 = 69, 70, 71
sLN = 72
sG = 80
sSPIN = 85
sSTAMP = 86
sM = 4
sT3, sT4, sT5, sT6 = 22, 23, 24, 25
sXCC, sIDX, sTT0 = 26, 27, 16
sTM = 30

def srd(b): return f's[{b}:{b+3}]'
def vr(b, n=1): return f'v{b}' if n == 1 else f'v[{b}:{b+n-1}]'
def ar(b, n=1): return f'a{b}' if n == 1 else f'a[{b}:{b+n-1}]'
def sp(b): return f's[{b}:{b+1}]'

A = Asm()
nstamp = [0]
def stamp(name):
    if not STAMP: return
    k = nstamp[0]; nstamp[0] += 1
    assert k < 29
    sys.stderr.write(f'stamp {k} {name}\n')
    A(f's_memtime {sp(sTM)}')
    A('s_waitcnt lgkmcnt(0)')
    A(f'v_writelane_b32 v31, s{sTM}, {k}')

SPIN_MAX = 400000
def spin_guard(loop_label, done_label):
    A(f's_add_u32 s{sSPIN}, s{sSPIN}, 1')
    A(f's_cmp_lt_u32 s{sSPIN}, {SPIN_MAX}')
    A(f's_cbranch_scc1 {loop_label}')
    A(f'{done_label}:')

def dual_store(fn):
    l1, l2 = A.label('Lloc'), A.label('Ljoin')
    A(f's_cmp_eq_u32 s{sLOCAL}, 1')
    A(f's_cbranch_scc1 {l1}')
    fn(' sc1')
    A(f's_branch {l2}')
    A(f'{l1}:')
    A('s_nop 7')
    fn('')
    A(f'{l2}:')
    A('s_nop 1')

vLANE, vOFF16 = 0, 1
vDQ = 2
vDW = 6
vAW = 10
vAR = 14
vTRQ = 18
vTRW = 19
vI, vG = 23, 24
vT = 25
vGS = 48
vF = 64
vTB = 96

def header():
    print(f"""; Kernarg layout (104 bytes, ptrs only, base s[0:1]): A_x, A_wqkv, A_wo, B_x, B_w1, B_b1, B_w2, B_b2, c, w_mod, d_out, d_debug, d_ws
; @launch grid=(256,1,1) block=(256,1,1) lds={LDS_BYTES}
.amdgcn_target "amdgcn-amd-amdhsa--gfx950"
.text
.globl {NAME}_kernel
.p2align 8
.type {NAME}_kernel,@function
{NAME}_kernel:""")

def footer():
    print(f""".section .rodata,"a"
.p2align 6
.amdhsa_kernel {NAME}_kernel
  .amdhsa_next_free_vgpr 512
  .amdhsa_next_free_sgpr 102
  .amdhsa_accum_offset 256
  .amdhsa_group_segment_fixed_size 0
  .amdhsa_kernarg_size 104
  .amdhsa_user_sgpr_count 2
  .amdhsa_user_sgpr_kernarg_segment_ptr 1
  .amdhsa_system_sgpr_workgroup_id_x 1
.end_amdhsa_kernel""")

def mk_srd(b, ptr, size):
    A(f's_mov_b32 s{b}, s{ptr}')
    A(f's_mov_b32 s{b+1}, s{ptr+1}')
    A(f's_mov_b32 s{b+2}, {hx(size)}')
    A(f's_mov_b32 s{b+3}, 0x00020000')

A('s_cmp_lt_u32 s2, 256')
A('s_cbranch_scc1 L_go')
A('s_endpgm')
A('L_go:')
A('s_load_dwordx16 s[4:19], s[0:1], 0')
A('s_load_dwordx8 s[20:27], s[0:1], 64')
A('s_load_dwordx2 s[28:29], s[0:1], 96')
A(f's_getpc_b64 {sp(sTM)}')
A(f'v_lshlrev_b32 v{vT}, 7, v0')
A(f'v_add_u32 v{vT+1}, 0x8000, v{vT}')
A(f'global_load_dword v{vT+2}, v{vT}, {sp(sTM)}')
A(f'global_load_dword v{vT+3}, v{vT+1}, {sp(sTM)}')
A(f'v_lshrrev_b32 v{vT+4}, 6, v0')
A(f'v_readfirstlane_b32 s{sWAVE}, v{vT+4}')
A(f'v_and_b32 v{vLANE}, 63, v0')
A(f'v_lshlrev_b32 v{vOFF16}, 4, v{vLANE}')
A(f'v_and_b32 v{vI}, 15, v{vLANE}')
A(f'v_lshrrev_b32 v{vG}, 4, v{vLANE}')
A(f's_and_b32 s{sT0}, s2, 7')
A(f's_lshr_b32 s{sT1}, s2, 3')
A(f's_lshr_b32 s{sCL}, s{sT1}, 3')
A(f's_lshl_b32 s{sT2}, s{sT0}, 2')
A(f's_add_u32 s{sCL}, s{sCL}, s{sT2}')
A(f's_and_b32 s{sJ}, s{sT1}, 7')
A(f's_lshl_b32 s{sR0}, s{sCL}, 6')
A(f's_mov_b32 s{sSPIN}, 0')
A(f's_min_u32 s{sT2}, s{sT1}, 23')
A(f's_mul_i32 s{sT0}, s{sT0}, 24')
A(f's_add_u32 s{sLN}, s{sT0}, s{sT2}')
A(f's_mov_b32 s{sLN+1}, s{sT1}')
A(f'v_lshrrev_b32 v{vT+4}, 1, v{vLANE}')
A(f'v_mul_u32_u24 v{vT+5}, {4*6144}, v{vT+4}')
A(f'v_and_b32 v33, 1, v{vLANE}')
A(f'v_lshl_add_u32 v{vT+5}, v33, 4, v{vT+5}')
A(f'v_lshlrev_b32 v{vT+4}, 3, v{vT+4}')
A(f's_lshl_b32 s{sT0}, s{sWAVE}, 8')
A(f'v_add_u32 v{vT+4}, s{sT0}, v{vT+4}')
A('s_waitcnt lgkmcnt(0)')
stamp('kernarg')
mk_srd(SWS, 28, WS_SIZE)
mk_srd(SWMOD, 22, 512*3072*2)
mk_srd(SX, 4, 2048*512*2)
vE = vT+7; vCV = vT+8
vCV = 34; vWM = 64
A(f'v_mov_b32 v33, 0')
A(f'buffer_load_dword v{vE}, v33, {srd(SWS)}, 0 offen sc1')
A(f'global_load_dwordx2 {vr(vCV,2)}, v{vT+4}, {sp(sC)}')
A(f's_mul_i32 s{sT0}, s{sWAVE}, {128*6144}')
A(f's_lshl_b32 s{sT1}, s{sLN}, 5')
A(f's_add_u32 s{sT0}, s{sT0}, s{sT1}')
for n in range(4):
    A(f'buffer_load_dwordx4 {vr(vWM+4*n,4)}, v{vT+5}, {srd(SWMOD)}, s{sT0} offen')
    if n < 3: A(f's_add_u32 s{sT0}, s{sT0}, 6144')
A(f's_lshl_b32 s{sT1}, s{sWAVE}, 2')
A(f's_add_u32 s{sT1}, s{sT1}, s{sR0}')
A(f's_sub_u32 s{sT1}, s{sT1}, 16')
for rt in range(5):
    A(f's_max_i32 s{sT0}, s{sT1}, 0')
    A(f's_lshl_b32 s{sT0}, s{sT0}, 10')
    for q in range(4):
        A(f'buffer_load_dwordx4 {vr(vTB+32*rt+8*q+4,4)}, v{vOFF16}, {srd(SX)}, s{sT0} offen offset:{q*1024}')
    if rt < 4: A(f's_add_u32 s{sT1}, s{sT1}, 16')
mk_srd(SWQKV, 6, 512*1536*2)
A(f'v_lshrrev_b32 v{vT+4}, 3, v{vLANE}')
A(f'v_mul_u32_u24 v{vT+4}, 3072, v{vT+4}')
A(f'v_and_b32 v{vT+5}, 7, v{vLANE}')
A(f'v_lshlrev_b32 v{vT+5}, 4, v{vT+5}')
A(f'v_and_b32 v33, 1, v{vG}')
A(f'v_lshlrev_b32 v33, 5, v33')
A(f'v_xor_b32 v{vT+5}, v{vT+5}, v33')
A(f'v_add_u32 v{vDQ}, v{vT+4}, v{vT+5}')
A(f'v_xor_b32 v{vT+5}, 64, v{vT+5}')
A(f'v_add_u32 v{vDQ+1}, v{vT+4}, v{vT+5}')
A(f'v_add_u32 v{vDQ+1}, {8*3072-1024}, v{vDQ+1}')
A(f'v_add_u32 v{vDQ+2}, {16*3072-2048}, v{vDQ}')
A(f'v_add_u32 v{vDQ+3}, {16*3072-2048}, v{vDQ+1}')

def dma_wqkv(part, ks_local, lds_base):
    A(f's_add_u32 m0, s{sT4}, {lds_base + ks_local*4096}')
    A(f's_add_u32 s{sT0}, s{sT3}, {ks_local*32*3072 + part*1024}')
    for j in range(4):
        A(f'buffer_load_dwordx4 v{vDQ+j}, {srd(SWQKV)}, s{sT0} offen offset:{j*1024} lds')

mk_srd(SWO, 8, 512*512*2)
mk_srd(SW1, 12, 512*1376*2)
mk_srd(SW2, 16, 1376*512*2)
mk_srd(SOUT, 24, 2048*512*2)
A(f's_mul_i32 s{sT3}, s{sWAVE}, {4*32*3072}')
A(f's_lshl_b32 s{sT4}, s{sJ}, 7')
A(f's_add_u32 s{sT3}, s{sT3}, s{sT4}')
A(f's_lshl_b32 s{sT4}, s{sWAVE}, 14')
for k in range(4): dma_wqkv(0, k, 0)
for k in range(4): dma_wqkv(1, k, 65536)
A(f's_mov_b32 s{sIDX}, s{sLN+1}')
A(f's_mov_b32 s{sTT0}, s{sLN}')
A(f's_getreg_b32 s{sXCC}, hwreg(HW_REG_XCC_ID)')
A(f's_and_b32 s{sXCC}, s{sXCC}, 15')

A('s_waitcnt vmcnt(56)')
A(f'v_readfirstlane_b32 s{sTAG}, v{vE}')
A(f's_mul_i32 s{sTAG}, s{sTAG}, 1664525')
A(f's_add_u32 s{sTAG}, s{sTAG}, 1013904223')
vS = 36
A(f'v_lshlrev_b32 v{vS}, 16, v{vCV}')
A(f'v_and_b32 v{vS+1}, 0xffff0000, v{vCV}')
A(f'v_lshlrev_b32 v{vS+2}, 16, v{vCV+1}')
A(f'v_and_b32 v{vS+3}, 0xffff0000, v{vCV+1}')
LOG2E = 1.4426950408889634
for n in range(4): A(f'v_mul_f32 v{40+n}, {hx(f2u(-LOG2E))}, v{vS+n}')
for n in range(4): A(f'v_exp_f32 v{40+n}, v{40+n}')
for n in range(4): A(f'v_add_f32 v{40+n}, 1.0, v{40+n}')
for n in range(4): A(f'v_rcp_f32 v{40+n}, v{40+n}')
for n in range(4): A(f'v_mul_f32 v{vS+n}, v{vS+n}, v{40+n}')
A(f'v_cvt_pk_bf16_f32 v40, v{vS}, v{vS+1}')
A(f'v_cvt_pk_bf16_f32 v41, v{vS+2}, v{vS+3}')
A(f'v_lshlrev_b32 v{vS}, 16, v40')
A(f'v_and_b32 v{vS+1}, 0xffff0000, v40')
A(f'v_lshlrev_b32 v{vS+2}, 16, v41')
A(f'v_and_b32 v{vS+3}, 0xffff0000, v41')
vAC = 48
A('s_waitcnt vmcnt(52)')
stamp('wmod arrived')
for n in range(4):
    for d in range(4):
        A(f'v_lshlrev_b32 v{56+2*d}, 16, v{vWM+4*n+d}')
        A(f'v_and_b32 v{57+2*d}, 0xffff0000, v{vWM+4*n+d}')
    for e in range(8):
        if n == 0: A(f'v_mul_f32 v{vAC+e}, v{vS}, v{56+e}')
        else: A(f'v_fmac_f32 v{vAC+e}, v{vS+n}, v{56+e}')
def red32(a, b):
    A(f'v_permlane32_swap_b32 v{a}, v{b}')
    A(f'v_add_f32 v{a}, v{a}, v{b}')
def red16(a, b):
    A(f'v_permlane16_swap_b32 v{a}, v{b}')
    A(f'v_add_f32 v{a}, v{a}, v{b}')
def ror_add(a, n):
    A(f'v_add_f32_dpp v{a}, v{a}, v{a} row_ror:{n} row_mask:0xf bank_mask:0xf')
for e in (0, 2, 4, 6): red32(vAC+e, vAC+e+1)
red16(vAC, vAC+2); red16(vAC+4, vAC+6)
for n in (8, 4, 2):
    ror_add(vAC, n); ror_add(vAC+4, n)
A(f'v_and_b32 v{vT}, 1, v{vG}')
A(f'v_lshlrev_b32 v{vT}, 1, v{vT}')
A(f'v_lshrrev_b32 v{vT+1}, 1, v{vG}')
A(f'v_or_b32 v{vT}, v{vT}, v{vT+1}')
A(f'v_and_b32 v{vT+1}, 1, v{vLANE}')
A(f'v_lshl_add_u32 v{vT}, v{vT+1}, 3, v{vT}')
A(f'v_lshlrev_b32 v{vT}, 2, v{vT}')
A(f's_lshl_b32 s{sT0}, s{sWAVE}, 6')
A(f's_add_u32 s{sT0}, s{sT0}, {L_P0S}')
A(f'v_add_u32 v{vT}, s{sT0}, v{vT}')
A(f'ds_write_b32 v{vT}, v{vAC}')
A(f'ds_write_b32 v{vT}, v{vAC+4} offset:16')
A(f'v_mov_b32 v40, 0x3f803f80')
A(f'v_mov_b32 v41, 0x3f803f80')
A(f'v_mov_b32 v42, 0x3f803f80')
A(f'v_mov_b32 v43, 0x3f803f80')
A(f'v_add_u32 v{vT+1}, {L_ONES}, v{vOFF16}')
A(f'ds_write_b128 v{vT+1}, v[40:43]')
A('s_waitcnt lgkmcnt(0)')
A('s_barrier')
lskip = A.label('Lp0skip')
A(f's_cmp_lg_u32 s{sWAVE}, 0')
A(f's_cbranch_scc1 {lskip}')
A(f'v_and_b32 v{vT}, 7, v{vLANE}')
A(f'v_lshlrev_b32 v{vT}, 3, v{vT}')
A(f'v_add_u32 v{vT+1}, {L_P0S}, v{vT}')
for w in range(4): A(f'ds_read_b64 {vr(40+2*w,2)}, v{vT+1} offset:{64*w}')
A('s_waitcnt lgkmcnt(0)')
for e in range(2):
    A(f'v_add_f32 v{40+e}, v{40+e}, v{42+e}')
    A(f'v_add_f32 v{44+e}, v{44+e}, v{46+e}')
for e in range(2): A(f'v_add_f32 v{40+e}, v{40+e}, v{44+e}')
A(f'v_cvt_pk_bf16_f32 v40, v40, v41')
A(f'v_mov_b32 v41, s{sTAG}')
A(f'v_mov_b32 v42, s{sXCC}')
A(f'v_mov_b32 v43, s{sTAG}')
A(f's_lshl_b32 s{sT0}, s{sTT0}, 6')
A(f's_add_u32 s{sT0}, s{sT0}, {WS_MOD}')
A(f's_mov_b64 exec, 0xff')
lnp = A.label('Lnopub')
A(f's_cmp_ge_u32 s{sIDX}, 24')
A(f's_cbranch_scc1 {lnp}')
A(f'buffer_store_dwordx2 v[40:41], v{vT}, {srd(SWS)}, s{sT0} offen sc1')
A(f'{lnp}:')
A(f's_mov_b64 exec, 1')
A(f's_lshl_b32 s{sT0}, s{sCL}, 3')
A(f's_add_u32 s{sT0}, s{sT0}, s{sJ}')
A(f's_lshl_b32 s{sT0}, s{sT0}, 3')
A(f's_add_u32 s{sT0}, s{sT0}, {WS_XCC}')
A(f'buffer_store_dwordx2 v[42:43], v{vT}, {srd(SWS)}, s{sT0} offen sc1')
A(f's_mov_b64 exec, -1')
A(f'{lskip}:')
stamp('p0 published')

vONE = 47
A(f'v_mov_b32 v{vONE}, 0x3f803f80')
for rt in range(5):
    A(f's_waitcnt vmcnt({32 + 4*(4-rt)})')
    B = vTB + 32*rt
    sa = [40, 41, 42, 43]; sq = [36, 37, 38, 39]
    for d in range(4):
        for q in range(4):
            raw = B + 8*q + 4 + d
            A(f'v_dot2_f32_bf16 v{sa[q]}, v{raw}, v{vONE}, {"0" if d==0 else "v%d"%sa[q]}')
        for q in range(4):
            raw = B + 8*q + 4 + d
            A(f'v_dot2_f32_bf16 v{sq[q]}, v{raw}, v{raw}, {"0" if d==0 else "v%d"%sq[q]}')
    red32(sa[0], sa[2]); red32(sa[1], sa[3]); red32(sq[0], sq[2]); red32(sq[1], sq[3])
    red16(sa[0], sa[1]); red16(sq[0], sq[1])
    for n in (8, 4, 2, 1):
        ror_add(sa[0], n); ror_add(sq[0], n)
    A(f'v_mul_f32 v{sa[0]}, {hx(f2u(1/512))}, v{sa[0]}')
    A(f'v_mul_f32 v{sq[0]}, {hx(f2u(1/512))}, v{sq[0]}')
    A(f'v_fma_f32 v{sq[0]}, -v{sa[0]}, v{sa[0]}, v{sq[0]}')
    A(f'v_max_f32 v{sq[0]}, 0, v{sq[0]}')
    A(f'v_add_f32 v{sq[0]}, {hx(f2u(1e-5))}, v{sq[0]}')
    A(f'v_rsq_f32 v{sq[0]}, v{sq[0]}')
    A(f'v_mul_f32 v{sa[0]}, v{sa[0]}, v{sq[0]}')
    A(f'v_sub_f32 v{sa[0]}, 0, v{sa[0]}')
    for q in range(4):
        A(f'v_readlane_b32 s{sLN+2*q}, v{sq[0]}, {16*q}')
        A(f'v_readlane_b32 s{sLN+2*q+1}, v{sa[0]}, {16*q}')
    for q in range(4):
        b = B + 8*q
        for d in range(4):
            A(f'v_lshlrev_b32 v{b+2*d}, 16, v{b+4+d}')
            A(f'v_and_b32 v{b+2*d+1}, 0xffff0000, v{b+4+d}')
        for d in range(4):
            A(f'v_pk_fma_f32 {vr(b+2*d,2)}, {vr(b+2*d,2)}, {sp(sLN+2*q)}, {sp(sLN+2*q)} op_sel:[0,0,1] op_sel_hi:[1,0,1]')
stamp('ln1 stats done')

vFSW = 46
A(f'v_bfe_u32 v{vT}, v{vLANE}, 2, 2')
A(f'v_lshrrev_b32 v{vT+1}, 1, v{vT}')
A(f'v_and_b32 v{vT+2}, 1, v{vG}')
A(f'v_lshl_add_u32 v{vFSW}, v{vT+2}, 1, v{vT+1}')
A(f'v_and_b32 v{vT+3}, 3, v{vLANE}')
A(f'v_lshlrev_b32 v{vT+3}, 3, v{vT+3}')
A(f'v_lshl_add_u32 v{vT+4}, v{vG}, 3, v{vT}')
A(f'v_lshl_add_u32 v{vT+4}, v{vT+4}, 7, v{vT+3}')
A(f'v_xor_b32 v{vT+5}, s{sWAVE}, v{vFSW}')
A(f'v_lshl_add_u32 v{vTRQ}, v{vT+5}, 5, v{vT+4}')
A(f'v_lshl_add_u32 v{vT+4}, v{vG}, 2, v{vT}')
A(f'v_mov_b32 v45, v{vT+4}')
A(f'v_mov_b32 v44, v{vT+3}')
A(f'v_lshl_add_u32 v{vT+4}, v{vT+4}, 7, v{vT+3}')
for ct in range(4):
    A(f'v_xor_b32 v{vT+5}, {ct}, v{vFSW}')
    A(f'v_lshl_add_u32 v{vTRW+ct}, v{vT+5}, 5, v{vT+4}')
    A(f'v_add_u32 v{vTRW+ct}, {L_B}, v{vTRW+ct}')
A(f'v_lshrrev_b32 v{vT}, 3, v{vLANE}')
A(f'v_lshlrev_b32 v{vT}, 10, v{vT}')
A(f'v_and_b32 v{vT+1}, 7, v{vLANE}')
A(f'v_lshlrev_b32 v{vT+1}, 4, v{vT+1}')
A(f'v_lshlrev_b32 v{vT+2}, 5, v{vG}')
A(f'v_xor_b32 v{vT+1}, v{vT+1}, v{vT+2}')
A(f'v_add_u32 v{vDW}, v{vT}, v{vT+1}')
for j in range(1, 4): A(f'v_add_u32 v{vDW+j}, {j*7168}, v{vDW}')
A(f's_lshl_b32 s{sT0}, s{sWAVE}, 2')
for q in range(4):
    A(f's_add_u32 s{sT1}, s{sT0}, {q}')
    A(f's_lshl_b32 s{sT2}, s{sT1}, 10')
    A(f'v_xor_b32 v{vT}, s{sT1}, v{vLANE}')
    A(f'v_lshl_add_u32 v{vAW+q}, v{vT}, 4, s{sT2}')
A(f'v_lshlrev_b32 v{vT+1}, 10, v{vI}')
for m in range(4):
    A(f'v_add_u32 v{vT}, {4*m}, v{vG}')
    A(f'v_xor_b32 v{vT}, v{vT}, v{vI}')
    A(f'v_lshl_add_u32 v{vAR+m}, v{vT}, 4, v{vT+1}')

def tr_wqkv(part, base_v):
    for ks in range(16):
        a = 64*part + 4*ks
        A(f'ds_read_b64_tr_b16 {ar(a,2)}, v{base_v} offset:{ks*4096}')
        A(f'ds_read_b64_tr_b16 {ar(a+2,2)}, v{base_v} offset:{ks*4096+512}')
A('s_waitcnt vmcnt(16)')
A('s_barrier')
tr_wqkv(0, vTRQ)
A('s_waitcnt lgkmcnt(0)')
A('s_barrier')
for k in range(4): dma_wqkv(2, k, 0)
A('s_waitcnt vmcnt(16)')
A('s_barrier')
A(f'v_add_u32 v{vT}, 0x10000, v{vTRQ}')
tr_wqkv(1, vT)
A('s_waitcnt vmcnt(0)')
A('s_barrier')
tr_wqkv(2, vTRQ)
A('s_waitcnt lgkmcnt(0)')
A('s_barrier')
stamp('wqkv frags done')

def dma_1024(srd_b, s_off, lds_m0_expr_s, lds_add, row_add):
    A(f's_add_u32 m0, s{lds_m0_expr_s}, {lds_add}')
    A(f's_add_u32 s{sT0}, s{s_off}, {row_add*1024}')
    for j in range(4):
        A(f'buffer_load_dwordx4 v{vDW+j}, {srd(srd_b)}, s{sT0} offen offset:{j*1024} lds')

A(f's_mul_i32 s{sT5}, s{sWAVE}, 3072')
A(f's_add_u32 s{sT5}, s{sT5}, {WS_MOD}')
A(f's_lshl_b32 s{sT6}, s{sCL}, 6')
A(f's_add_u32 s{sT6}, s{sT6}, {WS_XCC}')
A(f'v_and_b32 v{vT}, 7, v{vLANE}')
A(f'v_lshlrev_b32 v{vT}, 3, v{vT}')
lp, ld = A.label('Lmod'), A.label('Lmodok')
A(f'{lp}:')
for n in range(3):
    A(f'buffer_load_dwordx4 {vr(vF+4*n,4)}, v{vOFF16}, {srd(SWS)}, s{sT5} offen offset:{n*1024} sc1')
A(f'buffer_load_dwordx2 {vr(vF+12,2)}, v{vT}, {srd(SWS)}, s{sT6} offen sc1')
A('s_waitcnt vmcnt(0)')
A(f'v_xor_b32 v{vT+1}, s{sTAG}, v{vF+13}')
for r in (1, 3, 5, 7, 9, 11):
    A(f'v_xor_b32 v{vT+2}, s{sTAG}, v{vF+r}')
    A(f'v_or_b32 v{vT+1}, v{vT+1}, v{vT+2}')
A(f'v_cmp_ne_u32 vcc, 0, v{vT+1}')
A(f's_cbranch_vccz {ld}')
spin_guard(lp, ld)
stamp('mod arrived')
A(f'v_cmp_ne_u32 vcc, s{sXCC}, v{vF+12}')
A(f's_cmp_eq_u64 vcc, 0')
A(f's_cselect_b32 s{sLOCAL}, {0 if FORCE_GLOBAL else 1}, 0')
A(f's_and_b32 s{sT0}, s{sWAVE}, 1')
A(f's_cmp_eq_u32 s{sT0}, 1')
A(f's_cselect_b32 s{sT1}, 1.0, 0')
A(f's_cselect_b32 s{sT2}, 0, 1.0')
for n, s_add in ((0, sT1), (2, sT2)):
    for h in range(2):
        src = vF + 4*n + 2*h
        A(f'v_lshlrev_b32 v{vT+1}, 16, v{src}')
        A(f'v_and_b32 v{vT+2}, 0xffff0000, v{src}')
        A(f'v_add_f32 v{vT+1}, s{s_add}, v{vT+1}')
        A(f'v_add_f32 v{vT+2}, s{s_add}, v{vT+2}')
        A(f'v_cvt_pk_bf16_f32 v{src}, v{vT+1}, v{vT+2}')
for n in range(3): A(f'v_mov_b32 v{vF+4*n+1}, v{vF+4*n+2}')
A(f's_mul_i32 s{sT0}, s{sWAVE}, 1536')
A(f's_add_u32 s{sT0}, s{sT0}, {L_MODT}')
A(f'v_lshl_add_u32 v{vT+1}, v{vLANE}, 3, s{sT0}')
for n in range(3): A(f'ds_write_b64 v{vT+1}, {vr(vF+4*n,2)} offset:{n*512}')
A(f's_lshl_b32 s{sT3}, s{sWAVE}, 17')
A(f's_lshl_b32 s{sT1}, s{sJ}, 7')
A(f's_add_u32 s{sT3}, s{sT3}, s{sT1}')
for k in range(4): dma_1024(SWO, sT3, sT4, L_B + k*4096, k*32)
A('s_waitcnt lgkmcnt(0)')
A('s_barrier')
A(f'v_add_u32 v{vT+1}, {L_MODT}, v{vOFF16}')
A(f'ds_read_b128 {vr(vF,4)}, v{vT+1}')
A(f'ds_read_b128 {vr(vF+4,4)}, v{vT+1} offset:1024')
A('s_waitcnt lgkmcnt(0)')
for d in range(4):
    A(f'v_lshlrev_b32 v{vGS+2*d}, 16, v{vF+4+d}')
    A(f'v_and_b32 v{vGS+2*d+1}, 0xffff0000, v{vF+4+d}')
    A(f'v_lshlrev_b32 v{vGS+8+2*d}, 16, v{vF+d}')
    A(f'v_and_b32 v{vGS+8+2*d+1}, 0xffff0000, v{vF+d}')
for rt in range(5):
    if rt == 4:
        for q in range(4): A(f'v_add_u32 v{vAW+q}, 0x10000, v{vAW+q}')
    for q in range(4):
        b = vTB + 32*rt + 8*q
        for d in range(4):
            A(f'v_pk_fma_f32 {vr(b+2*d,2)}, {vr(b+2*d,2)}, {vr(vGS+2*d,2)}, {vr(vGS+8+2*d,2)}')
        for d in range(4):
            A(f'v_cvt_pk_bf16_f32 v{b+d}, v{b+2*d}, v{b+2*d+1}')
        A(f'ds_write_b128 v{vAW+q}, {vr(b,4)} offset:{(rt%4)*16384}')
A('s_waitcnt lgkmcnt(0)')
A('s_barrier')
stamp('A1 written')

def accK(rt): return vTB + 32*rt
def accV(rt): return vTB + 32*rt + 4
def accQ(rt): return vTB + 32*rt + 8
seq = [(rt, ks) for rt in range(5) for ks in range(16)]
NB = 8
def a1_read(n):
    rt, ks = seq[n]
    if rt == 4 and ks < 4:
        A(f'v_add_u32 v{vAR+ks}, 0x10000, v{vAR+ks}')
    A(f'ds_read_b128 {vr(vF+4*(n%NB),4)}, v{vAR+(ks&3)} offset:{(rt%4)*16384 + (ks>>2)*256}')
for n in range(NB-1): a1_read(n)
for n, (rt, ks) in enumerate(seq):
    if n + NB - 1 < len(seq):
        a1_read(n + NB - 1)
        A(f's_waitcnt lgkmcnt({NB-1})')
    else:
        A(f's_waitcnt lgkmcnt({len(seq)-1-n})')
    f = vr(vF+4*(n%NB), 4)
    c = lambda r: '0' if ks == 0 else vr(r, 4)
    A(f'v_mfma_f32_16x16x32_bf16 {vr(accK(rt),4)}, {ar(64+4*ks,4)}, {f}, {c(accK(rt))}')
    A(f'v_mfma_f32_16x16x32_bf16 {vr(accV(rt),4)}, {f}, {ar(128+4*ks,4)}, {c(accV(rt))}')
    if rt > 0:
        A(f'v_mfma_f32_16x16x32_bf16 {vr(accQ(rt),4)}, {ar(4*ks,4)}, {f}, {c(accQ(rt))}')
stamp('P1 gemm done')
A('s_barrier')

for n in range(3):
    A(f'v_add_u32 v{vT}, {64*n}, v{vLANE}')
    A(f'v_mul_u32_u24 v{vT+1}, 2731, v{vT}')
    A(f'v_lshrrev_b32 v{vT+1}, 16, v{vT+1}')
    A(f'v_mul_u32_u24 v{vT+2}, 24, v{vT+1}')
    A(f'v_sub_u32 v{vT+2}, v{vT}, v{vT+2}')
    A(f'v_lshlrev_b32 v{vT+2}, 4, v{vT+2}')
    A(f'v_bfe_u32 v{vT+3}, v{vT+1}, 1, 2')
    A(f'v_lshlrev_b32 v{vT+3}, 5, v{vT+3}')
    A(f'v_xor_b32 v{vT+2}, v{vT+2}, v{vT+3}')
    A(f'v_mul_u32_u24 v{vT+1}, 2752, v{vT+1}')
    A(f'v_add_u32 v{vDQ+n}, v{vT+1}, v{vT+2}')
    if n: A(f'v_subrev_u32 v{vDQ+n}, {n*1024}, v{vDQ+n}')
sTILE0 = sTT0
A(f's_mul_i32 s{sTILE0}, s{sJ}, 12')
A(f's_min_u32 s{sTILE0}, s{sTILE0}, 74')
sW1OFF, sW1LDS = sT5, sT6
A(f's_mul_i32 s{sW1OFF}, s{sWAVE}, {8*2752}')
A(f's_lshl_b32 s{sT0}, s{sTILE0}, 5')
A(f's_add_u32 s{sW1OFF}, s{sW1OFF}, s{sT0}')
A(f's_mul_i32 s{sW1LDS}, s{sWAVE}, 3072')
def dma_w1(ks, ksl):
    A(f's_add_u32 m0, s{sW1LDS}, {L_A1 + ksl*12288}')
    A(f's_add_u32 s{sT0}, s{sW1OFF}, {ks*32*2752}')
    for n in range(3):
        A(f'buffer_load_dwordx4 v{vDQ+n}, {srd(SW1)}, s{sT0} offen offset:{n*1024} lds')
W1CH = [(0, 5), (5, 5), (10, 6)]
for k in range(5): dma_w1(k, k)

vKF = 64
vVF = 74
vQF = 84
vON = 92
for t in range(5):
    for h in range(2):
        A(f'v_cvt_pk_bf16_f32 v{vKF+2*t+h}, v{accK(t)+2*h}, v{accK(t)+2*h+1}')
        A(f'v_cvt_pk_bf16_f32 v{vVF+2*t+h}, v{accV(t)+2*h}, v{accV(t)+2*h+1}')
        if t: A(f'v_cvt_pk_bf16_f32 v{vQF+2*(t-1)+h}, v{accQ(t)+2*h}, v{accQ(t)+2*h+1}')
for r in range(4): A(f'v_mov_b32 v{vON+r}, 0x3f803f80')
A(f'v_lshlrev_b32 v{vT}, 2, v{vG}')
for r in range(4):
    A(f'v_add_u32 v{vT+1}, {r}, v{vT}')
    A(f'v_cmp_le_u32 {sp(4+2*r)}, v{vT+1}, v{vI}')
A(f'v_and_b32 v{vT+1}, 1, v{vI}')
A(f'v_cmp_eq_u32 {sp(12)}, 1, v{vT+1}')
vM = 48
A(f'v_mov_b32 v{vT+2}, 0xffff')
A(f'v_mov_b32 v{vT+3}, 0xffff0000')
A(f'v_cndmask_b32 v{vT+2}, v{vT+2}, v{vT+3}, {sp(12)}')
A(f'v_add_u32 v{vT+1}, v{vT+1}, v{vT}')
for k in range(2):
    A(f'v_cmp_le_u32 vcc, v{vT+1}, v{vI}')
    A(f'v_cndmask_b32 v{vM+2+k}, 0, v{vT+2}, vcc')
    A(f'v_xor_b32 v{vM+k}, v{vM+2+k}, v{vT+2}')
    if k == 0: A(f'v_add_u32 v{vT+1}, 2, v{vT+1}')
def tmp(t, k): return vTB + 32*t + 12 + k
for t in range(1, 5):
    A(f'v_mfma_f32_16x16x16_bf16 {vr(tmp(t,0),4)}, {vr(vKF+2*(t-1),2)}, {vr(vQF+2*(t-1),2)}, 0')
    A(f'v_mfma_f32_16x16x16_bf16 {vr(tmp(t,4),4)}, {vr(vKF+2*t,2)}, {vr(vQF+2*(t-1),2)}, 0')
lm = A.label('Lmask')
A(f's_cmp_lg_u32 s{sCL}, 0')
A(f's_cbranch_scc1 {lm}')
A('s_nop 7')
for r in range(4): A(f'v_mov_b32 v{tmp(1,r)}, {hx(f2u(-4e9))}')
A(f'{lm}:')
A('s_nop 7')
T = range(1, 5)
for r in range(4):
    for t in T: A(f'v_cndmask_b32 v{tmp(t,r)}, v{tmp(t,r)}, v{tmp(t,4+r)}, {sp(4+2*r)}')
for t in T:
    A(f'v_cndmask_b32 v{tmp(t,0)}, v{tmp(t,0)}, v{tmp(t,1)}, {sp(12)}')
    A(f'v_cndmask_b32 v{tmp(t,1)}, v{tmp(t,2)}, v{tmp(t,3)}, {sp(12)}')
for t in T: A(f'v_max_f32 v{tmp(t,2)}, v{tmp(t,0)}, v{tmp(t,1)}')
for op in ('v_permlane16_swap_b32', 'v_permlane32_swap_b32'):
    for t in T: A(f'v_mov_b32 v{tmp(t,3)}, v{tmp(t,2)}')
    for t in T: A(f'{op} v{tmp(t,2)}, v{tmp(t,3)}')
    for t in T: A(f'v_max_f32 v{tmp(t,2)}, v{tmp(t,2)}, v{tmp(t,3)}')
CS = 0.25 * LOG2E
for t in T:
    A(f'v_sub_f32 v{tmp(t,0)}, v{tmp(t,0)}, v{tmp(t,2)}')
    A(f'v_sub_f32 v{tmp(t,1)}, v{tmp(t,1)}, v{tmp(t,2)}')
for t in T:
    A(f'v_mul_f32 v{tmp(t,0)}, {hx(f2u(CS))}, v{tmp(t,0)}')
    A(f'v_mul_f32 v{tmp(t,1)}, {hx(f2u(CS))}, v{tmp(t,1)}')
for t in T:
    A(f'v_exp_f32 v{tmp(t,0)}, v{tmp(t,0)}')
    A(f'v_exp_f32 v{tmp(t,1)}, v{tmp(t,1)}')
for t in T:
    A(f'v_cvt_pk_bf16_f32 v{tmp(t,0)}, v{tmp(t,0)}, v{tmp(t,0)}')
    A(f'v_cvt_pk_bf16_f32 v{tmp(t,1)}, v{tmp(t,1)}, v{tmp(t,1)}')
for t in T:
    A(f'v_and_b32 v{tmp(t,4)}, v{tmp(t,0)}, v{vM}')
    A(f'v_and_b32 v{tmp(t,5)}, v{tmp(t,1)}, v{vM+1}')
    A(f'v_and_b32 v{tmp(t,6)}, v{tmp(t,0)}, v{vM+2}')
    A(f'v_and_b32 v{tmp(t,7)}, v{tmp(t,1)}, v{vM+3}')
for t in T:
    A(f'v_mfma_f32_16x16x32_bf16 {vr(tmp(t,8),4)}, {vr(vVF+2*(t-1),4)}, {vr(tmp(t,4),4)}, 0')
    A(f'v_mfma_f32_16x16x32_bf16 {vr(tmp(t,12),4)}, {vr(vON,4)}, {vr(tmp(t,4),4)}, 0')
for t in T: A(f'v_rcp_f32 v{tmp(t,12)}, v{tmp(t,12)}')
for t in T:
    for r in range(4): A(f'v_mul_f32 v{tmp(t,8+r)}, v{tmp(t,8+r)}, v{tmp(t,12)}')
for t in T:
    A(f'v_cvt_pk_bf16_f32 v{tmp(t,0)}, v{tmp(t,8)}, v{tmp(t,9)}')
    A(f'v_cvt_pk_bf16_f32 v{tmp(t,1)}, v{tmp(t,10)}, v{tmp(t,11)}')
sOB = sT3
A(f's_lshl_b32 s{sOB}, s{sCL}, 16')
A(f's_add_u32 s{sOB}, s{sOB}, {WS_O}')
A(f's_lshl_b32 s{sT0}, s{sJ}, 11')
A(f's_add_u32 s{sT0}, s{sT0}, s{sOB}')
A(f's_lshr_b32 s{sT1}, s{sWAVE}, 1')
A(f's_lshl_b32 s{sT1}, s{sT1}, 10')
A(f's_add_u32 s{sT0}, s{sT0}, s{sT1}')
A(f's_and_b32 s{sT1}, s{sWAVE}, 1')
A(f's_lshl_b32 s{sT1}, s{sT1}, 3')
A(f's_add_u32 s{sT0}, s{sT0}, s{sT1}')
def st_o(sc):
    A(f's_mov_b32 s{sT1}, s{sT0}')
    for t in T:
        A(f'buffer_store_dwordx2 {vr(tmp(t,0),2)}, v{vOFF16}, {srd(SWS)}, s{sT1} offen{sc}')
        if t < 4: A(f's_add_u32 s{sT1}, s{sT1}, 16384')
dual_store(st_o)
stamp('attn done')

sFL = 17
A(f's_lshl_b32 s{sFL}, s{sCL}, 8')
A(f's_add_u32 s{sFL}, s{sFL}, {WS_FLAG}')
vFLO, vFLV, vZ = 40, 41, 42
def publish(h):
    A('s_waitcnt vmcnt(0)')
    A('s_barrier')
    l = A.label('Lpub')
    A(f's_cmp_lg_u32 s{sWAVE}, 0')
    A(f's_cbranch_scc1 {l}')
    A(f's_add_u32 s{sT1}, s{sTAG}, {h+1}')
    A(f'v_mov_b32 v{vFLV}, s{sT1}')
    A(f's_lshl_b32 s{sT0}, s{sJ}, 2')
    A(f'v_mov_b32 v{vZ}, s{sT0}')
    A('s_mov_b64 exec, 1')
    dual_store(lambda sc: A(f'buffer_store_dword v{vFLV}, v{vZ}, {srd(SWS)}, s{sFL} offen offset:{32*h}{sc}'))
    A('s_mov_b64 exec, -1')
    A(f'{l}:')
def await_(h):
    A(f'v_and_b32 v{vFLO}, 7, v{vLANE}')
    A(f'v_lshlrev_b32 v{vFLO}, 2, v{vFLO}')
    A(f's_add_u32 s{sT1}, s{sTAG}, {h+1}')
    lp, ld = A.label('Lw'), A.label('Lwok')
    A(f'{lp}:')
    A(f'buffer_load_dword v{vFLV}, v{vFLO}, {srd(SWS)}, s{sFL} offen offset:{32*h} sc1')
    A('s_waitcnt vmcnt(0)')
    A(f'v_cmp_ne_u32 vcc, s{sT1}, v{vFLV}')
    A(f's_cbranch_vccz {ld}')
    spin_guard(lp, ld)

publish(0)

vTR1 = 10
sU = [sLN, sLN+1, sLN+2]
A(f's_mul_i32 s{sT0}, s{sWAVE}, 3')
A(f's_and_b32 s{sT1}, s{sWAVE}, 1')
A(f's_add_u32 s{sU[0]}, s{sT0}, s{sT1}')
A(f's_add_u32 s{sU[1]}, s{sU[0]}, 1')
A(f's_add_u32 s{sU[2]}, s{sT0}, 2')
A(f's_lshl_b32 s{sT1}, s{sT1}, 1')
A(f's_sub_u32 s{sU[2]}, s{sU[2]}, s{sT1}')
A(f'v_mul_u32_u24 v{vT}, 384, v45')
A(f'v_add_u32 v{vT}, v{vT}, v44')
for tt in range(3):
    A(f'v_xor_b32 v{vT+1}, s{sU[tt]}, v{vFSW}')
    A(f'v_lshl_add_u32 v{vTR1+tt}, v{vT+1}, 5, v{vT}')
def tr_w1(ks0, cnt):
    for k in range(cnt):
        bump = k == 5
        for tt in range(3):
            a = 64*tt + 4*(ks0+k)
            if bump:
                A(f'v_add_u32 v{vT+2}, {5*12288}, v{vTR1+tt}')
                A(f'ds_read_b64_tr_b16 {ar(a,2)}, v{vT+2}')
                A(f'ds_read_b64_tr_b16 {ar(a+2,2)}, v{vT+2} offset:6144')
            else:
                A(f'ds_read_b64_tr_b16 {ar(a,2)}, v{vTR1+tt} offset:{k*12288}')
                A(f'ds_read_b64_tr_b16 {ar(a+2,2)}, v{vTR1+tt} offset:{k*12288+6144}')
tr_w1(0, 5)
A('s_waitcnt lgkmcnt(0)')
A('s_barrier')
for k in range(5): dma_w1(5+k, k)

le = A.label('Lnoep')
A(f's_cmp_lg_u32 s2, 0')
A(f's_cbranch_scc1 {le}')
A(f's_cmp_lg_u32 s{sWAVE}, 3')
A(f's_cbranch_scc1 {le}')
A(f's_mov_b32 s{sT0}, {WS_XCC}')
lp, ld = A.label('Lep'), A.label('Lepok')
A(f'{lp}:')
A(f'buffer_load_dwordx4 {vr(vF,4)}, v{vOFF16}, {srd(SWS)}, s{sT0} offen sc1')
A(f'buffer_load_dwordx4 {vr(vF+4,4)}, v{vOFF16}, {srd(SWS)}, s{sT0} offen offset:1024 sc1')
A('s_waitcnt vmcnt(0)')
A(f'v_xor_b32 v{vT+1}, s{sTAG}, v{vF+1}')
for r in (3, 5, 7):
    A(f'v_xor_b32 v{vT+2}, s{sTAG}, v{vF+r}')
    A(f'v_or_b32 v{vT+1}, v{vT+1}, v{vT+2}')
A(f'v_cmp_ne_u32 vcc, 0, v{vT+1}')
A(f's_cbranch_vccz {ld}')
spin_guard(lp, ld)
A(f'v_mov_b32 v{vT+1}, s{sTAG}')
A(f'v_mov_b32 v{vT+2}, 0')
A('s_mov_b64 exec, 1')
A(f'buffer_store_dword v{vT+1}, v{vT+2}, {srd(SWS)}, 0 offen sc1')
A('s_mov_b64 exec, -1')
A(f'{le}:')

A(f'v_add_u32 v{vT+1}, {L_MODT}, v{vOFF16}')
A(f'ds_read_b128 {vr(vF,4)}, v{vT+1} offset:{4*1024}')
A(f'ds_read_b128 {vr(vF+4,4)}, v{vT+1} offset:{3*1024}')
A(f'v_mov_b32 v{vONE}, 0x3f803f80')
A('s_waitcnt lgkmcnt(0)')
q5 = [vF+8, vF+9, vF+10, vF+11, vF+12]
for d in range(4):
    c = lambda r: '0' if d == 0 else f'v{r}'
    A(f'v_dot2_f32_bf16 v{q5[0]}, v{vF+d}, v{vONE}, {c(q5[0])}')
    A(f'v_dot2_f32_bf16 v{q5[1]}, v{vF+d}, v{vF+d}, {c(q5[1])}')
    A(f'v_dot2_f32_bf16 v{q5[2]}, v{vF+4+d}, v{vONE}, {c(q5[2])}')
    A(f'v_dot2_f32_bf16 v{q5[3]}, v{vF+4+d}, v{vF+4+d}, {c(q5[3])}')
    A(f'v_dot2_f32_bf16 v{q5[4]}, v{vF+d}, v{vF+4+d}, {c(q5[4])}')
red32(q5[0], q5[2]); red32(q5[1], q5[3]); red16(q5[0], q5[1])
A(f'v_mov_b32 v{q5[1]}, v{q5[4]}'); red32(q5[4], q5[1])
A(f'v_mov_b32 v{q5[1]}, v{q5[4]}'); red16(q5[4], q5[1])
for n in (8, 4, 2, 1):
    ror_add(q5[0], n); ror_add(q5[4], n)
A(f'v_mul_f32 v{q5[0]}, {hx(f2u(1/512))}, v{q5[0]}')
A(f'v_mul_f32 v{q5[4]}, {hx(f2u(1/512))}, v{q5[4]}')
for k in range(4): A(f'v_readlane_b32 s{sG+k}, v{q5[0]}, {16*k}')
A(f'v_readlane_b32 s{sG+4}, v{q5[4]}, 0')
vGA, vGB, vSB = 96, 112, 128
vX1 = 144
vOF = 160
vAC2 = 224
A(f's_lshl_b32 s{sT0}, s{sJ}, 7')
A(f's_add_u32 s{sT0}, s{sT0}, {L_MODT}')
vMC = 43
A(f'v_lshl_add_u32 v{vMC}, v{vG}, 3, s{sT0}')
def load_cols(dst, vec):
    for ct in range(4): A(f'ds_read_b64 {vr(vF+2*ct,2)}, v{vMC} offset:{vec*1024+ct*32}')
    A('s_waitcnt lgkmcnt(0)')
    for d in range(8):
        A(f'v_lshlrev_b32 v{dst+2*d}, 16, v{vF+d}')
        A(f'v_and_b32 v{dst+2*d+1}, 0xffff0000, v{vF+d}')
load_cols(vGA, 2); load_cols(vGB, 4); load_cols(vSB, 3)
vXO = 13
sXO = sLN+3
A(f'v_lshlrev_b32 v{vXO}, 10, v{vI}')
A(f'v_lshl_add_u32 v{vXO}, v{vG}, 3, v{vXO}')
A(f's_lshl_b32 s{sXO}, s{sWAVE}, 4')
A(f's_add_u32 s{sXO}, s{sXO}, s{sR0}')
A(f's_lshl_b32 s{sXO}, s{sXO}, 10')
A(f's_lshl_b32 s{sT0}, s{sJ}, 7')
A(f's_add_u32 s{sXO}, s{sXO}, s{sT0}')
for ct in range(4): A(f'buffer_load_dwordx2 {vr(vF+2*ct,2)}, v{vXO}, {srd(SX)}, s{sXO} offen offset:{ct*32}')
A('s_waitcnt vmcnt(0)')
for d in range(8):
    A(f'v_lshlrev_b32 v{vX1+2*d}, 16, v{vF+d}')
    A(f'v_and_b32 v{vX1+2*d+1}, 0xffff0000, v{vF+d}')

await_(0)
stamp('hop0 seen')
A(f's_lshl_b32 s{sT0}, s{sWAVE}, 14')
A(f's_add_u32 s{sT0}, s{sT0}, s{sOB}')
for ks in range(16):
    A(f'buffer_load_dwordx4 {vr(vOF+4*ks,4)}, v{vOFF16}, {srd(SWS)}, s{sT0} offen offset:{(ks&3)*1024} sc1')
    if ks & 3 == 3 and ks < 15: A(f's_add_u32 s{sT0}, s{sT0}, 4096')
def wo_read(ks):
    b = vF + 16*(ks & 1)
    for ct in range(4):
        A(f'ds_read_b64_tr_b16 {vr(b+4*ct,2)}, v{vTRW+ct} offset:{ks*4096}')
        A(f'ds_read_b64_tr_b16 {vr(b+4*ct+2,2)}, v{vTRW+ct} offset:{ks*4096+2048}')
wo_read(0)
for ks in range(16):
    if ks < 15:
        wo_read(ks+1)
        A(f's_waitcnt vmcnt({15-ks}) lgkmcnt(8)')
    else:
        A('s_waitcnt vmcnt(0) lgkmcnt(0)')
    b = vF + 16*(ks & 1)
    for ct in range(4):
        A(f'v_mfma_f32_16x16x32_bf16 {vr(vAC2+4*ct,4)}, {vr(b+4*ct,4)}, {vr(vOF+4*ks,4)}, {"0" if ks==0 else vr(vAC2+4*ct,4)}')
stamp('P2 gemm done')
vU = 160
for e in range(16): A(f'v_fmac_f32 v{vX1+e}, v{vGA+e}, v{vAC2+e}')
for d in range(8): A(f'v_cvt_pk_bf16_f32 v{184+d}, v{vX1+2*d}, v{vX1+2*d+1}')
for d in range(8):
    A(f'v_lshlrev_b32 v{vX1+2*d}, 16, v{184+d}')
    A(f'v_and_b32 v{vX1+2*d+1}, 0xffff0000, v{184+d}')
for e in range(16): A(f'v_mul_f32 v{vU+e}, v{vX1+e}, v{vGB+e}')
for d in range(8): A(f'v_cvt_pk_bf16_f32 v{176+d}, v{vU+2*d}, v{vU+2*d+1}')
sUB = sOB
A(f's_lshl_b32 s{sUB}, s{sCL}, 16')
A(f's_add_u32 s{sUB}, s{sUB}, {WS_U}')
A(f's_lshl_b32 s{sT0}, s{sWAVE}, 14')
A(f's_add_u32 s{sT0}, s{sT0}, s{sUB}')
A(f's_lshl_b32 s{sT1}, s{sJ}, 11')
A(f's_add_u32 s{sT0}, s{sT0}, s{sT1}')
def st_u(sc):
    for m in range(2): A(f'buffer_store_dwordx4 {vr(176+4*m,4)}, v{vOFF16}, {srd(SWS)}, s{sT0} offen offset:{m*1024}{sc}')
dual_store(st_u)
for d in range(8):
    A(f'v_lshlrev_b32 v{vU+2*d}, 16, v{176+d}')
    A(f'v_and_b32 v{vU+2*d+1}, 0xffff0000, v{176+d}')
S = [192, 193, 194, 195, 196, 197]
for d in range(8):
    c = lambda r: '0' if d == 0 else f'v{r}'
    A(f'v_dot2_f32_bf16 v{S[0]}, v{184+d}, v{vONE}, {c(S[0])}')
    A(f'v_dot2_f32_bf16 v{S[1]}, v{184+d}, v{184+d}, {c(S[1])}')
    A(f'v_dot2_f32_bf16 v{S[2]}, v{176+d}, v{vONE}, {c(S[2])}')
    A(f'v_dot2_f32_bf16 v{S[3]}, v{176+d}, v{176+d}, {c(S[3])}')
for e in range(16):
    if e == 0:
        A(f'v_mul_f32 v{S[4]}, v{vU}, v{vGB}')
        A(f'v_mul_f32 v{S[5]}, v{vU}, v{vSB}')
    else:
        A(f'v_fmac_f32 v{S[4]}, v{vU+e}, v{vGB+e}')
        A(f'v_fmac_f32 v{S[5]}, v{vU+e}, v{vSB+e}')
red32(S[0], S[2]); red32(S[1], S[3]); red16(S[0], S[1])
red32(S[4], S[5])
A(f'v_mov_b32 v{S[1]}, v{S[4]}'); red16(S[1], S[4])
sSB = sLN+4
A(f's_lshl_b32 s{sSB}, s{sCL}, 14')
A(f's_add_u32 s{sSB}, s{sSB}, {WS_ST}')
A(f's_lshl_b32 s{sT0}, s{sWAVE}, 12')
A(f's_add_u32 s{sSB}, s{sSB}, s{sT0}')
A(f's_lshr_b32 s{sT0}, s{sJ}, 1')
A(f's_lshl_b32 s{sT0}, s{sT0}, 10')
A(f's_and_b32 s{sT1}, s{sJ}, 1')
A(f's_lshl_b32 s{sT1}, s{sT1}, 3')
A(f's_add_u32 s{sT0}, s{sT0}, s{sT1}')
A(f's_add_u32 s{sT0}, s{sT0}, s{sSB}')
dual_store(lambda sc: A(f'buffer_store_dwordx2 {vr(S[0],2)}, v{vOFF16}, {srd(SWS)}, s{sT0} offen{sc}'))
publish(1)
stamp('P2 published')
tr_w1(5, 5)
A('s_waitcnt lgkmcnt(0)')
A('s_barrier')
for k in range(6): dma_w1(10+k, k)
vBI = 96
A(f'v_lshlrev_b32 v{vT}, 1, v{vI}')
for tt in range(3):
    A(f's_add_u32 s{sT0}, s{sTILE0}, s{sU[tt]}')
    A(f's_lshl_b32 s{sT0}, s{sT0}, 5')
    A(f'v_add_u32 v{vT+1+tt}, s{sT0}, v{vT}')
    A(f'global_load_ushort v{vBI+tt}, v{vT+1+tt}, {sp(sB1)}')
A('s_waitcnt vmcnt(0)')
A('s_barrier')
tr_w1(10, 6)
A(f'v_lshrrev_b32 v{vT}, 2, v{vI}')
A(f'v_mov_b32 v{vT+1}, {L_ONES}')
A(f'v_mov_b32 v{vT+2}, {L_MODT+4*1024}')
A(f'v_cmp_eq_u32 vcc, 0, v{vT}')
A(f'v_cndmask_b32 v{vT+1}, v{vT+1}, v{vT+2}, vcc')
A(f'v_mov_b32 v{vT+2}, {L_MODT+3*1024}')
A(f'v_cmp_eq_u32 vcc, 1, v{vT}')
A(f'v_cndmask_b32 v{vT+1}, v{vT+1}, v{vT+2}, vcc')
A(f'v_lshl_add_u32 v{vT+1}, v{vG}, 3, v{vT+1}')
vXF = 160
for ks in range(16):
    A(f'ds_read_b64 {vr(vXF+4*ks,2)}, v{vT+1} offset:{ks*64}')
    A(f'ds_read_b64 {vr(vXF+4*ks+2,2)}, v{vT+1} offset:{ks*64+32}')
A('s_waitcnt lgkmcnt(0)')
A('s_barrier')
vCO = 100
for ks in range(16):
    for tt in range(3):
        A(f'v_mfma_f32_16x16x32_bf16 {vr(vCO+4*tt,4)}, {vr(vXF+4*ks,4)}, {ar(64*tt+4*ks,4)}, {"0" if ks==0 else vr(vCO+4*tt,4)}')
A(f'v_cmp_eq_u32 vcc, 3, v{vG}')
for tt in range(3):
    A(f'v_lshlrev_b32 v{vBI+tt}, 16, v{vBI+tt}')
    A(f'v_cndmask_b32 v{vCO+4*tt}, v{vCO+4*tt}, v{vBI+tt}, vcc')

await_(1)
stamp('hop1 seen')
A(f's_lshl_b32 s{sT0}, s{sWAVE}, 14')
A(f's_add_u32 s{sT1}, s{sT0}, {L_B}')
A(f's_add_u32 s{sT0}, s{sT0}, s{sUB}')
for k in range(4):
    A(f's_add_u32 m0, s{sT1}, {k*4096}')
    for j in range(4):
        A(f'buffer_load_dwordx4 v{vOFF16}, {srd(SWS)}, s{sT0} offen offset:{j*1024} sc1 lds')
    if k < 3: A(f's_add_u32 s{sT0}, s{sT0}, 4096')
for p in range(4):
    A(f'buffer_load_dwordx4 {vr(vF+4*p,4)}, v{vOFF16}, {srd(SWS)}, s{sSB} offen offset:{p*1024} sc1')
A('s_waitcnt vmcnt(0)')
for k in range(1, 8):
    A(f'v_add_f32 v{vF}, v{vF}, v{vF+2*k}')
    A(f'v_add_f32 v{vF+1}, v{vF+1}, v{vF+2*k+1}')
vSA = vT+4
A(f's_lshl_b32 s{sT0}, s{sWAVE}, 9')
A(f's_add_u32 s{sT0}, s{sT0}, {L_ST1}')
A(f'v_lshl_add_u32 v{vSA}, v{vI}, 5, s{sT0}')
A(f'v_lshl_add_u32 v{vSA+1}, v{vG}, 2, v{vSA}')
A(f'ds_write_b32 v{vSA+1}, v{vF}')
A(f'ds_write_b32 v{vSA+1}, v{vF+1} offset:16')
A('s_waitcnt lgkmcnt(0)')
A(f'ds_read_b128 {vr(vF,4)}, v{vSA}')
A(f'ds_read_b128 {vr(vF+4,4)}, v{vSA} offset:16')
A('s_waitcnt lgkmcnt(0)')
X1, X2, X3, X4, X5, X6 = vF, vF+1, vF+2, vF+3, vF+4, vF+6
for r in (X1, X2, X3, X4, X5, X6): A(f'v_mul_f32 v{r}, {hx(f2u(1/512))}, v{r}')
a_, b_, c_, d_, e_ = vF+8, vF+9, vF+10, vF+11, vF+12
A(f'v_fma_f32 v{X2}, -v{X1}, v{X1}, v{X2}')
A(f'v_max_f32 v{X2}, 0, v{X2}')
A(f'v_add_f32 v{X2}, {hx(f2u(1e-5))}, v{X2}')
A(f'v_rsq_f32 v{a_}, v{X2}')
A(f'v_mul_f32 v{X2}, v{X2}, v{a_}')
A(f'v_fma_f32 v{X3}, -v{X1}, s{sG}, v{X3}')
A(f'v_fma_f32 v{b_}, v{X3}, v{a_}, s{sG+2}')
A(f'v_mul_f32 v{c_}, s{sG+1}, v{X1}')
A(f'v_fma_f32 v{c_}, -2.0, v{X5}, v{c_}')
A(f'v_fma_f32 v{X4}, v{X1}, v{c_}, v{X4}')
A(f'v_fma_f32 v{X6}, -v{X1}, s{sG+4}, v{X6}')
A(f'v_add_f32 v{X6}, v{X6}, v{X6}')
A(f'v_fma_f32 v{X4}, v{X4}, v{a_}, v{X6}')
A(f'v_fma_f32 v{X4}, v{X4}, v{a_}, s{sG+3}')
A(f'v_fma_f32 v{X4}, -v{b_}, v{b_}, v{X4}')
A(f'v_max_f32 v{X4}, 0, v{X4}')
A(f'v_add_f32 v{X4}, {hx(f2u(1e-5))}, v{X4}')
A(f'v_rsq_f32 v{d_}, v{X4}')
A(f'v_mul_f32 v{X4}, v{X4}, v{d_}')
K0 = -2.0 * 0.7978845608028654 * LOG2E
K1 = K0 * 0.044715
co = [vF+16, vF+17, vF+18, vF+19]; cs = [vF+20, vF+21, vF+22, vF+23]
A(f'v_sub_f32 v{co[0]}, 0, v{X1}')
A(f'v_mov_b32 v{co[1]}, v{X2}')
A(f'v_mul_f32 v{co[2]}, v{b_}, v{X2}')
A(f'v_sub_f32 v{co[2]}, 0, v{co[2]}')
A(f'v_mul_f32 v{co[3]}, v{X2}, v{X4}')
A(f'v_mul_f32 v{e_}, v{a_}, v{d_}')
A(f'v_mul_f32 v{cs[0]}, {hx(f2u(K0))}, v{e_}')
A(f'v_mul_f32 v{cs[1]}, v{e_}, v{e_}')
A(f'v_mul_f32 v{cs[1]}, v{cs[1]}, v{e_}')
A(f'v_mul_f32 v{cs[1]}, {hx(f2u(K1))}, v{cs[1]}')
A(f'v_mov_b32 v{cs[2]}, v{co[3]}')
A(f'v_mov_b32 v{cs[3]}, 0')
A(f'ds_write_b128 v{vSA}, {vr(co[0],4)} offset:{L_ST2-L_ST1}')
A(f'ds_write_b128 v{vSA}, {vr(cs[0],4)} offset:{L_ST2-L_ST1+16}')
A('s_waitcnt lgkmcnt(0)')
A('s_barrier')
stamp('u landed')
sW2OFF, sW2LDS = sT5, sT6
A(f's_mul_i32 s{sW2OFF}, s{sWAVE}, {11*32*1024}')
A(f's_lshl_b32 s{sT0}, s{sJ}, 7')
A(f's_add_u32 s{sW2OFF}, s{sW2OFF}, s{sT0}')
A(f's_mul_i32 s{sW2LDS}, s{sWAVE}, 20480')
for k in range(5): dma_1024(SW2, sW2OFF, sW2LDS, L_A1 + k*4096, k*32)
vCB = 112
A(f'v_lshlrev_b32 v{vT}, 5, v{vI}')
A(f'v_add_u32 v{vT}, {L_ST2}, v{vT}')
A(f'v_lshl_add_u32 v{vT+1}, v{vG}, 2, v{vT}')
for rt in range(4):
    A(f'ds_read_b32 v{vCB+rt}, v{vT+1} offset:{rt*512}')
    A(f'ds_read_b128 {vr(116+4*rt,4)}, v{vT} offset:{rt*512+16}')
vAC3 = 160
vUA = vT+2
A(f'v_add_u32 v{vUA}, {L_B}, v{vOFF16}')
seq = [(rt, ks) for rt in range(4) for ks in range(16)]
def u_read(n):
    rt, ks = seq[n]
    A(f'ds_read_b128 {vr(vF+4*(n%NB),4)}, v{vUA} offset:{rt*16384+ks*1024}')
for n in range(NB-1): u_read(n)
for n, (rt, ks) in enumerate(seq):
    if n + NB - 1 < len(seq):
        u_read(n + NB - 1)
        A(f's_waitcnt lgkmcnt({NB-1})')
    else:
        A(f's_waitcnt lgkmcnt({len(seq)-1-n})')
    f = vr(vF+4*(n%NB), 4)
    for tt in range(3):
        acc = vr(vAC3+12*rt+4*tt, 4)
        A(f'v_mfma_f32_16x16x32_bf16 {acc}, {ar(64*tt+4*ks,4)}, {f}, {"0" if ks==0 else acc}')
for rt in range(4):
    for tt in range(3):
        acc = vr(vAC3+12*rt+4*tt, 4)
        A(f'v_mfma_f32_16x16x4_f32 {acc}, v{vCO+4*tt}, v{vCB+rt}, {acc}')
stamp('P3 gemm done')
vG1 = 208
vHP = 224
sHB = sOB
A(f's_mul_i32 s{sHB}, s{sCL}, {HCL}')
A(f's_add_u32 s{sHB}, s{sHB}, {WS_H}')
sHP, sHS = sLN+5, sLN+6
A(f's_add_u32 s{sT0}, s{sTILE0}, s{sU[0]}')
A(f's_lshl_b32 s{sHP}, s{sT0}, 9')
A(f's_add_u32 s{sHP}, s{sHP}, s{sHB}')
A(f's_add_u32 s{sT0}, s{sTILE0}, s{sU[2]}')
A(f's_lshr_b32 s{sT1}, s{sT0}, 1')
A(f's_lshl_b32 s{sHS}, s{sT1}, 10')
A(f's_and_b32 s{sT0}, s{sT0}, 1')
A(f's_lshl_b32 s{sT0}, s{sT0}, 3')
A(f's_add_u32 s{sHS}, s{sHS}, s{sT0}')
A(f's_add_u32 s{sHS}, s{sHS}, s{sHB}')
for rt in range(4):
    a = vAC3 + 12*rt
    c0, c1, iA = 116+4*rt, 117+4*rt, 118+4*rt
    E = range(12)
    for e in E: A(f'v_mul_f32 v{vG1+e}, v{a+e}, v{a+e}')
    for e in E: A(f'v_fma_f32 v{vG1+e}, v{vG1+e}, v{c1}, v{c0}')
    for e in E: A(f'v_mul_f32 v{vG1+e}, v{vG1+e}, v{a+e}')
    for e in E: A(f'v_exp_f32 v{vG1+e}, v{vG1+e}')
    for e in E: A(f'v_fma_f32 v{vG1+e}, v{vG1+e}, v{iA}, v{iA}')
    for e in E: A(f'v_rcp_f32 v{vG1+e}, v{vG1+e}')
    for e in E: A(f'v_mul_f32 v{vG1+e}, v{vG1+e}, v{a+e}')
    for d in range(6): A(f'v_cvt_pk_bf16_f32 v{vHP+6*rt+d}, v{vG1+2*d}, v{vG1+2*d+1}')
def st_h(sc):
    A(f's_mov_b32 s{sT0}, s{sHP}')
    A(f's_mov_b32 s{sT1}, s{sHS}')
    for rt in range(4):
        A(f'buffer_store_dwordx4 {vr(vHP+6*rt,4)}, v{vOFF16}, {srd(SWS)}, s{sT0} offen{sc}')
        A(f'buffer_store_dwordx2 {vr(vHP+6*rt+4,2)}, v{vOFF16}, {srd(SWS)}, s{sT1} offen{sc}')
        if rt < 3:
            A(f's_add_u32 s{sT0}, s{sT0}, {HRT}')
            A(f's_add_u32 s{sT1}, s{sT1}, {HRT}')
dual_store(st_h)
publish(2)
stamp('P3 published')

vTR2 = 14
A(f's_sub_u32 s{sT0}, s{sW2LDS}, {L_B - L_A1}')
for ct in range(4): A(f'v_add_u32 v{vTR2+ct}, s{sT0}, v{vTRW+ct}')
def tr_w2(kk0, cnt, base):
    for k in range(cnt):
        for ct in range(4):
            a = 16*(kk0+k) + 4*ct
            A(f'ds_read_b64_tr_b16 {ar(a,2)}, v{base+ct} offset:{k*4096}')
            A(f'ds_read_b64_tr_b16 {ar(a+2,2)}, v{base+ct} offset:{k*4096+2048}')
for k in range(4): dma_1024(SW2, sW2OFF, sT4, L_B + k*4096, (5+k)*32)
tr_w2(0, 5, vTR2)
A('s_waitcnt lgkmcnt(0)')
dma_1024(SW2, sW2OFF, sW2LDS, L_A1, 9*32)
A(f's_cmp_eq_u32 s{sWAVE}, 3')
A(f's_cselect_b32 s{sT2}, 0, {32*1024}')
A(f's_add_u32 s{sT2}, s{sT2}, s{sW2OFF}')
dma_1024(SW2, sT2, sW2LDS, L_A1 + 4096, 9*32)
for ct in range(4): A(f'v_add_u32 v{vT+ct}, s{sT4}, v{vTRW+ct}')
A('s_waitcnt vmcnt(8)')
tr_w2(5, 4, vT)
A('s_waitcnt vmcnt(0)')
tr_w2(9, 2, vTR2)
vXK = 48
for e in range(16): A(f'v_mov_b32 v{vXK+e}, v{vX1+e}')
vGG = 240
A('s_waitcnt lgkmcnt(0)')
load_cols(vGG, 5)
vB2 = 32
A(f's_lshl_b32 s{sT0}, s{sJ}, 7')
A(f'v_lshl_add_u32 v{vT}, v{vG}, 3, s{sT0}')
for ct in range(4): A(f'global_load_dwordx2 {vr(vB2+2*ct,2)}, v{vT}, {sp(sB2)} offset:{ct*32}')
A('s_waitcnt vmcnt(0)')
for d in range(8):
    A(f'v_lshlrev_b32 v{vT}, 16, v{vB2+d}')
    A(f'v_and_b32 v{vT+1}, 0xffff0000, v{vB2+d}')
    A(f'v_fmac_f32 v{vXK+2*d}, v{vGG+2*d}, v{vT}')
    A(f'v_fmac_f32 v{vXK+2*d+1}, v{vGG+2*d+1}, v{vT+1}')
vLAST = 2
A(f'v_mov_b32 v{vLAST}, v{vOFF16}')
ll = A.label('Lnl')
A(f's_cmp_lg_u32 s{sWAVE}, 3')
A(f's_cbranch_scc1 {ll}')
A(f'v_mov_b32 v{vLAST}, 0x7ffffff0')
A(f'{ll}:')

await_(2)
stamp('hop2 seen')
vHA = 64
aAC = 176
A(f's_mul_i32 s{sT2}, s{sWAVE}, {11*1024}')
A(f's_add_u32 s{sT2}, s{sT2}, s{sHB}')
for r in range(4):
    A(f's_add_u32 s{sT0}, s{sWAVE}, {r}')
    A(f's_and_b32 s{sT0}, s{sT0}, 3')
    A(f's_mul_i32 s{sT0}, s{sT0}, {HRT}')
    A(f's_add_u32 s{sT0}, s{sT0}, s{sT2}')
    for kk in range(11):
        vo = vLAST if kk == 10 else vOFF16
        A(f'buffer_load_dwordx4 {vr(vHA+44*r+4*kk,4)}, v{vo}, {srd(SWS)}, s{sT0} offen offset:{(kk&3)*1024} sc1')
        if kk & 3 == 3: A(f's_add_u32 s{sT0}, s{sT0}, 4096')
A('s_barrier')
n = 0
for r in range(4):
    for kk in range(11):
        A(f's_waitcnt vmcnt({43-n})'); n += 1
        for ct in range(4):
            acc = ar(aAC+16*r+4*ct, 4)
            A(f'v_mfma_f32_16x16x32_bf16 {acc}, {ar(16*kk+4*ct,4)}, {vr(vHA+44*r+4*kk,4)}, {"0" if kk==0 else acc}')
stamp('P4 gemm done')
for r in range(1, 4):
    A(f's_add_u32 s{sT0}, s{sWAVE}, {r}')
    A(f's_and_b32 s{sT0}, s{sT0}, 3')
    A(f's_mul_i32 s{sT0}, s{sT0}, 12288')
    A(f's_add_u32 s{sT0}, s{sT0}, {L_B + (r-1)*4096}')
    A(f'v_add_u32 v{vT}, s{sT0}, v{vOFF16}')
    for ct in range(4):
        A(f'ds_write_b128 v{vT}, {ar(aAC+16*r+4*ct,4)} offset:{ct*1024}')
vR = 64
for e in range(16): A(f'v_accvgpr_read_b32 v{vR+e}, a{aAC+e}')
A(f's_mul_i32 s{sT0}, s{sWAVE}, 12288')
A(f's_add_u32 s{sT0}, s{sT0}, {L_B}')
A(f'v_add_u32 v{vT+1}, s{sT0}, v{vOFF16}')
A('s_waitcnt lgkmcnt(0)')
A('s_barrier')
for k in range(12): A(f'ds_read_b128 {vr(vR+16+4*k,4)}, v{vT+1} offset:{k*1024}')
for s in range(3):
    A(f's_waitcnt lgkmcnt({8-4*s})')
    for e in range(16): A(f'v_add_f32 v{vR+e}, v{vR+e}, v{vR+16+16*s+e}')
for e in range(16): A(f'v_fmac_f32 v{vXK+e}, v{vGG+e}, v{vR+e}')
for d in range(8): A(f'v_cvt_pk_bf16_f32 v{vR+d}, v{vXK+2*d}, v{vXK+2*d+1}')
for ct in range(4):
    A(f'buffer_store_dwordx2 {vr(vR+2*ct,2)}, v{vXO}, {srd(SOUT)}, s{sXO} offen offset:{ct*32}')
if STAMP:
    A('s_waitcnt vmcnt(0)')
    stamp('end')
    l = A.label('Lst')
    A(f's_cmp_lg_u32 s{sWAVE}, 0')
    A(f's_cbranch_scc1 {l}')
    A(f's_memrealtime {sp(sTM)}')
    A('s_waitcnt lgkmcnt(0)')
    A(f's_lshl_b32 s{sT0}, s2, 7')
    A(f's_add_u32 s{sT0}, s{sT0}, {WS_STAMP}')
    A(f'v_writelane_b32 v31, s{sTM}, 29')
    A(f'v_writelane_b32 v31, s{sSPIN}, 30')
    A(f'v_writelane_b32 v31, s{sLOCAL}, 31')
    A(f'v_lshlrev_b32 v{vT}, 2, v{vLANE}')
    A('s_mov_b64 exec, 0xffffffff')
    A(f'buffer_store_dword v31, v{vT}, {srd(SWS)}, s{sT0} offen')
    A(f'{l}:')
A('s_endpgm')
A('.fill 16384, 4, 0xbf800000')

header()
sys.stdout.write(A.render())
footer()
sys.stderr.write(f'stamps={nstamp[0]} nops={A.nnop} lines={len(A.lines)}\n')
```

```python
import sys, struct
from asmlib import Asm

NAME = 'adaLN_cond__sliding_local_dilated__mixer_channel_mlp__prompt'
STAMP = '--stamp' in sys.argv
FORCE_GLOBAL = '--global' in sys.argv
def opt(name, default):
    for a in sys.argv:
        if a.startswith('--' + name + '='): return int(a.split('=')[1])
    return default

def f2u(x): return struct.unpack('<I', struct.pack('<f', x))[0]
def hx(x): return '0x%08x' % (x & 0xffffffff)

WS_XCC   = 0x1000
WS_MOD   = 0x2000
WS_STAMP = 0x20000
WS_CL    = 0x100000
HRT      = 43*1024
C_H      = 0
C_O      = 0
C_U      = 4*HRT
C_ST     = C_U + 65536
C_FLAG   = C_ST + 16384
CLSZ     = 0x40000
WS_SIZE  = WS_CL + 32*CLSZ

L_A1   = 0
L_B    = 81920
L_MISC = 147456
L_MODT = L_MISC
L_ONES = L_MISC + 6144
L_ST1  = L_MISC + 7168
L_ST2  = L_MISC + 9216
L_P0S  = L_MISC + 11264
LDS_BYTES = 163840

sWAVE = 3
SX, SWQKV, SWO, SW1, SW2, SWS, SOUT, SWMOD = 32, 36, 40, 44, 48, 52, 56, 60
sB1, sB2, sC = 14, 18, 20
sCL, sJ, sTAG, sLOCAL, sR0 = 64, 65, 66, 67, 68
sT0, sT1, sT2 = 69, 70, 71
sLN = 72
sG = 80
sSPIN = 85
sCB = 86
sSOFF, sSLDS = 87, 88
sWOFF, sWLDS = 89, 90
sD0 = 91
STCH = 92
sXO, sSB, sHB, sTILE0 = 96, 97, 98, 99
sP, sIDX, sXCC = 100, 101, 26
sTM = 30

def srd(b): return f's[{b}:{b+3}]'
def vr(b, n=1): return f'v{b}' if n == 1 else f'v[{b}:{b+n-1}]'
def ar(b, n=1): return f'a{b}' if n == 1 else f'a[{b}:{b+n-1}]'
def sp(b): return f's[{b}:{b+1}]'

A = Asm()

_A = A
class Spr:
    q = []
    on = False
    acc = 0
    interval = 100
    busy = False
def cost(l):
    op = l.split()[0]
    if op.startswith('v_mfma'): return 16
    if op.startswith(('v_exp', 'v_rcp', 'v_rsq')): return 8
    if op.startswith((';', '.')) or l.endswith(':'): return 0
    return 4
def A(text):
    _A(text)
    if Spr.on and not Spr.busy:
        Spr.acc += cost(text.strip())
        if Spr.acc >= Spr.interval and Spr.q:
            Spr.acc = 0
            bg_pop(1)
A.label = _A.label
def bg_pop(n):
    Spr.busy = True
    for _ in range(n):
        if Spr.q: Spr.q.pop(0)[1]()
    Spr.busy = False
def bg_on(interval): Spr.on = True; Spr.interval = interval; Spr.acc = 0
def bg_off(): Spr.on = False
def bg_flush(): bg_pop(len(Spr.q))
def bg_add(tag, fn): Spr.q.append((tag, fn))
def bg_until(tag):
    idx = [i for i, (t, _) in enumerate(Spr.q) if t == tag]
    if idx: bg_pop(idx[-1] + 1)

class Ctr:
    def __init__(self, name, mx): self.q = []; self.name = name; self.mx = mx
    def issue(self, tag): self.q.append(tag)
    def need(self, tag):
        idx = [i for i, t in enumerate(self.q) if t == tag]
        if not idx: return None
        n = len(self.q) - 1 - idx[-1]
        n = min(n, self.mx)
        self.q = self.q[len(self.q) - n:] if n else []
        return n
    def clear(self): self.q = []
VM = Ctr('vmcnt', 63); LG = Ctr('lgkmcnt', 15)
def vm(text, tag): VM.issue(tag); A(text)
def lg(text, tag): LG.issue(tag); A(text)
def wait(vtag=None, ltag=None):
    parts = []
    if vtag is not None:
        bg_until(vtag)
        n = VM.need(vtag)
        if n is not None: parts.append(f'vmcnt({n})')
    if ltag is not None:
        n = LG.need(ltag)
        if n is not None: parts.append(f'lgkmcnt({n})')
    if parts: A('s_waitcnt ' + ' '.join(parts))
def wait_all_vm(): A('s_waitcnt vmcnt(0)'); VM.clear()
def wait_all_lg(): A('s_waitcnt lgkmcnt(0)'); LG.clear()

nstamp = [0]
def stamp(name):
    if not STAMP: return
    k = nstamp[0]; nstamp[0] += 1
    assert k < 29
    sys.stderr.write(f'stamp {k} {name}\n')
    A(f's_memtime {sp(sTM)}')
    wait_all_lg()
    A(f'v_writelane_b32 v31, s{sTM}, {k}')

SPIN_MAX = 400000
def spin_guard(loop_label, done_label):
    A(f's_add_u32 s{sSPIN}, s{sSPIN}, 1')
    A(f's_cmp_lt_u32 s{sSPIN}, {SPIN_MAX}')
    A(f's_cbranch_scc1 {loop_label}')
    A(f'{done_label}:')

def dual_store(fn, n, tag):
    l1, l2 = A.label('Lloc'), A.label('Ljoin')
    A(f's_cmp_eq_u32 s{sLOCAL}, 1')
    A(f's_cbranch_scc1 {l1}')
    fn(' sc1')
    A(f's_branch {l2}')
    A(f'{l1}:')
    A('s_nop 1')
    fn('')
    A(f'{l2}:')
    A('s_nop 1')
    if tag is not None:
        for _ in range(n): VM.issue(tag)

vLANE, vOFF16 = 0, 1
vDQ = 2
vTCH = 5
vDW = 6
vAW = 10
vAR = 14
vTRQ = 18
vTRW = 19
vI, vG = 23, 24
vT = 25
vGS = 48; vF = 64; vTB = 96
vFSW, vRR, vC8, vONE = 46, 45, 44, 47

def header():
    print(f"""; Kernarg layout (104 bytes, ptrs only, base s[0:1]): A_x, A_wqkv, A_wo, B_x, B_w1, B_b1, B_w2, B_b2, c, w_mod, d_out, d_debug, d_ws
; @launch grid=(256,1,1) block=(256,1,1) lds={LDS_BYTES}
.amdgcn_target "amdgcn-amd-amdhsa--gfx950"
.text
.globl {NAME}_kernel
.p2align 8
.type {NAME}_kernel,@function
{NAME}_kernel:""")
def footer():
    print(f""".section .rodata,"a"
.p2align 6
.amdhsa_kernel {NAME}_kernel
  .amdhsa_next_free_vgpr 512
  .amdhsa_next_free_sgpr 102
  .amdhsa_accum_offset 256
  .amdhsa_group_segment_fixed_size 0
  .amdhsa_kernarg_size 104
  .amdhsa_user_sgpr_count 2
  .amdhsa_user_sgpr_kernarg_segment_ptr 1
  .amdhsa_system_sgpr_workgroup_id_x 1
.end_amdhsa_kernel""")
def mk_srd(b, ptr, size):
    A(f's_mov_b32 s{b}, s{ptr}')
    A(f's_mov_b32 s{b+1}, s{ptr+1}')
    A(f's_mov_b32 s{b+2}, {hx(size)}')
    A(f's_mov_b32 s{b+3}, 0x00020000')
def red32(a, b):
    A(f'v_permlane32_swap_b32 v{a}, v{b}')
    A(f'v_add_f32 v{a}, v{a}, v{b}')
def red16(a, b):
    A(f'v_permlane16_swap_b32 v{a}, v{b}')
    A(f'v_add_f32 v{a}, v{a}, v{b}')
def ror_add(a, n):
    A(f'v_add_f32_dpp v{a}, v{a}, v{a} row_ror:{n} row_mask:0xf bank_mask:0xf')
def unpack(dst, src):
    A(f'v_lshlrev_b32 v{dst}, 16, v{src}')
    A(f'v_and_b32 v{dst+1}, 0xffff0000, v{src}')
LOG2E = 1.4426950408889634

CODE_LINES_PER_WAVE = 10
A('s_cmp_lt_u32 s2, 256')
A('s_cbranch_scc1 L_go')
A('s_endpgm')
A('L_go:')
A('s_load_dwordx16 s[4:19], s[0:1], 0')
A('s_load_dwordx8 s[20:27], s[0:1], 64')
A('s_load_dwordx2 s[28:29], s[0:1], 96')
A(f's_getpc_b64 {sp(sTM)}')
A(f'v_lshrrev_b32 v{vT}, 6, v0')
A(f'v_and_b32 v{vLANE}, 63, v0')
A(f'v_readfirstlane_b32 s{sWAVE}, v{vT}')
A(f's_lshr_b32 s{sIDX}, s2, 3')
A(f's_and_b32 s{sJ}, s{sIDX}, 7')
A(f's_lshl_b32 s{sT0}, s{sJ}, 2')
A(f's_add_u32 s{sT0}, s{sT0}, s{sWAVE}')
A(f's_mul_i32 s{sT0}, s{sT0}, {CODE_LINES_PER_WAVE*128}')
A(f'v_lshl_add_u32 v{vT}, v{vLANE}, 7, s{sT0}')
A(f's_mov_b64 exec, {hx((1<<CODE_LINES_PER_WAVE)-1)}')
vm(f'global_load_dword v{vTCH}, v{vT}, {sp(sTM)}', 'touch')
A('s_mov_b64 exec, -1')
A(f'v_lshlrev_b32 v{vOFF16}, 4, v{vLANE}')
A(f'v_and_b32 v{vI}, 15, v{vLANE}')
A(f'v_lshrrev_b32 v{vG}, 4, v{vLANE}')
A(f's_and_b32 s{sT0}, s2, 7')
A(f's_lshr_b32 s{sCL}, s{sIDX}, 3')
A(f's_lshl_b32 s{sT2}, s{sT0}, 2')
A(f's_add_u32 s{sCL}, s{sCL}, s{sT2}')
A(f's_lshl_b32 s{sR0}, s{sCL}, 6')
A(f's_mov_b32 s{sSPIN}, 0')
A(f's_min_u32 s{sT2}, s{sIDX}, 23')
A(f's_mul_i32 s{sT0}, s{sT0}, 24')
A(f's_add_u32 s{sP}, s{sT0}, s{sT2}')
A(f'v_lshrrev_b32 v{vT+1}, 1, v{vLANE}')
A(f'v_mul_u32_u24 v{vT+2}, {4*6144}, v{vT+1}')
A(f'v_and_b32 v{vT+3}, 1, v{vLANE}')
A(f'v_lshl_add_u32 v{vT+2}, v{vT+3}, 4, v{vT+2}')
A(f's_lshl_b32 s{sT0}, s{sWAVE}, 8')
A(f'v_lshl_add_u32 v{vT+1}, v{vT+1}, 3, s{sT0}')
A(f's_lshl_b32 s{sT1}, s2, 2')
A(f's_add_u32 s{sT1}, s{sT1}, s{sWAVE}')
A(f's_mul_i32 s{sT1}, s{sT1}, {12*128}')
A(f'v_lshlrev_b32 v{vT+4}, 7, v{vLANE}')
A(f'v_mov_b32 v{vT+3}, 0')
A('s_waitcnt lgkmcnt(0)')
stamp('kernarg')
mk_srd(SWS, 28, WS_SIZE)
mk_srd(SWMOD, 22, 512*3072*2)
mk_srd(SWQKV, 6, 512*1536*2)
vE = 32; vCV = 34; vWM = 64
vm(f'buffer_load_dword v{vE}, v{vT+3}, {srd(SWS)}, 0 offen sc1', 'E')
vm(f'global_load_dwordx2 {vr(vCV,2)}, v{vT+1}, {sp(sC)}', 'E')
A('s_mov_b64 exec, 0xfff')
vm(f'buffer_load_dword v{vTCH}, v{vT+4}, {srd(SWQKV)}, s{sT1} offen', 'touch')
A('s_mov_b64 exec, -1')
A(f's_mul_i32 s{sT0}, s{sWAVE}, {128*6144}')
A(f's_lshl_b32 s{sT1}, s{sP}, 5')
A(f's_add_u32 s{sT0}, s{sT0}, s{sT1}')
for n in range(4):
    vm(f'buffer_load_dwordx4 {vr(vWM+4*n,4)}, v{vT+2}, {srd(SWMOD)}, s{sT0} offen', 'wmod')
    if n < 3: A(f's_add_u32 s{sT0}, s{sT0}, 6144')
mk_srd(SX, 4, 2048*512*2)
sXR = sLN+7
sXR = sXO
A(f's_lshl_b32 s{sXR}, s{sWAVE}, 2')
A(f's_add_u32 s{sXR}, s{sXR}, s{sR0}')
A(f's_sub_u32 s{sXR}, s{sXR}, 16')
sXB = [sLN+0, sLN+1, sLN+2, sLN+3, sLN+4]
sXB = [sG, sG+1, sG+2, sG+3, sG+4]
for rt in range(5):
    A(f's_max_i32 s{sXB[rt]}, s{sXR}, 0')
    A(f's_lshl_b32 s{sXB[rt]}, s{sXB[rt]}, 10')
    A(f's_add_u32 s{sXR}, s{sXR}, 16')
    for q in range(4):
        bg_add(f'x{rt}', lambda rt=rt, q=q: vm(f'buffer_load_dwordx4 {vr(vTB+32*rt+8*q+4,4)}, v{vOFF16}, {srd(SX)}, s{sXB[rt]} offen offset:{q*1024}', f'x{rt}'))
bg_pop(opt('xpre', 6))
mk_srd(SWO, 8, 512*512*2)
mk_srd(SW1, 12, 512*1376*2)
mk_srd(SW2, 16, 1376*512*2)
mk_srd(SOUT, 24, 2048*512*2)
A(f's_lshl_b32 s{sCB}, s{sCL}, 18')
A(f's_add_u32 s{sCB}, s{sCB}, {WS_CL}')
A(f's_getreg_b32 s{sXCC}, hwreg(HW_REG_XCC_ID)')
A(f's_and_b32 s{sXCC}, s{sXCC}, 15')
A(f's_mov_b32 s{STCH}, s8');  A(f's_mov_b32 s{STCH+1}, s9'); A(f's_mov_b32 s{STCH+2}, {512*512*2}')
A(f's_mov_b32 s{STCH+3}, 0x00020000')
A(f's_cmp_eq_u32 s{sWAVE}, 1')
A(f's_cselect_b32 s{STCH}, s12, s{STCH}'); A(f's_cselect_b32 s{STCH+1}, s13, s{STCH+1}'); A(f's_cselect_b32 s{STCH+2}, {512*1376*2}, s{STCH+2}')
A(f's_cmp_eq_u32 s{sWAVE}, 2')
A(f's_cselect_b32 s{STCH}, s16, s{STCH}'); A(f's_cselect_b32 s{STCH+1}, s17, s{STCH+1}'); A(f's_cselect_b32 s{STCH+2}, {512*1376*2}, s{STCH+2}')
A(f's_cmp_eq_u32 s{sWAVE}, 3')
A(f's_cselect_b32 s{STCH+2}, 0, s{STCH+2}')
A(f'v_bfe_u32 v{vRR}, v{vLANE}, 2, 2')
A(f'v_lshrrev_b32 v{vT+1}, 1, v{vRR}')
A(f'v_and_b32 v{vT+2}, 1, v{vG}')
A(f'v_lshl_add_u32 v{vFSW}, v{vT+2}, 1, v{vT+1}')
A(f'v_and_b32 v{vC8}, 3, v{vLANE}')
A(f'v_lshlrev_b32 v{vC8}, 3, v{vC8}')
A(f'v_and_b32 v{vT+3}, 7, v{vLANE}')
A(f'v_lshlrev_b32 v{vT+3}, 4, v{vT+3}')
A(f'v_lshlrev_b32 v{vT+2}, 5, v{vT+2}')
A(f'v_xor_b32 v{vT+3}, v{vT+3}, v{vT+2}')
A(f'v_lshrrev_b32 v{vT+5}, 3, v{vLANE}')
A(f's_and_b32 s{sT0}, s{sWAVE}, 1')
A(f's_lshl_b32 s{sT0}, s{sT0}, 6')
A(f'v_xor_b32 v{vT+1}, s{sT0}, v{vT+3}')
A(f'v_mul_u32_u24 v{vDQ}, 3072, v{vT+5}')
A(f'v_add_u32 v{vDQ}, v{vDQ}, v{vT+1}')
A(f'v_lshl_add_u32 v{vDW}, v{vT+5}, 10, v{vT+3}')
A(f'v_xor_b32 v{vDW+1}, 64, v{vDW}')
A(f'v_add_u32 v{vDW+1}, 7168, v{vDW+1}')
A(f'v_add_u32 v{vDW+2}, {2*7168}, v{vDW}')
A(f'v_add_u32 v{vDW+3}, {2*7168}, v{vDW+1}')
vDWO = 33
A(f'v_lshl_add_u32 v{vDWO}, v{vT+5}, 10, v{vT+1}')
A(f'v_mul_u32_u24 v{vT+2}, 3072, v{vG}')
A(f'v_lshl_add_u32 v{vT+2}, v{vRR}, 7, v{vT+2}')
A(f'v_add_u32 v{vT+2}, v{vT+2}, v{vC8}')
A(f'v_xor_b32 v{vT+1}, s{sWAVE}, v{vFSW}')
A(f'v_lshl_add_u32 v{vTRQ}, v{vT+1}, 5, v{vT+2}')
A(f'v_add_u32 v{vTRQ}, {L_B}, v{vTRQ}')
A(f'v_lshl_add_u32 v{vT+2}, v{vG}, 3, v{vRR}')
A(f'v_lshl_add_u32 v{vT+2}, v{vT+2}, 7, v{vC8}')
A(f'v_add_u32 v{vT+2}, {L_B}, v{vT+2}')
for ct in range(4):
    A(f'v_xor_b32 v{vT+1}, {ct}, v{vFSW}')
    A(f'v_lshl_add_u32 v{vTRW+ct}, v{vT+1}, 5, v{vT+2}')
A(f's_lshl_b32 s{sT0}, s{sWAVE}, 2')
for q in range(4):
    A(f's_add_u32 s{sT1}, s{sT0}, {q}')
    A(f's_lshl_b32 s{sT2}, s{sT1}, 10')
    A(f'v_xor_b32 v{vT}, s{sT1}, v{vLANE}')
    A(f'v_lshl_add_u32 v{vAW+q}, v{vT}, 4, s{sT2}')
A(f'v_lshlrev_b32 v{vT+1}, 10, v{vI}')
for m in range(4):
    A(f'v_add_u32 v{vT}, {4*m}, v{vG}')
    A(f'v_xor_b32 v{vT}, v{vT}, v{vI}')
    A(f'v_lshl_add_u32 v{vAR+m}, v{vT}, 4, v{vT+1}')
A(f's_mul_i32 s{sSOFF}, s{sWAVE}, {8*3072}')
A(f's_lshl_b32 s{sT0}, s{sJ}, 7')
A(f's_add_u32 s{sSOFF}, s{sSOFF}, s{sT0}')
A(f's_mul_i32 s{sSLDS}, s{sWAVE}, 3072')
A(f's_lshl_b32 s{sWOFF}, s{sWAVE}, 13')
A(f's_add_u32 s{sWOFF}, s{sWOFF}, s{sT0}')
A(f's_lshl_b32 s{sWLDS}, s{sWAVE}, 10')

R = 5
def q_lds(n): return L_A1 + n*12288 if n < 6 else L_B + ((n-6) % 5)*12288
def q_enq(n):
    for p in range(3):
        def f(n=n, p=p):
            A(f's_add_u32 m0, s{sSLDS}, {q_lds(n)}')
            A(f's_add_u32 s{sD0}, s{sSOFF}, {n*32*3072}')
            vm(f'buffer_load_dwordx4 v{vDQ}, {srd(SWQKV)}, s{sD0} offen offset:{p*1024} lds', f'q{n}')
        bg_add(f'q{n}', f)
def wo_enq(kk):
    def f():
        A(f's_add_u32 m0, s{sWLDS}, {L_B + kk*4096}')
        A(f's_add_u32 s{sD0}, s{sWOFF}, {kk*32*1024}')
        vm(f'buffer_load_dwordx4 v{vDWO}, {srd(SWO)}, s{sD0} offen lds', 'wo')
    bg_add('wo', f)
vTRQA = 3
A(f'v_subrev_u32 v{vTRQA}, {L_B}, v{vTRQ}')
def q_read(lo, hi):
    for n in range(lo, hi):
        for p in range(3):
            a = 64*p + 4*n
            base, off = (vTRQA, q_lds(n) - L_A1) if n < 6 else (vTRQ, q_lds(n) - L_B)
            off += p*1024
            lg(f'ds_read_b64_tr_b16 {ar(a,2)}, v{base} offset:{off}', f'qr{n}')
            lg(f'ds_read_b64_tr_b16 {ar(a+2,2)}, v{base} offset:{off+512}', f'qr{n}')

wait('E')
A(f'v_readfirstlane_b32 s{sTAG}, v{vE}')
A(f's_mul_i32 s{sTAG}, s{sTAG}, 1664525')
A(f's_add_u32 s{sTAG}, s{sTAG}, 1013904223')
vS = 36
unpack(vS, vCV); unpack(vS+2, vCV+1)
for n in range(4): A(f'v_mul_f32 v{40+n}, {hx(f2u(-LOG2E))}, v{vS+n}')
for n in range(4): A(f'v_exp_f32 v{40+n}, v{40+n}')
for n in range(4): A(f'v_add_f32 v{40+n}, 1.0, v{40+n}')
for n in range(4): A(f'v_rcp_f32 v{40+n}, v{40+n}')
for n in range(4): A(f'v_mul_f32 v{vS+n}, v{vS+n}, v{40+n}')
A(f'v_cvt_pk_bf16_f32 v40, v{vS}, v{vS+1}')
A(f'v_cvt_pk_bf16_f32 v41, v{vS+2}, v{vS+3}')
unpack(vS, 40); unpack(vS+2, 41)
vAC = 48
wait('wmod')
stamp('wmod arrived')
bg_on(opt('ip0', 30))
for n in range(4):
    for d in range(4): unpack(56+2*d, vWM+4*n+d)
    for e in range(8):
        if n == 0: A(f'v_mul_f32 v{vAC+e}, v{vS}, v{56+e}')
        else: A(f'v_fmac_f32 v{vAC+e}, v{vS+n}, v{56+e}')
for e in (0, 2, 4, 6): red32(vAC+e, vAC+e+1)
red16(vAC, vAC+2); red16(vAC+4, vAC+6)
for n in (8, 4, 2):
    ror_add(vAC, n); ror_add(vAC+4, n)
bg_off()
A(f'v_and_b32 v{vT}, 1, v{vG}')
A(f'v_lshlrev_b32 v{vT}, 1, v{vT}')
A(f'v_lshrrev_b32 v{vT+1}, 1, v{vG}')
A(f'v_or_b32 v{vT}, v{vT}, v{vT+1}')
A(f'v_and_b32 v{vT+1}, 1, v{vLANE}')
A(f'v_lshl_add_u32 v{vT}, v{vT+1}, 3, v{vT}')
A(f's_lshl_b32 s{sT0}, s{sWAVE}, 6')
A(f's_add_u32 s{sT0}, s{sT0}, {L_P0S}')
A(f'v_lshl_add_u32 v{vT}, v{vT}, 2, s{sT0}')
A(f'ds_write_b32 v{vT}, v{vAC}')
A(f'ds_write_b32 v{vT}, v{vAC+4} offset:16')
for r in range(4): A(f'v_mov_b32 v{40+r}, 0x3f803f80')
A(f'v_add_u32 v{vT+1}, {L_ONES}, v{vOFF16}')
A(f'ds_write_b128 v{vT+1}, v[40:43]')
wait_all_lg()
A('s_barrier')
lskip = A.label('Lp0skip')
A(f's_cmp_lg_u32 s{sWAVE}, 0')
A(f's_cbranch_scc1 {lskip}')
A(f'v_and_b32 v{vT}, 7, v{vLANE}')
A(f'v_lshlrev_b32 v{vT}, 3, v{vT}')
A(f'v_add_u32 v{vT+1}, {L_P0S}, v{vT}')
for w in range(4): A(f'ds_read_b64 {vr(48+2*w,2)}, v{vT+1} offset:{64*w}')
A('s_waitcnt lgkmcnt(0)')
for e in range(2):
    A(f'v_add_f32 v{48+e}, v{48+e}, v{50+e}')
    A(f'v_add_f32 v{52+e}, v{52+e}, v{54+e}')
for e in range(2): A(f'v_add_f32 v{48+e}, v{48+e}, v{52+e}')
A(f'v_cvt_pk_bf16_f32 v48, v48, v49')
A(f'v_mov_b32 v49, s{sTAG}')
A(f'v_mov_b32 v50, s{sXCC}')
A(f'v_mov_b32 v51, s{sTAG}')
A(f's_lshl_b32 s{sT0}, s{sP}, 6')
A(f's_add_u32 s{sT0}, s{sT0}, {WS_MOD}')
A(f's_mov_b64 exec, 0xff')
lnp = A.label('Lnopub')
A(f's_cmp_ge_u32 s{sIDX}, 24')
A(f's_cbranch_scc1 {lnp}')
A(f'buffer_store_dwordx2 v[48:49], v{vT}, {srd(SWS)}, s{sT0} offen sc1')
A(f'{lnp}:')
A(f's_mov_b64 exec, 1')
A(f's_lshl_b32 s{sT0}, s{sCL}, 3')
A(f's_add_u32 s{sT0}, s{sT0}, s{sJ}')
A(f's_lshl_b32 s{sT0}, s{sT0}, 3')
A(f's_add_u32 s{sT0}, s{sT0}, {WS_XCC}')
A(f'buffer_store_dwordx2 v[50:51], v{vT}, {srd(SWS)}, s{sT0} offen sc1')
A(f's_mov_b64 exec, -1')
A(f'{lskip}:')
stamp('p0 published')

def touch_weights():
    A(f's_mul_i32 s{sD0}, s2, {48*128}')
    A(f'v_lshlrev_b32 v4, 7, v{vLANE}')
    A(f'v_add_u32 v4, s{sD0}, v4')
    A('s_mov_b32 exec_hi, 0xffff')
    vm(f'buffer_load_dword v{vTCH}, v4, {srd(STCH)}, 0 offen', 'touch')
    A('s_mov_b64 exec, -1')
def touch_ws():
    A(f's_lshl_b32 s{sD0}, s{sJ}, 2')
    A(f's_add_u32 s{sD0}, s{sD0}, s{sWAVE}')
    A(f's_lshl_b32 s{sD0}, s{sD0}, 13')
    A(f's_add_u32 s{sD0}, s{sD0}, s{sCB}')
    A(f'v_lshlrev_b32 v4, 7, v{vLANE}')
    vm(f'buffer_load_dword v{vTCH}, v4, {srd(SWS)}, s{sD0} offen sc1', 'touch')
TWPOS = opt('tw', 0); TSPOS = opt('ts', 1)
if TWPOS == 0: bg_add('touch', touch_weights)
if TSPOS == 0: bg_add('touch', touch_ws)
for n in range(11): q_enq(n)

A(f'v_mov_b32 v{vONE}, 0x3f803f80')
bg_on(opt('iln', 70))
for rt in range(5):
    wait(f'x{rt}')
    if opt('st0', 0) and rt in (0, 2, 4): stamp(f'x{rt} arrived')
    B = vTB + 32*rt
    sa = [40, 41, 42, 43]; sq = [36, 37, 38, 39]
    for d in range(4):
        for q in range(4):
            A(f'v_dot2_f32_bf16 v{sa[q]}, v{B+8*q+4+d}, v{vONE}, {"0" if d==0 else "v%d"%sa[q]}')
        for q in range(4):
            A(f'v_dot2_f32_bf16 v{sq[q]}, v{B+8*q+4+d}, v{B+8*q+4+d}, {"0" if d==0 else "v%d"%sq[q]}')
    red32(sa[0], sa[2]); red32(sa[1], sa[3]); red32(sq[0], sq[2]); red32(sq[1], sq[3])
    red16(sa[0], sa[1]); red16(sq[0], sq[1])
    for n in (8, 4, 2, 1):
        ror_add(sa[0], n); ror_add(sq[0], n)
    A(f'v_mul_f32 v{sa[0]}, {hx(f2u(1/512))}, v{sa[0]}')
    A(f'v_mul_f32 v{sq[0]}, {hx(f2u(1/512))}, v{sq[0]}')
    A(f'v_fma_f32 v{sq[0]}, -v{sa[0]}, v{sa[0]}, v{sq[0]}')
    A(f'v_max_f32 v{sq[0]}, 0, v{sq[0]}')
    A(f'v_add_f32 v{sq[0]}, {hx(f2u(1e-5))}, v{sq[0]}')
    A(f'v_rsq_f32 v{sq[0]}, v{sq[0]}')
    A(f'v_mul_f32 v{sa[0]}, v{sa[0]}, v{sq[0]}')
    A(f'v_sub_f32 v{sa[0]}, 0, v{sa[0]}')
    for q in range(4):
        A(f'v_readlane_b32 s{sLN+2*q}, v{sq[0]}, {16*q}')
        A(f'v_readlane_b32 s{sLN+2*q+1}, v{sa[0]}, {16*q}')
    for q in range(4):
        b = B + 8*q
        for d in range(4): unpack(b+2*d, b+4+d)
        for d in range(4):
            A(f'v_pk_fma_f32 {vr(b+2*d,2)}, {vr(b+2*d,2)}, {sp(sLN+2*q)}, {sp(sLN+2*q)} op_sel:[0,0,1] op_sel_hi:[1,0,1]')
bg_off()
bg_until('q5')
stamp('ln1 stats done')

sGM, sGX = sLN, sLN+1
A(f's_mul_i32 s{sGM}, s{sWAVE}, 3072')
A(f's_add_u32 s{sGM}, s{sGM}, {WS_MOD}')
A(f's_lshl_b32 s{sGX}, s{sCL}, 6')
A(f's_add_u32 s{sGX}, s{sGX}, {WS_XCC}')
A(f'v_and_b32 v{vT}, 7, v{vLANE}')
A(f'v_lshlrev_b32 v{vT}, 3, v{vT}')
lp, ld = A.label('Lmod'), A.label('Lmodok')
A(f'{lp}:')
for n in range(3):
    A(f'buffer_load_dwordx4 {vr(vF+4*n,4)}, v{vOFF16}, {srd(SWS)}, s{sGM} offen offset:{n*1024} sc1')
A(f'buffer_load_dwordx2 {vr(vF+12,2)}, v{vT}, {srd(SWS)}, s{sGX} offen sc1')
wait_all_vm()
A(f'v_xor_b32 v{vT+1}, s{sTAG}, v{vF+13}')
for r in (1, 3, 5, 7, 9, 11):
    A(f'v_xor_b32 v{vT+2}, s{sTAG}, v{vF+r}')
    A(f'v_or_b32 v{vT+1}, v{vT+1}, v{vT+2}')
A(f'v_cmp_ne_u32 vcc, 0, v{vT+1}')
A(f's_cbranch_vccz {ld}')
spin_guard(lp, ld)
stamp('mod arrived')
bg_pop(opt('s1', 6))
A('s_barrier')
if opt('st0', 0): stamp('b1')
q_read(0, 6)
A(f'v_cmp_ne_u32 vcc, s{sXCC}, v{vF+12}')
A(f's_cmp_eq_u64 vcc, 0')
A(f's_cselect_b32 s{sLOCAL}, {0 if FORCE_GLOBAL else 1}, 0')
A(f's_and_b32 s{sT0}, s{sWAVE}, 1')
A(f's_cmp_eq_u32 s{sT0}, 1')
A(f's_cselect_b32 s{sT1}, 1.0, 0')
A(f's_cselect_b32 s{sT2}, 0, 1.0')
for n, s_add in ((0, sT1), (2, sT2)):
    for h in range(2):
        src = vF + 4*n + 2*h
        unpack(vT+1, src)
        A(f'v_add_f32 v{vT+1}, s{s_add}, v{vT+1}')
        A(f'v_add_f32 v{vT+2}, s{s_add}, v{vT+2}')
        A(f'v_cvt_pk_bf16_f32 v{src}, v{vT+1}, v{vT+2}')
for n in range(3): A(f'v_mov_b32 v{vF+4*n+1}, v{vF+4*n+2}')
A(f's_mul_i32 s{sT0}, s{sWAVE}, 1536')
A(f's_add_u32 s{sT0}, s{sT0}, {L_MODT}')
A(f'v_lshl_add_u32 v{vT+1}, v{vLANE}, 3, s{sT0}')
for n in range(3): lg(f'ds_write_b64 v{vT+1}, {vr(vF+4*n,2)} offset:{n*512}', 'modw')
wait(None, 'modw')
A('s_barrier')
if opt('st0', 0): stamp('b2')
bg_on(opt('imod', 70))
A(f'v_add_u32 v{vT+1}, {L_MODT}, v{vOFF16}')
lg(f'ds_read_b128 {vr(vF,4)}, v{vT+1}', 'gs')
lg(f'ds_read_b128 {vr(vF+4,4)}, v{vT+1} offset:1024', 'gs')
wait(None, 'gs')
for d in range(4):
    unpack(vGS+2*d, vF+4+d); unpack(vGS+8+2*d, vF+d)
for rt in range(5):
    if rt == 4:
        for q in range(4): A(f'v_add_u32 v{vAW+q}, 0x10000, v{vAW+q}')
    for q in range(4):
        b = vTB + 32*rt + 8*q
        for d in range(4):
            A(f'v_pk_fma_f32 {vr(b+2*d,2)}, {vr(b+2*d,2)}, {vr(vGS+2*d,2)}, {vr(vGS+8+2*d,2)}')
        for d in range(4):
            A(f'v_cvt_pk_bf16_f32 v{b+d}, v{b+2*d}, v{b+2*d+1}')
        lg(f'ds_write_b128 v{vAW+q}, {vr(b,4)} offset:{(rt%4)*16384}', 'a1w')
bg_off()
if opt('st0', 0): stamp('modulated')
wait('q8', 'a1w')
A('s_barrier')
q_read(6, 9)
stamp('A1 written')

FILL = []
def fill_add(*lines): FILL.append(list(lines))
def fill_pop(k):
    n = 0
    Spr.busy = True
    while FILL and n < k:
        it = FILL.pop(0)
        for l in it: A(l)
        n += len(it)
    Spr.busy = False
def fill_flush(): fill_pop(1 << 30)

vD1 = 52
vTR1 = 10
vXO = 13
vM = 48
vPO, vPH, vFLO, vFLV = 40, 41, 42, 43
vZ, vMC, vO8, vXA, vUA = 55, 56, 57, 58, 59
vLAST = 60
fT = 61
sS1OFF = sP
sOST, sFL = 16, 17
def setup_fillers():
    t0, t1, t2, t3 = fT, fT+1, fT+2, 30
    F = fill_add
    for n in range(3):
        F(f'v_add_u32 v{t0}, {64*n}, v{vLANE}')
        F(f'v_mul_u32_u24 v{t1}, 2731, v{t0}')
        F(f'v_lshrrev_b32 v{t1}, 16, v{t1}')
        F(f'v_mul_u32_u24 v{t2}, 24, v{t1}')
        F(f'v_sub_u32 v{t2}, v{t0}, v{t2}')
        F(f'v_lshlrev_b32 v{t2}, 4, v{t2}')
        F(f'v_bfe_u32 v{t3}, v{t1}, 1, 2')
        F(f'v_lshlrev_b32 v{t3}, 5, v{t3}')
        F(f'v_xor_b32 v{t2}, v{t2}, v{t3}')
        F(f'v_mul_u32_u24 v{t1}, 2752, v{t1}')
        F(f'v_add_u32 v{vD1+n}, v{t1}, v{t2}')
        if n: F(f'v_subrev_u32 v{vD1+n}, {n*1024}, v{vD1+n}')
    F(f's_mul_i32 s{sTILE0}, s{sJ}, 12')
    F(f's_min_u32 s{sTILE0}, s{sTILE0}, 74')
    F(f's_mul_i32 s{sS1OFF}, s{sWAVE}, {8*2752}')
    F(f's_lshl_b32 s{sT0}, s{sTILE0}, 5')
    F(f's_add_u32 s{sS1OFF}, s{sS1OFF}, s{sT0}')
    F(f's_mul_i32 s{sT0}, s{sWAVE}, 3')
    F(f'v_lshl_add_u32 v{t0}, v{vG}, 2, v{vRR}')
    F(f'v_mul_u32_u24 v{t0}, 384, v{t0}')
    F(f'v_add_u32 v{t0}, v{t0}, v{vC8}')
    for tt in range(3):
        F(f'v_xor_b32 v{t1}, s{sT0}, v{vFSW}')
        F(f'v_lshl_add_u32 v{vTR1+tt}, v{t1}, 5, v{t0}')
        if tt < 2: F(f's_add_u32 s{sT0}, s{sT0}, 1')
    F(f'v_lshlrev_b32 v{t0}, 2, v{vG}')
    for r in range(4):
        F(f'v_add_u32 v{t1}, {r}, v{t0}')
        F(f'v_cmp_le_u32 {sp(4+2*r)}, v{t1}, v{vI}')
    F(f'v_and_b32 v{t1}, 1, v{vI}')
    F(f'v_cmp_eq_u32 {sp(12)}, 1, v{t1}')
    F(f'v_mov_b32 v{t2}, 0xffff')
    F(f'v_mov_b32 v{t3}, 0xffff0000')
    F(f'v_cndmask_b32 v{t2}, v{t2}, v{t3}, {sp(12)}')
    F(f'v_add_u32 v{t1}, v{t1}, v{t0}')
    for k in range(2):
        F(f'v_cmp_le_u32 vcc, v{t1}, v{vI}')
        F(f'v_cndmask_b32 v{vM+2+k}, 0, v{t2}, vcc')
        F(f'v_xor_b32 v{vM+k}, v{vM+2+k}, v{t2}')
        if k == 0: F(f'v_add_u32 v{t1}, 2, v{t1}')
    F(f'v_lshrrev_b32 v{t0}, 1, v{vG}')
    F(f'v_lshlrev_b32 v{t0}, 8, v{t0}')
    F(f'v_lshl_add_u32 v{t0}, v{vI}, 4, v{t0}')
    F(f'v_and_b32 v{t1}, 1, v{vG}')
    F(f'v_lshl_add_u32 v{vPO}, v{t1}, 14, v{t0}')
    F(f'v_mul_u32_u24 v{t1}, {HRT}, v{t1}')
    F(f'v_add_u32 v{vPH}, v{t1}, v{t0}')
    F(f's_lshl_b32 s{sOST}, s{sJ}, 11')
    F(f's_lshl_b32 s{sT1}, s{sWAVE}, 9')
    F(f's_add_u32 s{sOST}, s{sOST}, s{sT1}')
    F(f's_add_u32 s{sOST}, s{sOST}, s{sCB}')
    F(f's_add_u32 s{sFL}, s{sCB}, {C_FLAG}')
    F(f'v_and_b32 v{vFLO}, 7, v{vLANE}')
    F(f'v_lshlrev_b32 v{vFLO}, 2, v{vFLO}')
    F(f's_lshl_b32 s{sT0}, s{sJ}, 2')
    F(f'v_mov_b32 v{vZ}, s{sT0}')
    F(f'v_lshlrev_b32 v{vXO}, 10, v{vI}')
    F(f'v_lshl_add_u32 v{vXO}, v{vG}, 3, v{vXO}')
    F(f's_lshl_b32 s{sXO}, s{sWAVE}, 4')
    F(f's_add_u32 s{sXO}, s{sXO}, s{sR0}')
    F(f's_lshl_b32 s{sXO}, s{sXO}, 10')
    F(f's_lshl_b32 s{sT0}, s{sJ}, 7')
    F(f's_add_u32 s{sXO}, s{sXO}, s{sT0}')
    F(f's_add_u32 s{sT0}, s{sT0}, {L_MODT}')
    F(f'v_lshl_add_u32 v{vMC}, v{vG}, 3, s{sT0}')
    F(f'v_lshlrev_b32 v{vO8}, 3, v{vLANE}')
    F(f's_lshl_b32 s{sSB}, s{sWAVE}, 12')
    F(f's_add_u32 s{sSB}, s{sSB}, s{sCB}')
    F(f's_add_u32 s{sSB}, s{sSB}, {C_ST}')
    F(f'v_lshrrev_b32 v{t0}, 2, v{vI}')
    F(f'v_mov_b32 v{vXA}, {L_ONES}')
    F(f'v_mov_b32 v{t2}, {L_MODT+4*1024}')
    F(f'v_cmp_eq_u32 vcc, 0, v{t0}')
    F(f'v_cndmask_b32 v{vXA}, v{vXA}, v{t2}, vcc')
    F(f'v_mov_b32 v{t2}, {L_MODT+3*1024}')
    F(f'v_cmp_eq_u32 vcc, 1, v{t0}')
    F(f'v_cndmask_b32 v{vXA}, v{vXA}, v{t2}, vcc')
    F(f'v_lshl_add_u32 v{vXA}, v{vG}, 3, v{vXA}')
    F(f'v_add_u32 v{vUA}, {L_B}, v{vOFF16}')
    F(f's_mul_i32 s{sHB}, s{sWAVE}, 3')
    F(f's_add_u32 s{sHB}, s{sHB}, s{sTILE0}')
    F(f's_lshl_b32 s{sHB}, s{sHB}, 9')
    F(f's_add_u32 s{sHB}, s{sHB}, s{sCB}')
    F(f's_cmp_eq_u32 s{sWAVE}, 3', f's_cselect_b32 s{sT0}, 0x7ffffff0, 0', f'v_or_b32 v{vLAST}, s{sT0}, v{vOFF16}')
setup_fillers()

def accK(rt): return vTB + 32*rt
def accV(rt): return vTB + 32*rt + 4
def accQ(rt): return vTB + 32*rt + 8
vAR4 = 36
for m in range(4): A(f'v_add_u32 v{vAR4+m}, 0x10000, v{vAR+m}')
seq = [(ks, rt) for ks in range(16) for rt in range(5)]
NB = 8
def a1_read(n):
    ks, rt = seq[n]
    base = vAR4 if rt == 4 else vAR
    lg(f'ds_read_b128 {vr(vF+4*(n%NB),4)}, v{base+(ks&3)} offset:{(rt%4)*16384 + (ks>>2)*256}', f'af{n}')
for n in range(NB-1): a1_read(n)
bg_on(opt('ig1', 90))
B4, B5, B6, B7, B8 = opt('b4', 1), opt('b5', 2), opt('b6', 8), opt('b7', 11), opt('b8', 12)
for n, (ks, rt) in enumerate(seq):
    if rt == 0:
        if ks == B4:
            wait('q10', 'qr8'); A('s_barrier'); q_read(9, 11)
            for m in (11, 12, 13): q_enq(m)
        if ks == B5:
            wait(None, 'qr10'); A('s_barrier')
            for m in (14, 15): q_enq(m)
            wo_enq(15)
            if TWPOS == 1: bg_add('touch', touch_weights)
            if TSPOS == 1: bg_add('touch', touch_ws)
        if ks == B6:
            wait('q13'); A('s_barrier'); q_read(11, 14)
        if ks == B7:
            wait('q15', 'qr13'); A('s_barrier'); q_read(14, 16)
            for kk in range(9): wo_enq(kk)
        if ks == B8:
            wait(None, 'qr15'); A('s_barrier')
            for kk in range(9, 15): wo_enq(kk)
    if n + NB - 1 < len(seq): a1_read(n + NB - 1)
    if rt == 0: wait(None, f'qr{ks}')
    wait(None, f'af{n}')
    f = vr(vF+4*(n%NB), 4)
    c = lambda r: '0' if ks == 0 else vr(r, 4)
    A(f'v_mfma_f32_16x16x32_bf16 {vr(accK(rt),4)}, {ar(64+4*ks,4)}, {f}, {c(accK(rt))}')
    fill_pop(1)
    A(f'v_mfma_f32_16x16x32_bf16 {vr(accV(rt),4)}, {f}, {ar(128+4*ks,4)}, {c(accV(rt))}')
    fill_pop(1)
    if rt > 0:
        A(f'v_mfma_f32_16x16x32_bf16 {vr(accQ(rt),4)}, {ar(4*ks,4)}, {f}, {c(accQ(rt))}')
fill_flush()
stamp('P1 gemm done')
A('s_barrier')

w1_enqd = [0]; w1_read = [0]; w1_free = [R]
def w1_enq(k):
    for _ in range(k):
        n = w1_enqd[0]
        if n >= 16: return
        assert n < w1_free[0], (n, w1_free[0])
        for p in range(3):
            def f(n=n, p=p):
                A(f's_add_u32 m0, s{sSLDS}, {L_A1 + (n % R)*12288}')
                A(f's_add_u32 s{sD0}, s{sS1OFF}, {n*32*2752}')
                vm(f'buffer_load_dwordx4 v{vD1+p}, {srd(SW1)}, s{sD0} offen offset:{p*1024} lds', f'w{n}')
            bg_add(f'w{n}', f)
        w1_enqd[0] += 1
def w1_readout(upto, barrier=True):
    lo = w1_read[0]
    assert upto > lo or not barrier
    if upto <= lo: return
    wait(f'w{upto-1}', f'wr{lo-1}')
    if barrier: A('s_barrier')
    w1_free[0] = lo + R
    for n in range(lo, upto):
        for tt in range(3):
            a = 64*tt + 4*n
            off = (n % R)*12288
            lg(f'ds_read_b64_tr_b16 {ar(a,2)}, v{vTR1+tt} offset:{off}', f'wr{n}')
            lg(f'ds_read_b64_tr_b16 {ar(a+2,2)}, v{vTR1+tt} offset:{off+6144}', f'wr{n}')
    w1_read[0] = upto
W1A = opt('w1a', 1)
w1_enq(W1A)
vXR = 248
for ct in range(4):
    bg_add('xr', lambda ct=ct: vm(f'buffer_load_dwordx2 {vr(vXR+2*ct,2)}, v{vXO}, {srd(SX)}, s{sXO} offen offset:{ct*32}', 'xr'))
bg_on(opt('iatt', 40))

vKF, vVF, vQF, vON = 64, 74, 84, 92
for t in range(5):
    for h in range(2):
        A(f'v_cvt_pk_bf16_f32 v{vKF+2*t+h}, v{accK(t)+2*h}, v{accK(t)+2*h+1}')
        if t: A(f'v_cvt_pk_bf16_f32 v{vQF+2*(t-1)+h}, v{accQ(t)+2*h}, v{accQ(t)+2*h+1}')
def tmp(t, k): return vTB + 32*t + 8 + k if k < 4 else vTB + 32*t + 12 + (k - 4)
T = range(1, 5)
for t in T:
    A(f'v_mfma_f32_16x16x16_bf16 {vr(tmp(t,0),4)}, {vr(vKF+2*(t-1),2)}, {vr(vQF+2*(t-1),2)}, 0')
    A(f'v_mfma_f32_16x16x16_bf16 {vr(tmp(t,4),4)}, {vr(vKF+2*t,2)}, {vr(vQF+2*(t-1),2)}, 0')
for t in range(5):
    for h in range(2):
        A(f'v_cvt_pk_bf16_f32 v{vVF+2*t+h}, v{accV(t)+2*h}, v{accV(t)+2*h+1}')
for r in range(4): A(f'v_mov_b32 v{vON+r}, 0x3f803f80')
bg_off()
lm = A.label('Lmask')
A(f's_cmp_lg_u32 s{sCL}, 0')
A(f's_cbranch_scc1 {lm}')
for r in range(4): A(f'v_mov_b32 v{tmp(1,r)}, {hx(f2u(-4e9))}')
A(f'{lm}:')
bg_on(opt('iatt', 40))
for r in range(4):
    for t in T: A(f'v_cndmask_b32 v{tmp(t,r)}, v{tmp(t,r)}, v{tmp(t,4+r)}, {sp(4+2*r)}')
for t in T:
    A(f'v_cndmask_b32 v{tmp(t,0)}, v{tmp(t,0)}, v{tmp(t,1)}, {sp(12)}')
    A(f'v_cndmask_b32 v{tmp(t,1)}, v{tmp(t,2)}, v{tmp(t,3)}, {sp(12)}')
for t in T: A(f'v_max_f32 v{tmp(t,2)}, v{tmp(t,0)}, v{tmp(t,1)}')
for op in ('v_permlane16_swap_b32', 'v_permlane32_swap_b32'):
    for t in T: A(f'v_mov_b32 v{tmp(t,3)}, v{tmp(t,2)}')
    for t in T: A(f'{op} v{tmp(t,2)}, v{tmp(t,3)}')
    for t in T: A(f'v_max_f32 v{tmp(t,2)}, v{tmp(t,2)}, v{tmp(t,3)}')
CS = 0.25 * LOG2E
A(f's_mov_b32 s{sT0}, {hx(f2u(CS))}')
for t in T: A(f'v_mul_f32 v{tmp(t,2)}, {hx(f2u(-CS))}, v{tmp(t,2)}')
for t in T:
    A(f'v_fma_f32 v{tmp(t,0)}, v{tmp(t,0)}, s{sT0}, v{tmp(t,2)}')
    A(f'v_fma_f32 v{tmp(t,1)}, v{tmp(t,1)}, s{sT0}, v{tmp(t,2)}')
for t in T:
    A(f'v_exp_f32 v{tmp(t,0)}, v{tmp(t,0)}')
    A(f'v_exp_f32 v{tmp(t,1)}, v{tmp(t,1)}')
for t in T:
    A(f'v_cvt_pk_bf16_f32 v{tmp(t,0)}, v{tmp(t,0)}, v{tmp(t,0)}')
    A(f'v_cvt_pk_bf16_f32 v{tmp(t,1)}, v{tmp(t,1)}, v{tmp(t,1)}')
for t in T:
    A(f'v_and_b32 v{tmp(t,4)}, v{tmp(t,0)}, v{vM}')
    A(f'v_and_b32 v{tmp(t,5)}, v{tmp(t,1)}, v{vM+1}')
    A(f'v_and_b32 v{tmp(t,6)}, v{tmp(t,0)}, v{vM+2}')
    A(f'v_and_b32 v{tmp(t,7)}, v{tmp(t,1)}, v{vM+3}')
bg_flush(); bg_off()
for t in T:
    A(f'v_mfma_f32_16x16x32_bf16 {vr(tmp(t,12),4)}, {vr(vON,4)}, {vr(tmp(t,4),4)}, 0')
    A(f'v_mfma_f32_16x16x32_bf16 {vr(tmp(t,8),4)}, {vr(vVF+2*(t-1),4)}, {vr(tmp(t,4),4)}, 0')
A(f's_add_u32 s{sT1}, s{sOST}, 32768')
for t in T: A(f'v_rcp_f32 v{tmp(t,12)}, v{tmp(t,12)}')
for t in T:
    for r in range(4): A(f'v_mul_f32 v{tmp(t,8+r)}, v{tmp(t,8+r)}, v{tmp(t,12)}')
for p in range(2):
    ta, tb = 1+2*p, 2+2*p
    o = tmp(ta, 0)
    A(f'v_cvt_pk_bf16_f32 v{o}, v{tmp(ta,8)}, v{tmp(ta,9)}')
    A(f'v_cvt_pk_bf16_f32 v{o+1}, v{tmp(ta,10)}, v{tmp(ta,11)}')
    A(f'v_cvt_pk_bf16_f32 v{o+2}, v{tmp(tb,8)}, v{tmp(tb,9)}')
    A(f'v_cvt_pk_bf16_f32 v{o+3}, v{tmp(tb,10)}, v{tmp(tb,11)}')
for p in range(2):
    o = tmp(1+2*p, 0)
    A(f'v_permlane16_swap_b32 v{o}, v{o+2}')
    A(f'v_permlane16_swap_b32 v{o+1}, v{o+3}')
def st_o(sc):
    A(f'buffer_store_dwordx4 {vr(tmp(1,0),4)}, v{vPO}, {srd(SWS)}, s{sOST} offen{sc}')
    A(f'buffer_store_dwordx4 {vr(tmp(3,0),4)}, v{vPO}, {srd(SWS)}, s{sT1} offen{sc}')
dual_store(st_o, 2, 'st')
stamp('attn done')

def publish(h, ltag=None):
    wait('st', ltag)
    A('s_barrier')
    l = A.label('Lpub')
    A(f's_cmp_lg_u32 s{sWAVE}, 0')
    A(f's_cbranch_scc1 {l}')
    A(f's_add_u32 s{sT1}, s{sTAG}, {h+1}')
    A(f'v_mov_b32 v{vFLV}, s{sT1}')
    A('s_mov_b64 exec, 1')
    dual_store(lambda sc: A(f'buffer_store_dword v{vFLV}, v{vZ}, {srd(SWS)}, s{sFL} offen offset:{32*h}{sc}'), 1, None)
    A('s_mov_b64 exec, -1')
    A(f'{l}:')
def await_(h):
    A(f's_add_u32 s{sT1}, s{sTAG}, {h+1}')
    lp, ld = A.label('Lw'), A.label('Lwok')
    A(f'{lp}:')
    A(f'buffer_load_dword v{vFLV}, v{vFLO}, {srd(SWS)}, s{sFL} offen offset:{32*h} sc1')
    wait_all_vm()
    A(f'v_cmp_ne_u32 vcc, s{sT1}, v{vFLV}')
    A(f's_cbranch_vccz {ld}')
    spin_guard(lp, ld)

w1_enq(opt('w1b0', 1)); bg_flush()
publish(0)
stamp('o published')
w1_enq(opt('w1b', 2))
bg_on(opt('ih0', 40))
w1_readout(W1A, barrier=False)
vGA, vGB, vSB, vX1, vOF, vAC2 = 96, 112, 128, 144, 160, 224
def load_cols(vec, tmpb):
    for ct in range(4): lg(f'ds_read_b64 {vr(tmpb+2*ct,2)}, v{vMC} offset:{vec*1024+ct*32}', f'c{vec}')
def unpack_cols(dst, vec, tmpb):
    wait(None, f'c{vec}')
    for d in range(8): unpack(dst+2*d, tmpb+d)
load_cols(2, vF); load_cols(4, vF+8); load_cols(3, vF+16)
for d in range(8): unpack(vX1+2*d, vXR+d)
unpack_cols(vGA, 2, vF); unpack_cols(vGB, 4, vF+8); unpack_cols(vSB, 3, vF+16)
bg_flush(); bg_off()

def wo_read(ks):
    b = vF + 16*(ks & 1)
    for ct in range(4):
        lg(f'ds_read_b64_tr_b16 {vr(b+4*ct,2)}, v{vTRW+ct} offset:{ks*4096}', f'wo{ks}')
        lg(f'ds_read_b64_tr_b16 {vr(b+4*ct+2,2)}, v{vTRW+ct} offset:{ks*4096+512}', f'wo{ks}')
wo_read(0)
sQ = [sLN, sLN+1, sLN+2, sLN+3]
A(f's_lshl_b32 s{sQ[0]}, s{sWAVE}, 14')
A(f's_add_u32 s{sQ[0]}, s{sQ[0]}, s{sCB}')
for k in range(1, 4): A(f's_add_u32 s{sQ[k]}, s{sQ[0]}, {4096*k}')
await_(0)
stamp('hop0 seen')
def o_load(ks):
    vm(f'buffer_load_dwordx4 {vr(vOF+4*ks,4)}, v{vOFF16}, {srd(SWS)}, s{sQ[ks>>2]} offen offset:{(ks&3)*1024} sc1', f'o{ks}')
LO = opt('lo', 8)
for ks in range(LO): o_load(ks)
w1_readout(w1_enqd[0])
for ks in range(16):
    if ks + LO < 16: o_load(ks + LO)
    if ks + LO == 16:
        w1_enq(opt('w1c0', 2)); bg_on(opt('ip2', 60))
    if ks < 15: wo_read(ks+1)
    wait(f'o{ks}', f'wo{ks}')
    b = vF + 16*(ks & 1)
    for ct in range(4):
        A(f'v_mfma_f32_16x16x32_bf16 {vr(vAC2+4*ct,4)}, {vr(b+4*ct,4)}, {vr(vOF+4*ks,4)}, {"0" if ks==0 else vr(vAC2+4*ct,4)}')
bg_flush(); bg_off()
stamp('P2 gemm done')
vU = 160
A(f's_lshl_b32 s{sT1}, s{sJ}, 11')
A(f's_add_u32 s{sT0}, s{sQ[0]}, s{sT1}')
A(f's_add_u32 s{sT0}, s{sT0}, {C_U}')
for e in range(16): A(f'v_fmac_f32 v{vX1+e}, v{vGA+e}, v{vAC2+e}')
for d in range(8): A(f'v_cvt_pk_bf16_f32 v{184+d}, v{vX1+2*d}, v{vX1+2*d+1}')
for d in range(8): unpack(vX1+2*d, 184+d)
for d in range(8): A(f'v_pk_mul_f32 {vr(vU+2*d,2)}, {vr(vX1+2*d,2)}, {vr(vGB+2*d,2)}')
for d in range(8): A(f'v_cvt_pk_bf16_f32 v{176+d}, v{vU+2*d}, v{vU+2*d+1}')
def st_u(sc):
    for m in range(2): A(f'buffer_store_dwordx4 {vr(176+4*m,4)}, v{vOFF16}, {srd(SWS)}, s{sT0} offen offset:{m*1024}{sc}')
dual_store(st_u, 2, 'st')
S = [192, 193, 194, 195, 196, 197, 198, 199]
for d in range(8):
    c = lambda r: '0' if d == 0 else f'v{r}'
    A(f'v_dot2_f32_bf16 v{S[0]}, v{184+d}, v{vONE}, {c(S[0])}')
    A(f'v_dot2_f32_bf16 v{S[1]}, v{184+d}, v{184+d}, {c(S[1])}')
    A(f'v_dot2_f32_bf16 v{S[2]}, v{176+d}, v{vONE}, {c(S[2])}')
    A(f'v_dot2_f32_bf16 v{S[3]}, v{176+d}, v{176+d}, {c(S[3])}')
for d in range(8):
    if d == 0:
        A(f'v_pk_mul_f32 {vr(S[4],2)}, {vr(vU,2)}, {vr(vGB,2)}')
        A(f'v_pk_mul_f32 {vr(S[6],2)}, {vr(vU,2)}, {vr(vSB,2)}')
    else:
        A(f'v_pk_fma_f32 {vr(S[4],2)}, {vr(vU+2*d,2)}, {vr(vGB+2*d,2)}, {vr(S[4],2)}')
        A(f'v_pk_fma_f32 {vr(S[6],2)}, {vr(vU+2*d,2)}, {vr(vSB+2*d,2)}, {vr(S[6],2)}')
A(f'v_add_f32 v{S[4]}, v{S[4]}, v{S[5]}')
A(f'v_add_f32 v{S[5]}, v{S[6]}, v{S[7]}')
red32(S[0], S[2]); red32(S[1], S[3]); red32(S[4], S[5]); red16(S[0], S[1])
A(f'v_mov_b32 v{S[1]}, v{S[4]}'); red16(S[1], S[4])
A(f's_lshl_b32 s{sT0}, s{sJ}, 9')
A(f's_add_u32 s{sT0}, s{sT0}, s{sSB}')
dual_store(lambda sc: A(f'buffer_store_dwordx2 {vr(S[0],2)}, v{vO8}, {srd(SWS)}, s{sT0} offen{sc}'), 1, 'st')
landed = w1_enqd[0]
publish(1, f'wr{w1_read[0]-1}')
stamp('P2 published')
w1_readout(landed, barrier=False)
w1_enq(opt('w1c', 3))
vBI = 96
A(f's_mul_i32 s{sT0}, s{sWAVE}, 3')
A(f's_add_u32 s{sT0}, s{sT0}, s{sTILE0}')
A(f's_lshl_b32 s{sT0}, s{sT0}, 5')
A(f'v_lshl_add_u32 v{vT}, v{vI}, 1, s{sT0}')
for tt in range(3): vm(f'global_load_ushort v{vBI+tt}, v{vT}, {sp(sB1)} offset:{32*tt}', 'b1')
bg_on(opt('ih1', 30))
A(f'v_add_u32 v{vT+1}, {L_MODT}, v{vOFF16}')
lg(f'ds_read_b128 {vr(vF,4)}, v{vT+1} offset:{4*1024}', 'gsum')
lg(f'ds_read_b128 {vr(vF+4,4)}, v{vT+1} offset:{3*1024}', 'gsum')
wait(None, 'gsum')
q5 = [vF+8, vF+9, vF+10, vF+11, vF+12]
for d in range(4):
    c = lambda r: '0' if d == 0 else f'v{r}'
    A(f'v_dot2_f32_bf16 v{q5[0]}, v{vF+d}, v{vONE}, {c(q5[0])}')
    A(f'v_dot2_f32_bf16 v{q5[1]}, v{vF+d}, v{vF+d}, {c(q5[1])}')
    A(f'v_dot2_f32_bf16 v{q5[2]}, v{vF+4+d}, v{vONE}, {c(q5[2])}')
    A(f'v_dot2_f32_bf16 v{q5[3]}, v{vF+4+d}, v{vF+4+d}, {c(q5[3])}')
    A(f'v_dot2_f32_bf16 v{q5[4]}, v{vF+d}, v{vF+4+d}, {c(q5[4])}')
red32(q5[0], q5[2]); red32(q5[1], q5[3]); red16(q5[0], q5[1])
A(f'v_mov_b32 v{q5[1]}, v{q5[4]}'); red32(q5[4], q5[1])
A(f'v_mov_b32 v{q5[1]}, v{q5[4]}'); red16(q5[4], q5[1])
for n in (8, 4, 2, 1):
    ror_add(q5[0], n); ror_add(q5[4], n)
A(f'v_mul_f32 v{q5[0]}, {hx(f2u(1/512))}, v{q5[0]}')
A(f'v_mul_f32 v{q5[4]}, {hx(f2u(1/512))}, v{q5[4]}')
for k in range(4): A(f'v_readlane_b32 s{sG+k}, v{q5[0]}, {16*k}')
A(f'v_readlane_b32 s{sG+4}, v{q5[4]}, 0')
bg_flush(); bg_off()
A(f's_mul_i32 s{sWOFF}, s{sWAVE}, {11*32*1024}')
A(f's_lshl_b32 s{sT0}, s{sJ}, 7')
A(f's_add_u32 s{sWOFF}, s{sWOFF}, s{sT0}')
A(f's_mul_i32 s{sWLDS}, s{sWAVE}, 20480')
sW2L = sLN+6
A(f's_cmp_eq_u32 s{sWAVE}, 3')
A(f's_cselect_b32 s{sW2L}, 0, {32*1024}')
A(f's_add_u32 s{sW2L}, s{sW2L}, s{sWOFF}')
A(f's_add_u32 s{sW2L}, s{sW2L}, {9*32*1024}')
vTR2 = 14
A(f's_sub_u32 s{sT0}, s{sWLDS}, {L_B - L_A1}')
for ct in range(4): A(f'v_add_u32 v{vTR2+ct}, s{sT0}, v{vTRW+ct}')
for k in range(4): A(f's_add_u32 s{sQ[k]}, s{sQ[k]}, {C_U}')
sUL = sLN+4
A(f's_lshl_b32 s{sUL}, s{sWAVE}, 14')
A(f's_add_u32 s{sUL}, s{sUL}, {L_B}')

await_(1)
stamp('hop1 seen')
vSTT = 208
for k in range(4):
    for j in range(4):
        def f(k=k, j=j):
            A(f's_add_u32 m0, s{sUL}, {k*4096}')
            vm(f'buffer_load_dwordx4 v{vOFF16}, {srd(SWS)}, s{sQ[k]} offen offset:{j*1024} sc1 lds', f'u{k}')
        bg_add(f'u{k}', f)
for p in range(8):
    bg_add('stt', lambda p=p: vm(f'buffer_load_dwordx2 {vr(vSTT+2*p,2)}, v{vO8}, {srd(SWS)}, s{sSB} offen offset:{p*512} sc1', 'stt'))
bg_pop(opt('upre', 8))
vCO = 100; vCB = 112; vAC3 = 160
seq = [(ks, rt) for ks in range(16) for rt in range(5)]
def u_read(n):
    ks, rt = seq[n]
    d = vF+4*(n%NB)
    if rt < 4:
        lg(f'ds_read_b128 {vr(d,4)}, v{vUA} offset:{rt*16384+ks*1024}', f'uf{n}')
    else:
        lg(f'ds_read_b64 {vr(d,2)}, v{vXA} offset:{ks*64}', f'uf{n}')
        lg(f'ds_read_b64 {vr(d+2,2)}, v{vXA} offset:{ks*64+32}', f'uf{n}')
def stats_a():
    wait('stt')
    for k in range(1, 8):
        A(f'v_pk_add_f32 {vr(vSTT,2)}, {vr(vSTT,2)}, {vr(vSTT+2*k,2)}')
    A(f's_lshl_b32 s{sT0}, s{sWAVE}, 9')
    A(f's_add_u32 s{sT0}, s{sT0}, {L_ST1}')
    A(f'v_lshl_add_u32 v{vT+4}, v{vI}, 5, s{sT0}')
    A(f'v_lshl_add_u32 v{vT+5}, v{vG}, 2, v{vT+4}')
    lg(f'ds_write_b32 v{vT+5}, v{vSTT}', 'sw')
    lg(f'ds_write_b32 v{vT+5}, v{vSTT+1} offset:16', 'sw')
    lg(f'ds_read_b128 {vr(vSTT,4)}, v{vT+4}', 'sr')
    lg(f'ds_read_b128 {vr(vSTT+4,4)}, v{vT+4} offset:16', 'sr')
def stats_b_lines():
    L = []
    A_ = L.append
    b = vSTT
    X1, X2, X3, X4, X5, X6 = b, b+1, b+2, b+3, b+4, b+6
    for r in (X1, X2, X3, X4, X5, X6): A_(f'v_mul_f32 v{r}, {hx(f2u(1/512))}, v{r}')
    a_, b_, c_, d_, e_ = b+8, b+9, b+10, b+11, b+12
    A_(f'v_fma_f32 v{X2}, -v{X1}, v{X1}, v{X2}')
    A_(f'v_max_f32 v{X2}, 0, v{X2}')
    A_(f'v_add_f32 v{X2}, {hx(f2u(1e-5))}, v{X2}')
    A_(f'v_rsq_f32 v{a_}, v{X2}')
    A_(f'v_fma_f32 v{X3}, -v{X1}, s{sG}, v{X3}')
    A_(f'v_mul_f32 v{X2}, v{X2}, v{a_}')
    A_(f'v_fma_f32 v{b_}, v{X3}, v{a_}, s{sG+2}')
    A_(f'v_mul_f32 v{c_}, s{sG+1}, v{X1}')
    A_(f'v_fma_f32 v{c_}, -2.0, v{X5}, v{c_}')
    A_(f'v_fma_f32 v{X4}, v{X1}, v{c_}, v{X4}')
    A_(f'v_fma_f32 v{X6}, -v{X1}, s{sG+4}, v{X6}')
    A_(f'v_add_f32 v{X6}, v{X6}, v{X6}')
    A_(f'v_fma_f32 v{X4}, v{X4}, v{a_}, v{X6}')
    A_(f'v_fma_f32 v{X4}, v{X4}, v{a_}, s{sG+3}')
    A_(f'v_fma_f32 v{X4}, -v{b_}, v{b_}, v{X4}')
    A_(f'v_max_f32 v{X4}, 0, v{X4}')
    A_(f'v_add_f32 v{X4}, {hx(f2u(1e-5))}, v{X4}')
    A_(f'v_rsq_f32 v{d_}, v{X4}')
    K0 = -2.0 * 0.7978845608028654 * LOG2E
    K1 = K0 * 0.044715
    co = [b+16, b+17, b+18, b+19]; cs = [b+20, b+21, b+22, b+23]
    A_(f'v_sub_f32 v{co[0]}, 0, v{X1}')
    A_(f'v_mul_f32 v{X4}, v{X4}, v{d_}')
    A_(f'v_mov_b32 v{co[1]}, v{X2}')
    A_(f'v_mul_f32 v{co[2]}, v{b_}, v{X2}')
    A_(f'v_sub_f32 v{co[2]}, 0, v{co[2]}')
    A_(f'v_mul_f32 v{co[3]}, v{X2}, v{X4}')
    A_(f'v_mul_f32 v{e_}, v{a_}, v{d_}')
    A_(f'v_mul_f32 v{cs[0]}, {hx(f2u(K0))}, v{e_}')
    A_(f'v_mul_f32 v{cs[1]}, v{e_}, v{e_}')
    A_(f'v_mul_f32 v{cs[1]}, v{cs[1]}, v{e_}')
    A_(f'v_mul_f32 v{cs[1]}, {hx(f2u(K1))}, v{cs[1]}')
    A_(f'v_mov_b32 v{cs[2]}, v{co[3]}')
    A_(f'v_mov_b32 v{cs[3]}, 0')
    return L, co[0], cs[0]
def w2_enq(kk):
    for j in range(4):
        def f(j=j):
            A(f's_add_u32 m0, s{sWLDS}, {L_A1 + (kk % 5)*4096}')
            if kk < 10: A(f's_add_u32 s{sD0}, s{sWOFF}, {kk*32*1024}')
            else: A(f's_mov_b32 s{sD0}, s{sW2L}')
            vm(f'buffer_load_dwordx4 v{vDW+j}, {srd(SW2)}, s{sD0} offen offset:{j*1024} lds', f'z{kk}')
        bg_add(f'z{kk}', f)
def w2_areg(kk): return 192 + 16*kk if kk < 4 else 16*(kk-4)
def w2_read(kk):
    wait(f'z{kk}')
    for ct in range(4):
        a = w2_areg(kk) + 4*ct
        lg(f'ds_read_b64_tr_b16 {ar(a,2)}, v{vTR2+ct} offset:{(kk%5)*4096}', f'zr{kk}')
        lg(f'ds_read_b64_tr_b16 {ar(a+2,2)}, v{vTR2+ct} offset:{(kk%5)*4096+512}', f'zr{kk}')

issued_reads = [0]
KA, KB, KC = opt('ka', 6), opt('kb', 9), opt('kc', 11)
for n, (ks, rt) in enumerate(seq):
    while issued_reads[0] < min(n + NB, len(seq)):
        k2, r2 = seq[issued_reads[0]]
        if r2 == 0 and k2 % 4 == 0:
            c = k2 // 4
            wait(f'u{c}')
            if c == 0:
                w1_readout(w1_enqd[0])
                stamp('u0 landed')
                bg_on(opt('ip3a', 50))
            elif c == 1:
                wait(None, f'wr{w1_read[0]-1}')
                A('s_barrier')
                w1_free[0] = w1_read[0] + R
                w1_enq(R)
            else:
                A('s_barrier')
        u_read(issued_reads[0]); issued_reads[0] += 1
    if rt == 0:
        A(f'; P3 ks {ks}')
        if ks == 4: Spr.interval = opt('ip3b', 90)
        if ks == 6: stats_a()
        if ks == 7:
            wait(None, 'sr')
            L, co0, cs0 = stats_b_lines()
            for l in L: fill_add(l)
        if ks == KA: w1_readout(min(w1_read[0] + 2, w1_enqd[0]))
        if ks == KB:
            w1_readout(w1_enqd[0]); w1_enq(16)
        if ks == KC + 2 and w1_read[0] < 16: w1_readout(16)
        if ks == 15:
            fill_flush()
            lg(f'ds_write_b128 v{vT+4}, {vr(co0,4)} offset:{L_ST2-L_ST1}', 'sw2')
            lg(f'ds_write_b128 v{vT+4}, {vr(cs0,4)} offset:{L_ST2-L_ST1+16}', 'sw2')
        assert w1_read[0] > ks, (ks, w1_read[0])
        wait(None, f'wr{ks}')
    wait(None, f'uf{n}')
    f = vr(vF+4*(n%NB), 4)
    for tt in range(3):
        if rt < 4:
            acc = vr(vAC3+12*rt+4*tt, 4)
            A(f'v_mfma_f32_16x16x32_bf16 {acc}, {ar(64*tt+4*ks,4)}, {f}, {"0" if ks==0 else acc}')
        else:
            acc = vr(vCO+4*tt, 4)
            A(f'v_mfma_f32_16x16x32_bf16 {acc}, {f}, {ar(64*tt+4*ks,4)}, {"0" if ks==0 else acc}')
        if tt < 2: fill_pop(1)
bg_off()
wait_all_lg()
A('s_barrier')
for kk in range(5): w2_enq(kk)
bg_pop(4)
A(f'v_lshlrev_b32 v{vT}, 5, v{vI}')
A(f'v_add_u32 v{vT}, {L_ST2}, v{vT}')
A(f'v_lshl_add_u32 v{vT+1}, v{vG}, 2, v{vT}')
for rt in range(4):
    lg(f'ds_read_b32 v{vCB+rt}, v{vT+1} offset:{rt*512}', 'cb')
    lg(f'ds_read_b128 {vr(116+4*rt,4)}, v{vT} offset:{rt*512+16}', 'cb')
A(f'v_cmp_eq_u32 vcc, 3, v{vG}')
for tt in range(3):
    A(f'v_lshlrev_b32 v{vBI+tt}, 16, v{vBI+tt}')
    A(f'v_cndmask_b32 v{vCO+4*tt}, v{vCO+4*tt}, v{vBI+tt}, vcc')
wait(None, 'cb')
for rt in range(4):
    for tt in range(3):
        acc = vr(vAC3+12*rt+4*tt, 4)
        A(f'v_mfma_f32_16x16x4_f32 {acc}, v{vCO+4*tt}, v{vCB+rt}, {acc}')
stamp('P3 gemm done')
vG1 = 208; vHP = 224
for rt in range(4):
    if rt < 3: bg_on(opt('igelu', 80))
    a = vAC3 + 12*rt
    c0, c1, iA = 116+4*rt, 117+4*rt, 118+4*rt
    E = range(12)
    for e in E: A(f'v_mul_f32 v{vG1+e}, v{a+e}, v{a+e}')
    for e in E: A(f'v_fma_f32 v{vG1+e}, v{vG1+e}, v{c1}, v{c0}')
    for e in E: A(f'v_mul_f32 v{vG1+e}, v{vG1+e}, v{a+e}')
    for e in E: A(f'v_exp_f32 v{vG1+e}, v{vG1+e}')
    for e in E: A(f'v_fma_f32 v{vG1+e}, v{vG1+e}, v{iA}, v{iA}')
    for e in E: A(f'v_rcp_f32 v{vG1+e}, v{vG1+e}')
    for e in E: A(f'v_mul_f32 v{vG1+e}, v{vG1+e}, v{a+e}')
    p, hf = rt >> 1, rt & 1
    for tt in range(3):
        for h in range(2):
            A(f'v_cvt_pk_bf16_f32 v{vHP+12*p+4*tt+2*hf+h}, v{vG1+4*tt+2*h}, v{vG1+4*tt+2*h+1}')
    bg_off()
    if hf:
        for tt in range(3):
            o = vHP+12*p+4*tt
            A(f'v_permlane16_swap_b32 v{o}, v{o+2}')
            A(f'v_permlane16_swap_b32 v{o+1}, v{o+3}')
        if p: A(f's_add_u32 s{sHB}, s{sHB}, {2*HRT}')
        def st_h(sc, p=p):
            for tt in range(3):
                A(f'buffer_store_dwordx4 {vr(vHP+12*p+4*tt,4)}, v{vPH}, {srd(SWS)}, s{sHB} offen offset:{tt*512}{sc}')
        dual_store(st_h, 3, 'st')
    if rt == 2:
        for kk in (0, 1, 2): w2_read(kk)
wait(None, 'zr2')
bg_flush()
for kk in (5, 6): w2_enq(kk)
bg_flush()
publish(2)
stamp('P3 published')
w2_enq(7); bg_flush()
w2_read(3); w2_read(4)
wait(None, 'zr4')
w2_enq(8); w2_enq(9); bg_flush()
w2_read(5)
vB2 = 72
A(f's_lshl_b32 s{sT0}, s{sJ}, 7')
A(f'v_lshl_add_u32 v{vT}, v{vG}, 3, s{sT0}')
for ct in range(4): vm(f'global_load_dwordx2 {vr(vB2+2*ct,2)}, v{vT}, {sp(sB2)} offset:{ct*32}', 'b2')
wait(None, 'zr5')
w2_enq(10); bg_flush()
vGG = 240
load_cols(5, vF)
vXK = 32
aXK = 176
unpack_cols(vGG, 5, vF)
for kk in (6, 7): w2_read(kk)
le = A.label('Lnoep')
A(f's_cmp_lg_u32 s2, 0')
A(f's_cbranch_scc1 {le}')
A(f's_cmp_lg_u32 s{sWAVE}, 3')
A(f's_cbranch_scc1 {le}')
A(f's_mov_b32 s{sT0}, {WS_XCC}')
lp, ld = A.label('Lep'), A.label('Lepok')
A(f'{lp}:')
A(f'buffer_load_dwordx4 {vr(80,4)}, v{vOFF16}, {srd(SWS)}, s{sT0} offen sc1')
A(f'buffer_load_dwordx4 {vr(84,4)}, v{vOFF16}, {srd(SWS)}, s{sT0} offen offset:1024 sc1')
A('s_waitcnt vmcnt(0)')
A(f'v_xor_b32 v{vT+1}, s{sTAG}, v81')
for r in (83, 85, 87):
    A(f'v_xor_b32 v{vT+2}, s{sTAG}, v{r}')
    A(f'v_or_b32 v{vT+1}, v{vT+1}, v{vT+2}')
A(f'v_cmp_ne_u32 vcc, 0, v{vT+1}')
A(f's_cbranch_vccz {ld}')
spin_guard(lp, ld)
A(f'v_mov_b32 v{vT+1}, s{sTAG}')
A(f'v_mov_b32 v{vT+2}, 0')
A('s_mov_b64 exec, 1')
A(f'buffer_store_dword v{vT+1}, v{vT+2}, {srd(SWS)}, 0 offen sc1')
A('s_mov_b64 exec, -1')
A(f'{le}:')
wait('b2')
for d in range(8):
    unpack(vT, vB2+d)
    A(f'v_fmac_f32 v{vX1+2*d}, v{vGG+2*d}, v{vT}')
    A(f'v_fmac_f32 v{vX1+2*d+1}, v{vGG+2*d+1}, v{vT+1}')
for e in range(16): A(f'v_accvgpr_write_b32 a{aXK+e}, v{vX1+e}')
for kk in (8, 9): w2_read(kk)
order = [1, 2, 3, 0]
sH = {}
k = 0
hs = [4, 5, 6, 7, 8, 9, 10, 11, 12, 13, sLN, sLN+1]
A(f's_mul_i32 s{sT2}, s{sWAVE}, {11*1024}')
A(f's_add_u32 s{sT2}, s{sT2}, s{sCB}')
vRA = 25
for r in range(4):
    A(f's_add_u32 s{sT0}, s{sWAVE}, {r}')
    A(f's_and_b32 s{sT0}, s{sT0}, 3')
    A(f's_mul_i32 s{hs[3*r]}, s{sT0}, {HRT}')
    A(f's_add_u32 s{hs[3*r]}, s{hs[3*r]}, s{sT2}')
    A(f's_add_u32 s{hs[3*r+1]}, s{hs[3*r]}, 4096')
    A(f's_add_u32 s{hs[3*r+2]}, s{hs[3*r]}, 8192')
    A(f's_mul_i32 s{sT0}, s{sT0}, 12288')
    A(f's_add_u32 s{sT0}, s{sT0}, {L_B + (r-1)*4096 if r else L_B}')
    A(f'v_add_u32 v{vRA + (r-1 if r else 3)}, s{sT0}, v{vOFF16}')

await_(2)
stamp('hop2 seen')
vHA = 64; aAC = 112
hseq = [(r, kk) for r in order for kk in range(11)]
def h_load(n):
    r, kk = hseq[n]
    vo = vLAST if kk == 10 else vOFF16
    vm(f'buffer_load_dwordx4 {vr(vHA+44*r+4*kk,4)}, v{vo}, {srd(SWS)}, s{hs[3*r+(kk>>2)]} offen offset:{(kk&3)*1024} sc1', f'h{n}')
LH = opt('lh', 8)
for n in range(LH): h_load(n)
w2_read(10)
wait_all_lg()
for n, (r, kk) in enumerate(hseq):
    oi = n // 11
    if n + LH < 44: h_load(n + LH)
    wait(f'h{n}')
    for ct in range(4):
        acc = ar(aAC+16*r+4*ct, 4)
        A(f'v_mfma_f32_16x16x32_bf16 {acc}, {ar(w2_areg(kk)+4*ct,4)}, {vr(vHA+44*r+4*kk,4)}, {"0" if kk==0 else acc}')
    if oi > 0 and 2 <= kk < 6:
        pr = order[oi-1]; ct = kk - 2
        lg(f'ds_write_b128 v{vRA+pr-1}, {ar(aAC+16*pr+4*ct,4)} offset:{ct*1024}', 'rw')
    if oi == 3 and kk == 7:
        wait(None, 'rw')
        A('s_barrier')
        vR = vHA + 44
        for k in range(12): lg(f'ds_read_b128 {vr(vR+4*k,4)}, v{vRA+3} offset:{k*1024}', f'rr{k//4}')
        vXK = vR + 48
        for e in range(16): A(f'v_accvgpr_read_b32 v{vXK+e}, a{aXK+e}')
stamp('P4 gemm done')
wait(None, 'rr1')
for d in range(8): A(f'v_pk_add_f32 {vr(vR+2*d,2)}, {vr(vR+2*d,2)}, {vr(vR+16+2*d,2)}')
wait(None, 'rr2')
for d in range(8): A(f'v_pk_add_f32 {vr(vR+2*d,2)}, {vr(vR+2*d,2)}, {vr(vR+32+2*d,2)}')
for e in range(16): A(f'v_accvgpr_read_b32 v{vR+16+e}, a{aAC+e}')
for d in range(8): A(f'v_pk_add_f32 {vr(vR+2*d,2)}, {vr(vR+2*d,2)}, {vr(vR+16+2*d,2)}')
for d in range(8): A(f'v_pk_fma_f32 {vr(vXK+2*d,2)}, {vr(vGG+2*d,2)}, {vr(vR+2*d,2)}, {vr(vXK+2*d,2)}')
for d in range(8): A(f'v_cvt_pk_bf16_f32 v{vR+d}, v{vXK+2*d}, v{vXK+2*d+1}')
for ct in range(4):
    A(f'buffer_store_dwordx2 {vr(vR+2*ct,2)}, v{vXO}, {srd(SOUT)}, s{sXO} offen offset:{ct*32}')
if STAMP:
    A('s_waitcnt vmcnt(0)')
    stamp('end')
    l = A.label('Lst')
    A(f's_cmp_lg_u32 s{sWAVE}, 0')
    A(f's_cbranch_scc1 {l}')
    A(f's_memrealtime {sp(sTM)}')
    A('s_waitcnt lgkmcnt(0)')
    A(f's_lshl_b32 s{sT0}, s2, 7')
    A(f's_add_u32 s{sT0}, s{sT0}, {WS_STAMP}')
    A(f'v_writelane_b32 v31, s{sTM}, 29')
    A(f'v_writelane_b32 v31, s{sSPIN}, 30')
    A(f'v_writelane_b32 v31, s{sLOCAL}, 31')
    A(f'v_lshlrev_b32 v{vT}, 2, v{vLANE}')
    A('s_mov_b64 exec, 0xffffffff')
    A(f'buffer_store_dword v31, v{vT}, {srd(SWS)}, s{sT0} offen')
    A(f'{l}:')
A('s_endpgm')
A('.fill 4096, 4, 0xbf800000')

header()
sys.stdout.write(_A.render())
footer()
sys.stderr.write(f'stamps={nstamp[0]} nops={_A.nnop} lines={len(_A.lines)}\n')
```

```python
import sys, struct
from asmlib import Asm

NAME = 'adaLN_cond__sliding_local_dilated__mixer_channel_mlp__prompt'
STAMP = '--stamp' in sys.argv
FORCE_GLOBAL = '--global' in sys.argv
def opt(name, default):
    for a in sys.argv:
        if a.startswith('--' + name + '='): return int(a.split('=')[1])
    return default

def f2u(x): return struct.unpack('<I', struct.pack('<f', x))[0]
def hx(x): return '0x%08x' % (x & 0xffffffff)

WS_XCC   = 0x1000
WS_MOD   = 0x2000
WS_STAMP = 0x20000
WS_CL    = 0x100000
HRT      = 43*1024
C_H      = 0
C_O      = 0
C_U      = 4*HRT
C_ST     = C_U + 65536
C_FLAG   = C_ST + 16384
CLSZ     = 0x40000
WS_SIZE  = WS_CL + 32*CLSZ

L_A1   = 0
L_B    = 81920
L_MISC = 147456
L_MODT = L_MISC
L_ONES = L_MISC + 6144
L_ST1  = L_MISC + 7168
L_ST2  = L_MISC + 9216
L_P0S  = L_MISC + 11264
LDS_BYTES = 163840

sWAVE = 3
SX, SWQKV, SWO, SW1, SW2, SWS, SOUT, SWMOD = 32, 36, 40, 44, 48, 52, 56, 60
sB1, sB2, sC = 14, 18, 20
sCL, sJ, sTAG, sLOCAL, sR0 = 64, 65, 66, 67, 68
sT0, sT1, sT2 = 69, 70, 71
sLN = 72
sG = 80
sSPIN = 85
sCB = 86
sSOFF, sSLDS = 87, 88
sWOFF, sWLDS = 89, 90
sD0 = 91
STCH = 92
sXO, sSB, sHB, sTILE0 = 96, 97, 98, 99
sP, sIDX, sXCC = 100, 101, 26
sTM = 30

def srd(b): return f's[{b}:{b+3}]'
def vr(b, n=1): return f'v{b}' if n == 1 else f'v[{b}:{b+n-1}]'
def ar(b, n=1): return f'a{b}' if n == 1 else f'a[{b}:{b+n-1}]'
def sp(b): return f's[{b}:{b+1}]'

A = Asm()

_A = A
class Spr:
    q = []
    on = False
    acc = 0
    interval = 100
    busy = False
def cost(l):
    op = l.split()[0]
    if op.startswith('v_mfma'): return 16
    if op.startswith(('v_exp', 'v_rcp', 'v_rsq')): return 8
    if op.startswith((';', '.')) or l.endswith(':'): return 0
    return 4
def A(text):
    _A(text)
    if Spr.on and not Spr.busy:
        Spr.acc += cost(text.strip())
        if Spr.acc >= Spr.interval and Spr.q:
            Spr.acc = 0
            bg_pop(1)
A.label = _A.label
def bg_pop(n):
    Spr.busy = True
    for _ in range(n):
        if Spr.q: Spr.q.pop(0)[1]()
    Spr.busy = False
def bg_on(interval): Spr.on = True; Spr.interval = interval; Spr.acc = 0
def bg_off(): Spr.on = False
def bg_flush(): bg_pop(len(Spr.q))
def bg_add(tag, fn): Spr.q.append((tag, fn))
def bg_until(tag):
    idx = [i for i, (t, _) in enumerate(Spr.q) if t == tag]
    if idx: bg_pop(idx[-1] + 1)

class Ctr:
    def __init__(self, name, mx): self.q = []; self.name = name; self.mx = mx
    def issue(self, tag): self.q.append(tag)
    def need(self, tag):
        idx = [i for i, t in enumerate(self.q) if t == tag]
        if not idx: return None
        n = len(self.q) - 1 - idx[-1]
        n = min(n, self.mx)
        self.q = self.q[len(self.q) - n:] if n else []
        return n
    def clear(self): self.q = []
VM = Ctr('vmcnt', 63); LG = Ctr('lgkmcnt', 15)
def vm(text, tag): VM.issue(tag); A(text)
def lg(text, tag): LG.issue(tag); A(text)
def wait(vtag=None, ltag=None):
    parts = []
    if vtag is not None:
        bg_until(vtag)
        n = VM.need(vtag)
        if n is not None: parts.append(f'vmcnt({n})')
    if ltag is not None:
        n = LG.need(ltag)
        if n is not None: parts.append(f'lgkmcnt({n})')
    if parts: A('s_waitcnt ' + ' '.join(parts))
def wait_all_vm(): A('s_waitcnt vmcnt(0)'); VM.clear()
def wait_all_lg(): A('s_waitcnt lgkmcnt(0)'); LG.clear()

nstamp = [0]
def stamp(name):
    if not STAMP: return
    k = nstamp[0]; nstamp[0] += 1
    assert k < 29
    sys.stderr.write(f'stamp {k} {name}\n')
    A(f's_memtime {sp(sTM)}')
    wait_all_lg()
    A(f'v_writelane_b32 v31, s{sTM}, {k}')

SPIN_MAX = 400000
def spin_guard(loop_label, done_label):
    A(f's_add_u32 s{sSPIN}, s{sSPIN}, 1')
    A(f's_cmp_lt_u32 s{sSPIN}, {SPIN_MAX}')
    A(f's_cbranch_scc1 {loop_label}')
    A(f'{done_label}:')

def dual_store(fn, n, tag):
    if opt('wt', 0) and tag is not None:
        fn(' sc1')
        for _ in range(n): VM.issue(tag)
        return
    l1, l2 = A.label('Lloc'), A.label('Ljoin')
    A(f's_cmp_eq_u32 s{sLOCAL}, 1')
    A(f's_cbranch_scc1 {l1}')
    fn(' sc1')
    A(f's_branch {l2}')
    A(f'{l1}:')
    A('s_nop 1')
    fn('')
    A(f'{l2}:')
    A('s_nop 1')
    if tag is not None:
        for _ in range(n): VM.issue(tag)

vLANE, vOFF16 = 0, 1
vDQ = 2
vTCH = 5
vDW = 6
vAW = 10
vAR = 14
vTRQ = 18
vTRW = 19
vI, vG = 23, 24
vT = 25
vGS = 48; vF = 64; vTB = 96
vFSW, vRR, vC8, vONE = 46, 45, 44, 47

def header():
    print(f"""; Kernarg layout (104 bytes, ptrs only, base s[0:1]): A_x, A_wqkv, A_wo, B_x, B_w1, B_b1, B_w2, B_b2, c, w_mod, d_out, d_debug, d_ws
; @launch grid=(256,1,1) block=(256,1,1) lds={LDS_BYTES}
.amdgcn_target "amdgcn-amd-amdhsa--gfx950"
.text
.globl {NAME}_kernel
.p2align 8
.type {NAME}_kernel,@function
{NAME}_kernel:""")
def footer():
    print(f""".section .rodata,"a"
.p2align 6
.amdhsa_kernel {NAME}_kernel
  .amdhsa_next_free_vgpr 512
  .amdhsa_next_free_sgpr 102
  .amdhsa_accum_offset 256
  .amdhsa_group_segment_fixed_size 0
  .amdhsa_kernarg_size 104
  .amdhsa_user_sgpr_count 2
  .amdhsa_user_sgpr_kernarg_segment_ptr 1
  .amdhsa_system_sgpr_workgroup_id_x 1
.end_amdhsa_kernel""")
def mk_srd(b, ptr, size):
    A(f's_mov_b32 s{b}, s{ptr}')
    A(f's_mov_b32 s{b+1}, s{ptr+1}')
    A(f's_mov_b32 s{b+2}, {hx(size)}')
    A(f's_mov_b32 s{b+3}, 0x00020000')
def red32(a, b):
    A(f'v_permlane32_swap_b32 v{a}, v{b}')
    A(f'v_add_f32 v{a}, v{a}, v{b}')
def red16(a, b):
    A(f'v_permlane16_swap_b32 v{a}, v{b}')
    A(f'v_add_f32 v{a}, v{a}, v{b}')
def ror_add(a, n):
    A(f'v_add_f32_dpp v{a}, v{a}, v{a} row_ror:{n} row_mask:0xf bank_mask:0xf')
def unpack(dst, src):
    A(f'v_lshlrev_b32 v{dst}, 16, v{src}')
    A(f'v_and_b32 v{dst+1}, 0xffff0000, v{src}')
LOG2E = 1.4426950408889634

CODE_LINES_PER_WAVE = 10
A('s_cmp_lt_u32 s2, 256')
A('s_cbranch_scc1 L_go')
A('s_endpgm')
A('L_go:')
A('s_load_dwordx16 s[4:19], s[0:1], 0')
A('s_load_dwordx8 s[20:27], s[0:1], 64')
A('s_load_dwordx2 s[28:29], s[0:1], 96')
A(f's_getpc_b64 {sp(sTM)}')
A(f'v_lshrrev_b32 v{vT}, 6, v0')
A(f'v_and_b32 v{vLANE}, 63, v0')
A(f'v_readfirstlane_b32 s{sWAVE}, v{vT}')
A(f's_lshr_b32 s{sIDX}, s2, 3')
A(f's_and_b32 s{sJ}, s{sIDX}, 7')
A(f's_lshl_b32 s{sT0}, s{sJ}, 2')
A(f's_add_u32 s{sT0}, s{sT0}, s{sWAVE}')
A(f's_mul_i32 s{sT0}, s{sT0}, {CODE_LINES_PER_WAVE*128}')
A(f'v_lshl_add_u32 v{vT}, v{vLANE}, 7, s{sT0}')
A(f's_mov_b64 exec, {hx((1<<CODE_LINES_PER_WAVE)-1)}')
vm(f'global_load_dword v{vTCH}, v{vT}, {sp(sTM)}', 'touch')
A('s_mov_b64 exec, -1')
A(f'v_lshlrev_b32 v{vOFF16}, 4, v{vLANE}')
A(f'v_and_b32 v{vI}, 15, v{vLANE}')
A(f'v_lshrrev_b32 v{vG}, 4, v{vLANE}')
A(f's_and_b32 s{sT0}, s2, 7')
A(f's_lshr_b32 s{sCL}, s{sIDX}, 3')
A(f's_lshl_b32 s{sT2}, s{sT0}, 2')
A(f's_add_u32 s{sCL}, s{sCL}, s{sT2}')
A(f's_lshl_b32 s{sR0}, s{sCL}, 6')
A(f's_mov_b32 s{sSPIN}, 0')
A(f's_min_u32 s{sT2}, s{sIDX}, 23')
A(f's_mul_i32 s{sT0}, s{sT0}, 24')
A(f's_add_u32 s{sP}, s{sT0}, s{sT2}')
A(f'v_lshrrev_b32 v{vT+1}, 1, v{vLANE}')
A(f'v_mul_u32_u24 v{vT+2}, {4*6144}, v{vT+1}')
A(f'v_and_b32 v{vT+3}, 1, v{vLANE}')
A(f'v_lshl_add_u32 v{vT+2}, v{vT+3}, 4, v{vT+2}')
A(f's_lshl_b32 s{sT0}, s{sWAVE}, 8')
A(f'v_lshl_add_u32 v{vT+1}, v{vT+1}, 3, s{sT0}')
A(f's_lshl_b32 s{sT1}, s2, 2')
A(f's_add_u32 s{sT1}, s{sT1}, s{sWAVE}')
A(f's_mul_i32 s{sT1}, s{sT1}, {12*128}')
A(f'v_lshlrev_b32 v{vT+4}, 7, v{vLANE}')
A(f'v_mov_b32 v{vT+3}, 0')
A('s_waitcnt lgkmcnt(0)')
stamp('kernarg')
mk_srd(SWS, 28, WS_SIZE)
mk_srd(SWMOD, 22, 512*3072*2)
mk_srd(SWQKV, 6, 512*1536*2)
vE = 32; vCV = 34; vWM = 64
vm(f'buffer_load_dword v{vE}, v{vT+3}, {srd(SWS)}, 0 offen sc1', 'E')
vm(f'global_load_dwordx2 {vr(vCV,2)}, v{vT+1}, {sp(sC)}', 'E')
A('s_mov_b64 exec, 0xfff')
vm(f'buffer_load_dword v{vTCH}, v{vT+4}, {srd(SWQKV)}, s{sT1} offen', 'touch')
A('s_mov_b64 exec, -1')
A(f's_mul_i32 s{sT0}, s{sWAVE}, {128*6144}')
A(f's_lshl_b32 s{sT1}, s{sP}, 5')
A(f's_add_u32 s{sT0}, s{sT0}, s{sT1}')
for n in range(4):
    vm(f'buffer_load_dwordx4 {vr(vWM+4*n,4)}, v{vT+2}, {srd(SWMOD)}, s{sT0} offen', 'wmod')
    if n < 3: A(f's_add_u32 s{sT0}, s{sT0}, 6144')
mk_srd(SX, 4, 2048*512*2)
sXR = sLN+7
sXR = sXO
A(f's_lshl_b32 s{sXR}, s{sWAVE}, 2')
A(f's_add_u32 s{sXR}, s{sXR}, s{sR0}')
A(f's_sub_u32 s{sXR}, s{sXR}, 16')
sXB = [sLN+0, sLN+1, sLN+2, sLN+3, sLN+4]
sXB = [sG, sG+1, sG+2, sG+3, sG+4]
for rt in range(5):
    A(f's_max_i32 s{sXB[rt]}, s{sXR}, 0')
    A(f's_lshl_b32 s{sXB[rt]}, s{sXB[rt]}, 10')
    A(f's_add_u32 s{sXR}, s{sXR}, 16')
    for q in range(4):
        bg_add(f'x{rt}', lambda rt=rt, q=q: vm(f'buffer_load_dwordx4 {vr(vTB+32*rt+8*q+4,4)}, v{vOFF16}, {srd(SX)}, s{sXB[rt]} offen offset:{q*1024}', f'x{rt}'))
bg_pop(opt('xpre', 6))
mk_srd(SWO, 8, 512*512*2)
mk_srd(SW1, 12, 512*1376*2)
mk_srd(SW2, 16, 1376*512*2)
mk_srd(SOUT, 24, 2048*512*2)
A(f's_lshl_b32 s{sCB}, s{sCL}, 18')
A(f's_add_u32 s{sCB}, s{sCB}, {WS_CL}')
A(f's_getreg_b32 s{sXCC}, hwreg(HW_REG_XCC_ID)')
A(f's_and_b32 s{sXCC}, s{sXCC}, 15')
A(f's_mov_b32 s{STCH}, s8');  A(f's_mov_b32 s{STCH+1}, s9'); A(f's_mov_b32 s{STCH+2}, {512*512*2}')
A(f's_mov_b32 s{STCH+3}, 0x00020000')
A(f's_cmp_eq_u32 s{sWAVE}, 1')
A(f's_cselect_b32 s{STCH}, s12, s{STCH}'); A(f's_cselect_b32 s{STCH+1}, s13, s{STCH+1}'); A(f's_cselect_b32 s{STCH+2}, {512*1376*2}, s{STCH+2}')
A(f's_cmp_eq_u32 s{sWAVE}, 2')
A(f's_cselect_b32 s{STCH}, s16, s{STCH}'); A(f's_cselect_b32 s{STCH+1}, s17, s{STCH+1}'); A(f's_cselect_b32 s{STCH+2}, {512*1376*2}, s{STCH+2}')
A(f's_cmp_eq_u32 s{sWAVE}, 3')
A(f's_cselect_b32 s{STCH+2}, 0, s{STCH+2}')
A(f'v_bfe_u32 v{vRR}, v{vLANE}, 2, 2')
A(f'v_lshrrev_b32 v{vT+1}, 1, v{vRR}')
A(f'v_and_b32 v{vT+2}, 1, v{vG}')
A(f'v_lshl_add_u32 v{vFSW}, v{vT+2}, 1, v{vT+1}')
A(f'v_and_b32 v{vC8}, 3, v{vLANE}')
A(f'v_lshlrev_b32 v{vC8}, 3, v{vC8}')
A(f'v_and_b32 v{vT+3}, 7, v{vLANE}')
A(f'v_lshlrev_b32 v{vT+3}, 4, v{vT+3}')
A(f'v_lshlrev_b32 v{vT+2}, 5, v{vT+2}')
A(f'v_xor_b32 v{vT+3}, v{vT+3}, v{vT+2}')
A(f'v_lshrrev_b32 v{vT+5}, 3, v{vLANE}')
A(f's_and_b32 s{sT0}, s{sWAVE}, 1')
A(f's_lshl_b32 s{sT0}, s{sT0}, 6')
A(f'v_xor_b32 v{vT+1}, s{sT0}, v{vT+3}')
A(f'v_mul_u32_u24 v{vDQ}, 3072, v{vT+5}')
A(f'v_add_u32 v{vDQ}, v{vDQ}, v{vT+1}')
A(f'v_lshl_add_u32 v{vDW}, v{vT+5}, 10, v{vT+3}')
A(f'v_xor_b32 v{vDW+1}, 64, v{vDW}')
A(f'v_add_u32 v{vDW+1}, 7168, v{vDW+1}')
A(f'v_add_u32 v{vDW+2}, {2*7168}, v{vDW}')
A(f'v_add_u32 v{vDW+3}, {2*7168}, v{vDW+1}')
vDWO = 33
A(f'v_lshl_add_u32 v{vDWO}, v{vT+5}, 10, v{vT+1}')
A(f'v_mul_u32_u24 v{vT+2}, 3072, v{vG}')
A(f'v_lshl_add_u32 v{vT+2}, v{vRR}, 7, v{vT+2}')
A(f'v_add_u32 v{vT+2}, v{vT+2}, v{vC8}')
A(f'v_xor_b32 v{vT+1}, s{sWAVE}, v{vFSW}')
A(f'v_lshl_add_u32 v{vTRQ}, v{vT+1}, 5, v{vT+2}')
A(f'v_add_u32 v{vTRQ}, {L_B}, v{vTRQ}')
A(f'v_lshl_add_u32 v{vT+2}, v{vG}, 3, v{vRR}')
A(f'v_lshl_add_u32 v{vT+2}, v{vT+2}, 7, v{vC8}')
A(f'v_add_u32 v{vT+2}, {L_B}, v{vT+2}')
for ct in range(4):
    A(f'v_xor_b32 v{vT+1}, {ct}, v{vFSW}')
    A(f'v_lshl_add_u32 v{vTRW+ct}, v{vT+1}, 5, v{vT+2}')
A(f's_lshl_b32 s{sT0}, s{sWAVE}, 2')
for q in range(4):
    A(f's_add_u32 s{sT1}, s{sT0}, {q}')
    A(f's_lshl_b32 s{sT2}, s{sT1}, 10')
    A(f'v_xor_b32 v{vT}, s{sT1}, v{vLANE}')
    A(f'v_lshl_add_u32 v{vAW+q}, v{vT}, 4, s{sT2}')
A(f'v_lshlrev_b32 v{vT+1}, 10, v{vI}')
for m in range(4):
    A(f'v_add_u32 v{vT}, {4*m}, v{vG}')
    A(f'v_xor_b32 v{vT}, v{vT}, v{vI}')
    A(f'v_lshl_add_u32 v{vAR+m}, v{vT}, 4, v{vT+1}')
A(f's_mul_i32 s{sSOFF}, s{sWAVE}, {8*3072}')
A(f's_lshl_b32 s{sT0}, s{sJ}, 7')
A(f's_add_u32 s{sSOFF}, s{sSOFF}, s{sT0}')
A(f's_mul_i32 s{sSLDS}, s{sWAVE}, 3072')
A(f's_lshl_b32 s{sWOFF}, s{sWAVE}, 13')
A(f's_add_u32 s{sWOFF}, s{sWOFF}, s{sT0}')
A(f's_lshl_b32 s{sWLDS}, s{sWAVE}, 10')

R = 5
def q_lds(n): return L_A1 + n*12288 if n < 6 else L_B + ((n-6) % 5)*12288
def q_enq(n):
    for p in range(3):
        def f(n=n, p=p):
            A(f's_add_u32 m0, s{sSLDS}, {q_lds(n)}')
            A(f's_add_u32 s{sD0}, s{sSOFF}, {n*32*3072}')
            vm(f'buffer_load_dwordx4 v{vDQ}, {srd(SWQKV)}, s{sD0} offen offset:{p*1024} lds', f'q{n}')
        bg_add(f'q{n}', f)
def wo_enq(kk):
    def f():
        A(f's_add_u32 m0, s{sWLDS}, {L_B + kk*4096}')
        A(f's_add_u32 s{sD0}, s{sWOFF}, {kk*32*1024}')
        vm(f'buffer_load_dwordx4 v{vDWO}, {srd(SWO)}, s{sD0} offen lds', 'wo')
    bg_add('wo', f)
vTRQA = 3
A(f'v_subrev_u32 v{vTRQA}, {L_B}, v{vTRQ}')
def q_read(lo, hi):
    for n in range(lo, hi):
        for p in range(3):
            a = 64*p + 4*n
            base, off = (vTRQA, q_lds(n) - L_A1) if n < 6 else (vTRQ, q_lds(n) - L_B)
            off += p*1024
            lg(f'ds_read_b64_tr_b16 {ar(a,2)}, v{base} offset:{off}', f'qr{n}')
            lg(f'ds_read_b64_tr_b16 {ar(a+2,2)}, v{base} offset:{off+512}', f'qr{n}')

wait('E')
A(f'v_readfirstlane_b32 s{sTAG}, v{vE}')
A(f's_mul_i32 s{sTAG}, s{sTAG}, 1664525')
A(f's_add_u32 s{sTAG}, s{sTAG}, 1013904223')
vS = 36
unpack(vS, vCV); unpack(vS+2, vCV+1)
for n in range(4): A(f'v_mul_f32 v{40+n}, {hx(f2u(-LOG2E))}, v{vS+n}')
for n in range(4): A(f'v_exp_f32 v{40+n}, v{40+n}')
for n in range(4): A(f'v_add_f32 v{40+n}, 1.0, v{40+n}')
for n in range(4): A(f'v_rcp_f32 v{40+n}, v{40+n}')
for n in range(4): A(f'v_mul_f32 v{vS+n}, v{vS+n}, v{40+n}')
A(f'v_cvt_pk_bf16_f32 v40, v{vS}, v{vS+1}')
A(f'v_cvt_pk_bf16_f32 v41, v{vS+2}, v{vS+3}')
unpack(vS, 40); unpack(vS+2, 41)
vAC = 48
wait('wmod')
stamp('wmod arrived')
bg_on(opt('ip0', 30))
for n in range(4):
    for d in range(4): unpack(56+2*d, vWM+4*n+d)
    for e in range(8):
        if n == 0: A(f'v_mul_f32 v{vAC+e}, v{vS}, v{56+e}')
        else: A(f'v_fmac_f32 v{vAC+e}, v{vS+n}, v{56+e}')
for e in (0, 2, 4, 6): red32(vAC+e, vAC+e+1)
red16(vAC, vAC+2); red16(vAC+4, vAC+6)
for n in (8, 4, 2):
    ror_add(vAC, n); ror_add(vAC+4, n)
bg_off()
A(f'v_and_b32 v{vT}, 1, v{vG}')
A(f'v_lshlrev_b32 v{vT}, 1, v{vT}')
A(f'v_lshrrev_b32 v{vT+1}, 1, v{vG}')
A(f'v_or_b32 v{vT}, v{vT}, v{vT+1}')
A(f'v_and_b32 v{vT+1}, 1, v{vLANE}')
A(f'v_lshl_add_u32 v{vT}, v{vT+1}, 3, v{vT}')
A(f's_lshl_b32 s{sT0}, s{sWAVE}, 6')
A(f's_add_u32 s{sT0}, s{sT0}, {L_P0S}')
A(f'v_lshl_add_u32 v{vT}, v{vT}, 2, s{sT0}')
A(f'ds_write_b32 v{vT}, v{vAC}')
A(f'ds_write_b32 v{vT}, v{vAC+4} offset:16')
for r in range(4): A(f'v_mov_b32 v{40+r}, 0x3f803f80')
A(f'v_add_u32 v{vT+1}, {L_ONES}, v{vOFF16}')
A(f'ds_write_b128 v{vT+1}, v[40:43]')
wait_all_lg()
A('s_barrier')
lskip = A.label('Lp0skip')
A(f's_cmp_lg_u32 s{sWAVE}, 0')
A(f's_cbranch_scc1 {lskip}')
A(f'v_and_b32 v{vT}, 7, v{vLANE}')
A(f'v_lshlrev_b32 v{vT}, 3, v{vT}')
A(f'v_add_u32 v{vT+1}, {L_P0S}, v{vT}')
for w in range(4): A(f'ds_read_b64 {vr(48+2*w,2)}, v{vT+1} offset:{64*w}')
A('s_waitcnt lgkmcnt(0)')
for e in range(2):
    A(f'v_add_f32 v{48+e}, v{48+e}, v{50+e}')
    A(f'v_add_f32 v{52+e}, v{52+e}, v{54+e}')
for e in range(2): A(f'v_add_f32 v{48+e}, v{48+e}, v{52+e}')
A(f'v_cvt_pk_bf16_f32 v48, v48, v49')
A(f'v_mov_b32 v49, s{sTAG}')
A(f'v_mov_b32 v50, s{sXCC}')
A(f'v_mov_b32 v51, s{sTAG}')
A(f's_lshl_b32 s{sT0}, s{sP}, 6')
A(f's_add_u32 s{sT0}, s{sT0}, {WS_MOD}')
A(f's_mov_b64 exec, 0xff')
lnp = A.label('Lnopub')
A(f's_cmp_ge_u32 s{sIDX}, 24')
A(f's_cbranch_scc1 {lnp}')
A(f'buffer_store_dwordx2 v[48:49], v{vT}, {srd(SWS)}, s{sT0} offen sc1')
A(f'{lnp}:')
A(f's_mov_b64 exec, 1')
A(f's_lshl_b32 s{sT0}, s{sCL}, 3')
A(f's_add_u32 s{sT0}, s{sT0}, s{sJ}')
A(f's_lshl_b32 s{sT0}, s{sT0}, 3')
A(f's_add_u32 s{sT0}, s{sT0}, {WS_XCC}')
A(f'buffer_store_dwordx2 v[50:51], v{vT}, {srd(SWS)}, s{sT0} offen sc1')
A(f's_mov_b64 exec, -1')
A(f'{lskip}:')
stamp('p0 published')

def touch_weights():
    A(f's_mul_i32 s{sD0}, s2, {48*128}')
    A(f'v_lshlrev_b32 v4, 7, v{vLANE}')
    A(f'v_add_u32 v4, s{sD0}, v4')
    A('s_mov_b32 exec_hi, 0xffff')
    vm(f'buffer_load_dword v{vTCH}, v4, {srd(STCH)}, 0 offen', 'touch')
    A('s_mov_b64 exec, -1')
def touch_ws():
    A(f's_lshl_b32 s{sD0}, s{sJ}, 2')
    A(f's_add_u32 s{sD0}, s{sD0}, s{sWAVE}')
    A(f's_lshl_b32 s{sD0}, s{sD0}, 13')
    A(f's_add_u32 s{sD0}, s{sD0}, s{sCB}')
    A(f'v_lshlrev_b32 v4, 7, v{vLANE}')
    vm(f'buffer_load_dword v{vTCH}, v4, {srd(SWS)}, s{sD0} offen sc1', 'touch')
TWPOS = opt('tw', 0); TSPOS = opt('ts', 1)
if TWPOS == 0: bg_add('touch', touch_weights)
if TSPOS == 0: bg_add('touch', touch_ws)
for n in range(11): q_enq(n)

A(f'v_mov_b32 v{vONE}, 0x3f803f80')
bg_on(opt('iln', 70))
for rt in range(5):
    wait(f'x{rt}')
    if opt('st0', 0) and rt in (0, 2, 4): stamp(f'x{rt} arrived')
    B = vTB + 32*rt
    sa = [40, 41, 42, 43]; sq = [36, 37, 38, 39]
    for d in range(4):
        for q in range(4):
            A(f'v_dot2_f32_bf16 v{sa[q]}, v{B+8*q+4+d}, v{vONE}, {"0" if d==0 else "v%d"%sa[q]}')
        for q in range(4):
            A(f'v_dot2_f32_bf16 v{sq[q]}, v{B+8*q+4+d}, v{B+8*q+4+d}, {"0" if d==0 else "v%d"%sq[q]}')
    red32(sa[0], sa[2]); red32(sa[1], sa[3]); red32(sq[0], sq[2]); red32(sq[1], sq[3])
    red16(sa[0], sa[1]); red16(sq[0], sq[1])
    for n in (8, 4, 2, 1):
        ror_add(sa[0], n); ror_add(sq[0], n)
    A(f'v_mul_f32 v{sa[0]}, {hx(f2u(1/512))}, v{sa[0]}')
    A(f'v_mul_f32 v{sq[0]}, {hx(f2u(1/512))}, v{sq[0]}')
    A(f'v_fma_f32 v{sq[0]}, -v{sa[0]}, v{sa[0]}, v{sq[0]}')
    A(f'v_max_f32 v{sq[0]}, 0, v{sq[0]}')
    A(f'v_add_f32 v{sq[0]}, {hx(f2u(1e-5))}, v{sq[0]}')
    A(f'v_rsq_f32 v{sq[0]}, v{sq[0]}')
    A(f'v_mul_f32 v{sa[0]}, v{sa[0]}, v{sq[0]}')
    A(f'v_sub_f32 v{sa[0]}, 0, v{sa[0]}')
    for q in range(4):
        A(f'v_readlane_b32 s{sLN+2*q}, v{sq[0]}, {16*q}')
        A(f'v_readlane_b32 s{sLN+2*q+1}, v{sa[0]}, {16*q}')
    for q in range(4):
        b = B + 8*q
        for d in range(4): unpack(b+2*d, b+4+d)
        for d in range(4):
            A(f'v_pk_fma_f32 {vr(b+2*d,2)}, {vr(b+2*d,2)}, {sp(sLN+2*q)}, {sp(sLN+2*q)} op_sel:[0,0,1] op_sel_hi:[1,0,1]')
bg_off()
bg_until('q5')
stamp('ln1 stats done')

sGM, sGX = sLN, sLN+1
A(f's_mul_i32 s{sGM}, s{sWAVE}, 3072')
A(f's_add_u32 s{sGM}, s{sGM}, {WS_MOD}')
A(f's_lshl_b32 s{sGX}, s{sCL}, 6')
A(f's_add_u32 s{sGX}, s{sGX}, {WS_XCC}')
A(f'v_and_b32 v{vT}, 7, v{vLANE}')
A(f'v_lshlrev_b32 v{vT}, 3, v{vT}')
lp, ld = A.label('Lmod'), A.label('Lmodok')
A(f'{lp}:')
for n in range(3):
    A(f'buffer_load_dwordx4 {vr(vF+4*n,4)}, v{vOFF16}, {srd(SWS)}, s{sGM} offen offset:{n*1024} sc1')
A(f'buffer_load_dwordx2 {vr(vF+12,2)}, v{vT}, {srd(SWS)}, s{sGX} offen sc1')
wait_all_vm()
A(f'v_xor_b32 v{vT+1}, s{sTAG}, v{vF+13}')
for r in (1, 3, 5, 7, 9, 11):
    A(f'v_xor_b32 v{vT+2}, s{sTAG}, v{vF+r}')
    A(f'v_or_b32 v{vT+1}, v{vT+1}, v{vT+2}')
A(f'v_cmp_ne_u32 vcc, 0, v{vT+1}')
A(f's_cbranch_vccz {ld}')
spin_guard(lp, ld)
stamp('mod arrived')
bg_pop(opt('s1', 6))
A('s_barrier')
if opt('st0', 0): stamp('b1')
q_read(0, 6)
A(f'v_cmp_ne_u32 vcc, s{sXCC}, v{vF+12}')
A(f's_cmp_eq_u64 vcc, 0')
A(f's_cselect_b32 s{sLOCAL}, {0 if FORCE_GLOBAL else 1}, 0')
A(f's_and_b32 s{sT0}, s{sWAVE}, 1')
A(f's_cmp_eq_u32 s{sT0}, 1')
A(f's_cselect_b32 s{sT1}, 1.0, 0')
A(f's_cselect_b32 s{sT2}, 0, 1.0')
for n, s_add in ((0, sT1), (2, sT2)):
    for h in range(2):
        src = vF + 4*n + 2*h
        unpack(vT+1, src)
        A(f'v_add_f32 v{vT+1}, s{s_add}, v{vT+1}')
        A(f'v_add_f32 v{vT+2}, s{s_add}, v{vT+2}')
        A(f'v_cvt_pk_bf16_f32 v{src}, v{vT+1}, v{vT+2}')
for n in range(3): A(f'v_mov_b32 v{vF+4*n+1}, v{vF+4*n+2}')
A(f's_mul_i32 s{sT0}, s{sWAVE}, 1536')
A(f's_add_u32 s{sT0}, s{sT0}, {L_MODT}')
A(f'v_lshl_add_u32 v{vT+1}, v{vLANE}, 3, s{sT0}')
for n in range(3): lg(f'ds_write_b64 v{vT+1}, {vr(vF+4*n,2)} offset:{n*512}', 'modw')
wait(None, 'modw')
A('s_barrier')
if opt('st0', 0): stamp('b2')
bg_on(opt('imod', 70))
A(f'v_add_u32 v{vT+1}, {L_MODT}, v{vOFF16}')
lg(f'ds_read_b128 {vr(vF,4)}, v{vT+1}', 'gs')
lg(f'ds_read_b128 {vr(vF+4,4)}, v{vT+1} offset:1024', 'gs')
wait(None, 'gs')
for d in range(4):
    unpack(vGS+2*d, vF+4+d); unpack(vGS+8+2*d, vF+d)
for rt in range(5):
    if rt == 4:
        for q in range(4): A(f'v_add_u32 v{vAW+q}, 0x10000, v{vAW+q}')
    for q in range(4):
        b = vTB + 32*rt + 8*q
        for d in range(4):
            A(f'v_pk_fma_f32 {vr(b+2*d,2)}, {vr(b+2*d,2)}, {vr(vGS+2*d,2)}, {vr(vGS+8+2*d,2)}')
        for d in range(4):
            A(f'v_cvt_pk_bf16_f32 v{b+d}, v{b+2*d}, v{b+2*d+1}')
        lg(f'ds_write_b128 v{vAW+q}, {vr(b,4)} offset:{(rt%4)*16384}', 'a1w')
bg_off()
if opt('st0', 0): stamp('modulated')
wait('q8', 'a1w')
A('s_barrier')
q_read(6, 9)
stamp('A1 written')

FILL = []
def fill_add(*lines): FILL.append(list(lines))
def fill_pop(k):
    n = 0
    Spr.busy = True
    while FILL and n < k:
        it = FILL.pop(0)
        for l in it: A(l)
        n += len(it)
    Spr.busy = False
def fill_flush(): fill_pop(1 << 30)

vD1 = 52
vTR1 = 10
vXO = 13
vM = 48
vPO, vPH, vFLO, vFLV = 40, 41, 42, 43
vZ, vMC, vO8, vXA, vUA = 55, 56, 57, 58, 59
vLAST = 60
fT = 61
sS1OFF = sP
sOST, sFL = 16, 17
def setup_fillers():
    t0, t1, t2, t3 = fT, fT+1, fT+2, 30
    F = fill_add
    for n in range(3):
        F(f'v_add_u32 v{t0}, {64*n}, v{vLANE}')
        F(f'v_mul_u32_u24 v{t1}, 2731, v{t0}')
        F(f'v_lshrrev_b32 v{t1}, 16, v{t1}')
        F(f'v_mul_u32_u24 v{t2}, 24, v{t1}')
        F(f'v_sub_u32 v{t2}, v{t0}, v{t2}')
        F(f'v_lshlrev_b32 v{t2}, 4, v{t2}')
        F(f'v_bfe_u32 v{t3}, v{t1}, 1, 2')
        F(f'v_lshlrev_b32 v{t3}, 5, v{t3}')
        F(f'v_xor_b32 v{t2}, v{t2}, v{t3}')
        F(f'v_mul_u32_u24 v{t1}, 2752, v{t1}')
        F(f'v_add_u32 v{vD1+n}, v{t1}, v{t2}')
        if n: F(f'v_subrev_u32 v{vD1+n}, {n*1024}, v{vD1+n}')
    F(f's_mul_i32 s{sTILE0}, s{sJ}, 12')
    F(f's_min_u32 s{sTILE0}, s{sTILE0}, 74')
    F(f's_mul_i32 s{sS1OFF}, s{sWAVE}, {8*2752}')
    F(f's_lshl_b32 s{sT0}, s{sTILE0}, 5')
    F(f's_add_u32 s{sS1OFF}, s{sS1OFF}, s{sT0}')
    F(f's_mul_i32 s{sT0}, s{sWAVE}, 3')
    F(f'v_lshl_add_u32 v{t0}, v{vG}, 2, v{vRR}')
    F(f'v_mul_u32_u24 v{t0}, 384, v{t0}')
    F(f'v_add_u32 v{t0}, v{t0}, v{vC8}')
    for tt in range(3):
        F(f'v_xor_b32 v{t1}, s{sT0}, v{vFSW}')
        F(f'v_lshl_add_u32 v{vTR1+tt}, v{t1}, 5, v{t0}')
        if tt < 2: F(f's_add_u32 s{sT0}, s{sT0}, 1')
    F(f'v_lshlrev_b32 v{t0}, 2, v{vG}')
    for r in range(4):
        F(f'v_add_u32 v{t1}, {r}, v{t0}')
        F(f'v_cmp_le_u32 {sp(4+2*r)}, v{t1}, v{vI}')
    F(f'v_and_b32 v{t1}, 1, v{vI}')
    F(f'v_cmp_eq_u32 {sp(12)}, 1, v{t1}')
    F(f'v_mov_b32 v{t2}, 0xffff')
    F(f'v_mov_b32 v{t3}, 0xffff0000')
    F(f'v_cndmask_b32 v{t2}, v{t2}, v{t3}, {sp(12)}')
    F(f'v_add_u32 v{t1}, v{t1}, v{t0}')
    for k in range(2):
        F(f'v_cmp_le_u32 vcc, v{t1}, v{vI}')
        F(f'v_cndmask_b32 v{vM+2+k}, 0, v{t2}, vcc')
        F(f'v_xor_b32 v{vM+k}, v{vM+2+k}, v{t2}')
        if k == 0: F(f'v_add_u32 v{t1}, 2, v{t1}')
    F(f'v_lshrrev_b32 v{t0}, 1, v{vG}')
    F(f'v_lshlrev_b32 v{t0}, 8, v{t0}')
    F(f'v_lshl_add_u32 v{t0}, v{vI}, 4, v{t0}')
    F(f'v_and_b32 v{t1}, 1, v{vG}')
    F(f'v_lshl_add_u32 v{vPO}, v{t1}, 14, v{t0}')
    F(f'v_mul_u32_u24 v{t1}, {HRT}, v{t1}')
    F(f'v_add_u32 v{vPH}, v{t1}, v{t0}')
    F(f's_lshl_b32 s{sOST}, s{sJ}, 11')
    F(f's_lshl_b32 s{sT1}, s{sWAVE}, 9')
    F(f's_add_u32 s{sOST}, s{sOST}, s{sT1}')
    F(f's_add_u32 s{sOST}, s{sOST}, s{sCB}')
    F(f's_add_u32 s{sFL}, s{sCB}, {C_FLAG}')
    F(f'v_and_b32 v{vFLO}, 7, v{vLANE}')
    F(f'v_lshlrev_b32 v{vFLO}, 2, v{vFLO}')
    F(f's_lshl_b32 s{sT0}, s{sJ}, 2')
    F(f'v_mov_b32 v{vZ}, s{sT0}')
    F(f'v_lshlrev_b32 v{vXO}, 10, v{vI}')
    F(f'v_lshl_add_u32 v{vXO}, v{vG}, 3, v{vXO}')
    F(f's_lshl_b32 s{sXO}, s{sWAVE}, 4')
    F(f's_add_u32 s{sXO}, s{sXO}, s{sR0}')
    F(f's_lshl_b32 s{sXO}, s{sXO}, 10')
    F(f's_lshl_b32 s{sT0}, s{sJ}, 7')
    F(f's_add_u32 s{sXO}, s{sXO}, s{sT0}')
    F(f's_add_u32 s{sT0}, s{sT0}, {L_MODT}')
    F(f'v_lshl_add_u32 v{vMC}, v{vG}, 3, s{sT0}')
    F(f'v_lshlrev_b32 v{vO8}, 3, v{vLANE}')
    F(f's_lshl_b32 s{sSB}, s{sWAVE}, 12')
    F(f's_add_u32 s{sSB}, s{sSB}, s{sCB}')
    F(f's_add_u32 s{sSB}, s{sSB}, {C_ST}')
    F(f'v_lshrrev_b32 v{t0}, 2, v{vI}')
    F(f'v_mov_b32 v{vXA}, {L_ONES}')
    F(f'v_mov_b32 v{t2}, {L_MODT+4*1024}')
    F(f'v_cmp_eq_u32 vcc, 0, v{t0}')
    F(f'v_cndmask_b32 v{vXA}, v{vXA}, v{t2}, vcc')
    F(f'v_mov_b32 v{t2}, {L_MODT+3*1024}')
    F(f'v_cmp_eq_u32 vcc, 1, v{t0}')
    F(f'v_cndmask_b32 v{vXA}, v{vXA}, v{t2}, vcc')
    F(f'v_lshl_add_u32 v{vXA}, v{vG}, 3, v{vXA}')
    F(f'v_add_u32 v{vUA}, {L_B}, v{vOFF16}')
    F(f's_mul_i32 s{sHB}, s{sWAVE}, 3')
    F(f's_add_u32 s{sHB}, s{sHB}, s{sTILE0}')
    F(f's_lshl_b32 s{sHB}, s{sHB}, 9')
    F(f's_add_u32 s{sHB}, s{sHB}, s{sCB}')
    F(f's_cmp_eq_u32 s{sWAVE}, 3', f's_cselect_b32 s{sT0}, 0x7ffffff0, 0', f'v_or_b32 v{vLAST}, s{sT0}, v{vOFF16}')
setup_fillers()

def accK(rt): return vTB + 32*rt
def accV(rt): return vTB + 32*rt + 4
def accQ(rt): return vTB + 32*rt + 8
vAR4 = 36
for m in range(4): A(f'v_add_u32 v{vAR4+m}, 0x10000, v{vAR+m}')
seq = [(ks, rt) for ks in range(16) for rt in range(5)]
NB = 8
def a1_read(n):
    ks, rt = seq[n]
    base = vAR4 if rt == 4 else vAR
    lg(f'ds_read_b128 {vr(vF+4*(n%NB),4)}, v{base+(ks&3)} offset:{(rt%4)*16384 + (ks>>2)*256}', f'af{n}')
for n in range(NB-1): a1_read(n)
bg_on(opt('ig1', 90))
B4, B5, B6, B7, B8 = opt('b4', 1), opt('b5', 2), opt('b6', 8), opt('b7', 11), opt('b8', 12)
for n, (ks, rt) in enumerate(seq):
    if rt == 0:
        if ks == B4:
            wait('q10', 'qr8'); A('s_barrier'); q_read(9, 11)
            for m in (11, 12, 13): q_enq(m)
        if ks == B5:
            wait(None, 'qr10'); A('s_barrier')
            for m in (14, 15): q_enq(m)
            wo_enq(15)
            if TWPOS == 1: bg_add('touch', touch_weights)
            if TSPOS == 1: bg_add('touch', touch_ws)
        if ks == B6:
            wait('q13'); A('s_barrier'); q_read(11, 14)
        if ks == B7:
            wait('q15', 'qr13'); A('s_barrier'); q_read(14, 16)
            for kk in range(9): wo_enq(kk)
        if ks == B8:
            wait(None, 'qr15'); A('s_barrier')
            for kk in range(9, 15): wo_enq(kk)
    if n + NB - 1 < len(seq): a1_read(n + NB - 1)
    if rt == 0: wait(None, f'qr{ks}')
    wait(None, f'af{n}')
    f = vr(vF+4*(n%NB), 4)
    c = lambda r: '0' if ks == 0 else vr(r, 4)
    A(f'v_mfma_f32_16x16x32_bf16 {vr(accK(rt),4)}, {ar(64+4*ks,4)}, {f}, {c(accK(rt))}')
    fill_pop(1)
    A(f'v_mfma_f32_16x16x32_bf16 {vr(accV(rt),4)}, {f}, {ar(128+4*ks,4)}, {c(accV(rt))}')
    fill_pop(1)
    if rt > 0:
        A(f'v_mfma_f32_16x16x32_bf16 {vr(accQ(rt),4)}, {ar(4*ks,4)}, {f}, {c(accQ(rt))}')
fill_flush()
stamp('P1 gemm done')
A('s_barrier')

w1_enqd = [0]; w1_read = [0]; w1_free = [R]
def w1_enq(k):
    for _ in range(k):
        n = w1_enqd[0]
        if n >= 16: return
        assert n < w1_free[0], (n, w1_free[0])
        for p in range(3):
            def f(n=n, p=p):
                A(f's_add_u32 m0, s{sSLDS}, {L_A1 + (n % R)*12288}')
                A(f's_add_u32 s{sD0}, s{sS1OFF}, {n*32*2752}')
                vm(f'buffer_load_dwordx4 v{vD1+p}, {srd(SW1)}, s{sD0} offen offset:{p*1024} lds', f'w{n}')
            bg_add(f'w{n}', f)
        w1_enqd[0] += 1
def w1_readout(upto, barrier=True):
    lo = w1_read[0]
    assert upto > lo or not barrier
    if upto <= lo: return
    wait(f'w{upto-1}', f'wr{lo-1}')
    if barrier: A('s_barrier')
    w1_free[0] = lo + R
    for n in range(lo, upto):
        for tt in range(3):
            a = 64*tt + 4*n
            off = (n % R)*12288
            lg(f'ds_read_b64_tr_b16 {ar(a,2)}, v{vTR1+tt} offset:{off}', f'wr{n}')
            lg(f'ds_read_b64_tr_b16 {ar(a+2,2)}, v{vTR1+tt} offset:{off+6144}', f'wr{n}')
    w1_read[0] = upto
W1A = opt('w1a', 1)
w1_enq(W1A)
vXR = 248
for ct in range(4):
    bg_add('xr', lambda ct=ct: vm(f'buffer_load_dwordx2 {vr(vXR+2*ct,2)}, v{vXO}, {srd(SX)}, s{sXO} offen offset:{ct*32}', 'xr'))
bg_on(opt('iatt', 40))

vKF, vVF, vQF, vON = 64, 74, 84, 92
for t in range(5):
    for h in range(2):
        A(f'v_cvt_pk_bf16_f32 v{vKF+2*t+h}, v{accK(t)+2*h}, v{accK(t)+2*h+1}')
        if t: A(f'v_cvt_pk_bf16_f32 v{vQF+2*(t-1)+h}, v{accQ(t)+2*h}, v{accQ(t)+2*h+1}')
def tmp(t, k): return vTB + 32*t + 8 + k if k < 4 else vTB + 32*t + 12 + (k - 4)
T = range(1, 5)
for t in T:
    A(f'v_mfma_f32_16x16x16_bf16 {vr(tmp(t,0),4)}, {vr(vKF+2*(t-1),2)}, {vr(vQF+2*(t-1),2)}, 0')
    A(f'v_mfma_f32_16x16x16_bf16 {vr(tmp(t,4),4)}, {vr(vKF+2*t,2)}, {vr(vQF+2*(t-1),2)}, 0')
for t in range(5):
    for h in range(2):
        A(f'v_cvt_pk_bf16_f32 v{vVF+2*t+h}, v{accV(t)+2*h}, v{accV(t)+2*h+1}')
for r in range(4): A(f'v_mov_b32 v{vON+r}, 0x3f803f80')
bg_off()
lm = A.label('Lmask')
A(f's_cmp_lg_u32 s{sCL}, 0')
A(f's_cbranch_scc1 {lm}')
for r in range(4): A(f'v_mov_b32 v{tmp(1,r)}, {hx(f2u(-4e9))}')
A(f'{lm}:')
bg_on(opt('iatt', 40))
for r in range(4):
    for t in T: A(f'v_cndmask_b32 v{tmp(t,r)}, v{tmp(t,r)}, v{tmp(t,4+r)}, {sp(4+2*r)}')
for t in T:
    A(f'v_cndmask_b32 v{tmp(t,0)}, v{tmp(t,0)}, v{tmp(t,1)}, {sp(12)}')
    A(f'v_cndmask_b32 v{tmp(t,1)}, v{tmp(t,2)}, v{tmp(t,3)}, {sp(12)}')
for t in T: A(f'v_max_f32 v{tmp(t,2)}, v{tmp(t,0)}, v{tmp(t,1)}')
for op in ('v_permlane16_swap_b32', 'v_permlane32_swap_b32'):
    for t in T: A(f'v_mov_b32 v{tmp(t,3)}, v{tmp(t,2)}')
    for t in T: A(f'{op} v{tmp(t,2)}, v{tmp(t,3)}')
    for t in T: A(f'v_max_f32 v{tmp(t,2)}, v{tmp(t,2)}, v{tmp(t,3)}')
CS = 0.25 * LOG2E
A(f's_mov_b32 s{sT0}, {hx(f2u(CS))}')
for t in T: A(f'v_mul_f32 v{tmp(t,2)}, {hx(f2u(-CS))}, v{tmp(t,2)}')
for t in T:
    A(f'v_fma_f32 v{tmp(t,0)}, v{tmp(t,0)}, s{sT0}, v{tmp(t,2)}')
    A(f'v_fma_f32 v{tmp(t,1)}, v{tmp(t,1)}, s{sT0}, v{tmp(t,2)}')
for t in T:
    A(f'v_exp_f32 v{tmp(t,0)}, v{tmp(t,0)}')
    A(f'v_exp_f32 v{tmp(t,1)}, v{tmp(t,1)}')
for t in T:
    A(f'v_cvt_pk_bf16_f32 v{tmp(t,0)}, v{tmp(t,0)}, v{tmp(t,0)}')
    A(f'v_cvt_pk_bf16_f32 v{tmp(t,1)}, v{tmp(t,1)}, v{tmp(t,1)}')
for t in T:
    A(f'v_and_b32 v{tmp(t,4)}, v{tmp(t,0)}, v{vM}')
    A(f'v_and_b32 v{tmp(t,5)}, v{tmp(t,1)}, v{vM+1}')
    A(f'v_and_b32 v{tmp(t,6)}, v{tmp(t,0)}, v{vM+2}')
    A(f'v_and_b32 v{tmp(t,7)}, v{tmp(t,1)}, v{vM+3}')
bg_flush(); bg_off()
for t in T:
    A(f'v_mfma_f32_16x16x32_bf16 {vr(tmp(t,12),4)}, {vr(vON,4)}, {vr(tmp(t,4),4)}, 0')
    A(f'v_mfma_f32_16x16x32_bf16 {vr(tmp(t,8),4)}, {vr(vVF+2*(t-1),4)}, {vr(tmp(t,4),4)}, 0')
A(f's_add_u32 s{sT1}, s{sOST}, 32768')
for t in T: A(f'v_rcp_f32 v{tmp(t,12)}, v{tmp(t,12)}')
for t in T:
    for r in range(4): A(f'v_mul_f32 v{tmp(t,8+r)}, v{tmp(t,8+r)}, v{tmp(t,12)}')
for p in range(2):
    ta, tb = 1+2*p, 2+2*p
    o = tmp(ta, 0)
    A(f'v_cvt_pk_bf16_f32 v{o}, v{tmp(ta,8)}, v{tmp(ta,9)}')
    A(f'v_cvt_pk_bf16_f32 v{o+1}, v{tmp(ta,10)}, v{tmp(ta,11)}')
    A(f'v_cvt_pk_bf16_f32 v{o+2}, v{tmp(tb,8)}, v{tmp(tb,9)}')
    A(f'v_cvt_pk_bf16_f32 v{o+3}, v{tmp(tb,10)}, v{tmp(tb,11)}')
for p in range(2):
    o = tmp(1+2*p, 0)
    A(f'v_permlane16_swap_b32 v{o}, v{o+2}')
    A(f'v_permlane16_swap_b32 v{o+1}, v{o+3}')
def st_o(sc):
    A(f'buffer_store_dwordx4 {vr(tmp(1,0),4)}, v{vPO}, {srd(SWS)}, s{sOST} offen{sc}')
    A(f'buffer_store_dwordx4 {vr(tmp(3,0),4)}, v{vPO}, {srd(SWS)}, s{sT1} offen{sc}')
dual_store(st_o, 2, 'st')
stamp('attn done')

def publish(h, ltag=None):
    wait('st', ltag)
    A('s_barrier')
    l = A.label('Lpub')
    A(f's_cmp_lg_u32 s{sWAVE}, 0')
    A(f's_cbranch_scc1 {l}')
    A(f's_add_u32 s{sT1}, s{sTAG}, {h+1}')
    A(f'v_mov_b32 v{vFLV}, s{sT1}')
    A('s_mov_b64 exec, 1')
    dual_store(lambda sc: A(f'buffer_store_dword v{vFLV}, v{vZ}, {srd(SWS)}, s{sFL} offen offset:{32*h}{sc}'), 1, None)
    A('s_mov_b64 exec, -1')
    A(f'{l}:')
def await_(h):
    A(f's_add_u32 s{sT1}, s{sTAG}, {h+1}')
    lp, ld = A.label('Lw'), A.label('Lwok')
    A(f'{lp}:')
    A(f'buffer_load_dword v{vFLV}, v{vFLO}, {srd(SWS)}, s{sFL} offen offset:{32*h} sc1')
    wait_all_vm()
    A(f'v_cmp_ne_u32 vcc, s{sT1}, v{vFLV}')
    A(f's_cbranch_vccz {ld}')
    spin_guard(lp, ld)

w1_enq(opt('w1b0', 1)); bg_flush()
publish(0)
stamp('o published')
w1_enq(opt('w1b', 2))
bg_on(opt('ih0', 40))
w1_readout(W1A, barrier=False)
vGA, vGB, vSB, vX1, vOF, vAC2 = 96, 112, 128, 144, 160, 224
def load_cols(vec, tmpb):
    for ct in range(4): lg(f'ds_read_b64 {vr(tmpb+2*ct,2)}, v{vMC} offset:{vec*1024+ct*32}', f'c{vec}')
def unpack_cols(dst, vec, tmpb):
    wait(None, f'c{vec}')
    for d in range(8): unpack(dst+2*d, tmpb+d)
load_cols(2, vF); load_cols(4, vF+8); load_cols(3, vF+16)
for d in range(8): unpack(vX1+2*d, vXR+d)
unpack_cols(vGA, 2, vF); unpack_cols(vGB, 4, vF+8); unpack_cols(vSB, 3, vF+16)
bg_flush(); bg_off()

def wo_read(ks):
    b = vF + 16*(ks & 1)
    for ct in range(4):
        lg(f'ds_read_b64_tr_b16 {vr(b+4*ct,2)}, v{vTRW+ct} offset:{ks*4096}', f'wo{ks}')
        lg(f'ds_read_b64_tr_b16 {vr(b+4*ct+2,2)}, v{vTRW+ct} offset:{ks*4096+512}', f'wo{ks}')
wo_read(0)
sQ = [sLN, sLN+1, sLN+2, sLN+3]
A(f's_lshl_b32 s{sQ[0]}, s{sWAVE}, 14')
A(f's_add_u32 s{sQ[0]}, s{sQ[0]}, s{sCB}')
for k in range(1, 4): A(f's_add_u32 s{sQ[k]}, s{sQ[0]}, {4096*k}')
await_(0)
stamp('hop0 seen')
def o_load(ks):
    vm(f'buffer_load_dwordx4 {vr(vOF+4*ks,4)}, v{vOFF16}, {srd(SWS)}, s{sQ[ks>>2]} offen offset:{(ks&3)*1024} sc1', f'o{ks}')
LO = opt('lo', 8)
for ks in range(LO): o_load(ks)
w1_readout(w1_enqd[0])
for ks in range(16):
    if ks + LO < 16: o_load(ks + LO)
    if ks + LO == 16:
        w1_enq(opt('w1c0', 2)); bg_on(opt('ip2', 60))
    if ks < 15: wo_read(ks+1)
    wait(f'o{ks}', f'wo{ks}')
    b = vF + 16*(ks & 1)
    for ct in range(4):
        A(f'v_mfma_f32_16x16x32_bf16 {vr(vAC2+4*ct,4)}, {vr(b+4*ct,4)}, {vr(vOF+4*ks,4)}, {"0" if ks==0 else vr(vAC2+4*ct,4)}')
bg_flush(); bg_off()
stamp('P2 gemm done')
vU = 160
A(f's_lshl_b32 s{sT1}, s{sJ}, 11')
A(f's_add_u32 s{sT0}, s{sQ[0]}, s{sT1}')
A(f's_add_u32 s{sT0}, s{sT0}, {C_U}')
for e in range(16): A(f'v_fmac_f32 v{vX1+e}, v{vGA+e}, v{vAC2+e}')
for d in range(8): A(f'v_cvt_pk_bf16_f32 v{184+d}, v{vX1+2*d}, v{vX1+2*d+1}')
for d in range(8): unpack(vX1+2*d, 184+d)
for d in range(8): A(f'v_pk_mul_f32 {vr(vU+2*d,2)}, {vr(vX1+2*d,2)}, {vr(vGB+2*d,2)}')
for d in range(8): A(f'v_cvt_pk_bf16_f32 v{176+d}, v{vU+2*d}, v{vU+2*d+1}')
def st_u(sc):
    for m in range(2): A(f'buffer_store_dwordx4 {vr(176+4*m,4)}, v{vOFF16}, {srd(SWS)}, s{sT0} offen offset:{m*1024}{sc}')
dual_store(st_u, 2, 'st')
S = [192, 193, 194, 195, 196, 197, 198, 199]
for d in range(8):
    c = lambda r: '0' if d == 0 else f'v{r}'
    A(f'v_dot2_f32_bf16 v{S[0]}, v{184+d}, v{vONE}, {c(S[0])}')
    A(f'v_dot2_f32_bf16 v{S[1]}, v{184+d}, v{184+d}, {c(S[1])}')
    A(f'v_dot2_f32_bf16 v{S[2]}, v{176+d}, v{vONE}, {c(S[2])}')
    A(f'v_dot2_f32_bf16 v{S[3]}, v{176+d}, v{176+d}, {c(S[3])}')
for d in range(8):
    if d == 0:
        A(f'v_pk_mul_f32 {vr(S[4],2)}, {vr(vU,2)}, {vr(vGB,2)}')
        A(f'v_pk_mul_f32 {vr(S[6],2)}, {vr(vU,2)}, {vr(vSB,2)}')
    else:
        A(f'v_pk_fma_f32 {vr(S[4],2)}, {vr(vU+2*d,2)}, {vr(vGB+2*d,2)}, {vr(S[4],2)}')
        A(f'v_pk_fma_f32 {vr(S[6],2)}, {vr(vU+2*d,2)}, {vr(vSB+2*d,2)}, {vr(S[6],2)}')
A(f'v_add_f32 v{S[4]}, v{S[4]}, v{S[5]}')
A(f'v_add_f32 v{S[5]}, v{S[6]}, v{S[7]}')
red32(S[0], S[2]); red32(S[1], S[3]); red32(S[4], S[5]); red16(S[0], S[1])
A(f'v_mov_b32 v{S[1]}, v{S[4]}'); red16(S[1], S[4])
A(f's_lshl_b32 s{sT0}, s{sJ}, 9')
A(f's_add_u32 s{sT0}, s{sT0}, s{sSB}')
dual_store(lambda sc: A(f'buffer_store_dwordx2 {vr(S[0],2)}, v{vO8}, {srd(SWS)}, s{sT0} offen{sc}'), 1, 'st')
landed = w1_enqd[0]
publish(1, f'wr{w1_read[0]-1}')
stamp('P2 published')
w1_readout(landed, barrier=False)
w1_enq(opt('w1c', 3))
vBI = 96
A(f's_mul_i32 s{sT0}, s{sWAVE}, 3')
A(f's_add_u32 s{sT0}, s{sT0}, s{sTILE0}')
A(f's_lshl_b32 s{sT0}, s{sT0}, 5')
A(f'v_lshl_add_u32 v{vT}, v{vI}, 1, s{sT0}')
for tt in range(3): vm(f'global_load_ushort v{vBI+tt}, v{vT}, {sp(sB1)} offset:{32*tt}', 'b1')
bg_on(opt('ih1', 30))
A(f'v_add_u32 v{vT+1}, {L_MODT}, v{vOFF16}')
lg(f'ds_read_b128 {vr(vF,4)}, v{vT+1} offset:{4*1024}', 'gsum')
lg(f'ds_read_b128 {vr(vF+4,4)}, v{vT+1} offset:{3*1024}', 'gsum')
wait(None, 'gsum')
q5 = [vF+8, vF+9, vF+10, vF+11, vF+12]
for d in range(4):
    c = lambda r: '0' if d == 0 else f'v{r}'
    A(f'v_dot2_f32_bf16 v{q5[0]}, v{vF+d}, v{vONE}, {c(q5[0])}')
    A(f'v_dot2_f32_bf16 v{q5[1]}, v{vF+d}, v{vF+d}, {c(q5[1])}')
    A(f'v_dot2_f32_bf16 v{q5[2]}, v{vF+4+d}, v{vONE}, {c(q5[2])}')
    A(f'v_dot2_f32_bf16 v{q5[3]}, v{vF+4+d}, v{vF+4+d}, {c(q5[3])}')
    A(f'v_dot2_f32_bf16 v{q5[4]}, v{vF+d}, v{vF+4+d}, {c(q5[4])}')
red32(q5[0], q5[2]); red32(q5[1], q5[3]); red16(q5[0], q5[1])
A(f'v_mov_b32 v{q5[1]}, v{q5[4]}'); red32(q5[4], q5[1])
A(f'v_mov_b32 v{q5[1]}, v{q5[4]}'); red16(q5[4], q5[1])
for n in (8, 4, 2, 1):
    ror_add(q5[0], n); ror_add(q5[4], n)
A(f'v_mul_f32 v{q5[0]}, {hx(f2u(1/512))}, v{q5[0]}')
A(f'v_mul_f32 v{q5[4]}, {hx(f2u(1/512))}, v{q5[4]}')
for k in range(4): A(f'v_readlane_b32 s{sG+k}, v{q5[0]}, {16*k}')
A(f'v_readlane_b32 s{sG+4}, v{q5[4]}, 0')
bg_flush(); bg_off()
A(f's_mul_i32 s{sWOFF}, s{sWAVE}, {11*32*1024}')
A(f's_lshl_b32 s{sT0}, s{sJ}, 7')
A(f's_add_u32 s{sWOFF}, s{sWOFF}, s{sT0}')
A(f's_mul_i32 s{sWLDS}, s{sWAVE}, 20480')
sW2L = sLN+6
A(f's_cmp_eq_u32 s{sWAVE}, 3')
A(f's_cselect_b32 s{sW2L}, 0, {32*1024}')
A(f's_add_u32 s{sW2L}, s{sW2L}, s{sWOFF}')
A(f's_add_u32 s{sW2L}, s{sW2L}, {9*32*1024}')
vTR2 = 14
A(f's_sub_u32 s{sT0}, s{sWLDS}, {L_B - L_A1}')
for ct in range(4): A(f'v_add_u32 v{vTR2+ct}, s{sT0}, v{vTRW+ct}')
for k in range(4): A(f's_add_u32 s{sQ[k]}, s{sQ[k]}, {C_U}')
sUL = sLN+4
A(f's_lshl_b32 s{sUL}, s{sWAVE}, 14')
A(f's_add_u32 s{sUL}, s{sUL}, {L_B}')

await_(1)
stamp('hop1 seen')
vSTT = 208
for k in range(4):
    for j in range(4):
        def f(k=k, j=j):
            A(f's_add_u32 m0, s{sUL}, {k*4096}')
            vm(f'buffer_load_dwordx4 v{vOFF16}, {srd(SWS)}, s{sQ[k]} offen offset:{j*1024} sc1 lds', f'u{k}')
        bg_add(f'u{k}', f)
for p in range(8):
    bg_add('stt', lambda p=p: vm(f'buffer_load_dwordx2 {vr(vSTT+2*p,2)}, v{vO8}, {srd(SWS)}, s{sSB} offen offset:{p*512} sc1', 'stt'))
bg_pop(opt('upre', 8))
vCO = 100; vCB = 112; vAC3 = 160
seq = [(ks, rt) for ks in range(16) for rt in range(5)]
def u_read(n):
    ks, rt = seq[n]
    d = vF+4*(n%NB)
    if rt < 4:
        lg(f'ds_read_b128 {vr(d,4)}, v{vUA} offset:{rt*16384+ks*1024}', f'uf{n}')
    else:
        lg(f'ds_read_b64 {vr(d,2)}, v{vXA} offset:{ks*64}', f'uf{n}')
        lg(f'ds_read_b64 {vr(d+2,2)}, v{vXA} offset:{ks*64+32}', f'uf{n}')
def stats_a():
    wait('stt')
    for k in range(1, 8):
        A(f'v_pk_add_f32 {vr(vSTT,2)}, {vr(vSTT,2)}, {vr(vSTT+2*k,2)}')
    A(f's_lshl_b32 s{sT0}, s{sWAVE}, 9')
    A(f's_add_u32 s{sT0}, s{sT0}, {L_ST1}')
    A(f'v_lshl_add_u32 v{vT+4}, v{vI}, 5, s{sT0}')
    A(f'v_lshl_add_u32 v{vT+5}, v{vG}, 2, v{vT+4}')
    lg(f'ds_write_b32 v{vT+5}, v{vSTT}', 'sw')
    lg(f'ds_write_b32 v{vT+5}, v{vSTT+1} offset:16', 'sw')
    lg(f'ds_read_b128 {vr(vSTT,4)}, v{vT+4}', 'sr')
    lg(f'ds_read_b128 {vr(vSTT+4,4)}, v{vT+4} offset:16', 'sr')
def stats_b_lines():
    L = []
    A_ = L.append
    b = vSTT
    X1, X2, X3, X4, X5, X6 = b, b+1, b+2, b+3, b+4, b+6
    for r in (X1, X2, X3, X4, X5, X6): A_(f'v_mul_f32 v{r}, {hx(f2u(1/512))}, v{r}')
    a_, b_, c_, d_, e_ = b+8, b+9, b+10, b+11, b+12
    A_(f'v_fma_f32 v{X2}, -v{X1}, v{X1}, v{X2}')
    A_(f'v_max_f32 v{X2}, 0, v{X2}')
    A_(f'v_add_f32 v{X2}, {hx(f2u(1e-5))}, v{X2}')
    A_(f'v_rsq_f32 v{a_}, v{X2}')
    A_(f'v_fma_f32 v{X3}, -v{X1}, s{sG}, v{X3}')
    A_(f'v_mul_f32 v{X2}, v{X2}, v{a_}')
    A_(f'v_fma_f32 v{b_}, v{X3}, v{a_}, s{sG+2}')
    A_(f'v_mul_f32 v{c_}, s{sG+1}, v{X1}')
    A_(f'v_fma_f32 v{c_}, -2.0, v{X5}, v{c_}')
    A_(f'v_fma_f32 v{X4}, v{X1}, v{c_}, v{X4}')
    A_(f'v_fma_f32 v{X6}, -v{X1}, s{sG+4}, v{X6}')
    A_(f'v_add_f32 v{X6}, v{X6}, v{X6}')
    A_(f'v_fma_f32 v{X4}, v{X4}, v{a_}, v{X6}')
    A_(f'v_fma_f32 v{X4}, v{X4}, v{a_}, s{sG+3}')
    A_(f'v_fma_f32 v{X4}, -v{b_}, v{b_}, v{X4}')
    A_(f'v_max_f32 v{X4}, 0, v{X4}')
    A_(f'v_add_f32 v{X4}, {hx(f2u(1e-5))}, v{X4}')
    A_(f'v_rsq_f32 v{d_}, v{X4}')
    K0 = -2.0 * 0.7978845608028654 * LOG2E
    K1 = K0 * 0.044715
    co = [b+16, b+17, b+18, b+19]; cs = [b+20, b+21, b+22, b+23]
    A_(f'v_sub_f32 v{co[0]}, 0, v{X1}')
    A_(f'v_mul_f32 v{X4}, v{X4}, v{d_}')
    A_(f'v_mov_b32 v{co[1]}, v{X2}')
    A_(f'v_mul_f32 v{co[2]}, v{b_}, v{X2}')
    A_(f'v_sub_f32 v{co[2]}, 0, v{co[2]}')
    A_(f'v_mul_f32 v{co[3]}, v{X2}, v{X4}')
    A_(f'v_mul_f32 v{e_}, v{a_}, v{d_}')
    A_(f'v_mul_f32 v{cs[0]}, {hx(f2u(K0))}, v{e_}')
    A_(f'v_mul_f32 v{cs[1]}, v{e_}, v{e_}')
    A_(f'v_mul_f32 v{cs[1]}, v{cs[1]}, v{e_}')
    A_(f'v_mul_f32 v{cs[1]}, {hx(f2u(K1))}, v{cs[1]}')
    A_(f'v_mov_b32 v{cs[2]}, v{co[3]}')
    A_(f'v_mov_b32 v{cs[3]}, 0')
    return L, co[0], cs[0]
def w2_enq(kk):
    for j in range(4):
        def f(j=j):
            A(f's_add_u32 m0, s{sWLDS}, {L_A1 + (kk % 5)*4096}')
            if kk < 10: A(f's_add_u32 s{sD0}, s{sWOFF}, {kk*32*1024}')
            else: A(f's_mov_b32 s{sD0}, s{sW2L}')
            vm(f'buffer_load_dwordx4 v{vDW+j}, {srd(SW2)}, s{sD0} offen offset:{j*1024} lds', f'z{kk}')
        bg_add(f'z{kk}', f)
def w2_areg(kk): return 192 + 16*kk if kk < 4 else 16*(kk-4)
def w2_read(kk):
    wait(f'z{kk}')
    for ct in range(4):
        a = w2_areg(kk) + 4*ct
        lg(f'ds_read_b64_tr_b16 {ar(a,2)}, v{vTR2+ct} offset:{(kk%5)*4096}', f'zr{kk}')
        lg(f'ds_read_b64_tr_b16 {ar(a+2,2)}, v{vTR2+ct} offset:{(kk%5)*4096+512}', f'zr{kk}')

issued_reads = [0]
KA, KB, KC = opt('ka', 6), opt('kb', 9), opt('kc', 11)
for n, (ks, rt) in enumerate(seq):
    while issued_reads[0] < min(n + NB, len(seq)):
        k2, r2 = seq[issued_reads[0]]
        if r2 == 0 and k2 % 4 == 0:
            c = k2 // 4
            wait(f'u{c}')
            if c == 0:
                w1_readout(w1_enqd[0])
                stamp('u0 landed')
                bg_on(opt('ip3a', 50))
            elif c == 1:
                wait(None, f'wr{w1_read[0]-1}')
                A('s_barrier')
                w1_free[0] = w1_read[0] + R
                w1_enq(R)
            else:
                A('s_barrier')
        u_read(issued_reads[0]); issued_reads[0] += 1
    if rt == 0:
        A(f'; P3 ks {ks}')
        if ks == 4: Spr.interval = opt('ip3b', 90)
        if ks == 6: stats_a()
        if ks == 7:
            wait(None, 'sr')
            L, co0, cs0 = stats_b_lines()
            for l in L: fill_add(l)
        if ks == KA: w1_readout(min(w1_read[0] + 2, w1_enqd[0]))
        if ks == KB:
            w1_readout(w1_enqd[0]); w1_enq(16)
        if ks == KC + 2 and w1_read[0] < 16: w1_readout(16)
        if ks == 15:
            fill_flush()
            lg(f'ds_write_b128 v{vT+4}, {vr(co0,4)} offset:{L_ST2-L_ST1}', 'sw2')
            lg(f'ds_write_b128 v{vT+4}, {vr(cs0,4)} offset:{L_ST2-L_ST1+16}', 'sw2')
        assert w1_read[0] > ks, (ks, w1_read[0])
        wait(None, f'wr{ks}')
    wait(None, f'uf{n}')
    f = vr(vF+4*(n%NB), 4)
    for tt in range(3):
        if rt < 4:
            acc = vr(vAC3+12*rt+4*tt, 4)
            A(f'v_mfma_f32_16x16x32_bf16 {acc}, {ar(64*tt+4*ks,4)}, {f}, {"0" if ks==0 else acc}')
        else:
            acc = vr(vCO+4*tt, 4)
            A(f'v_mfma_f32_16x16x32_bf16 {acc}, {f}, {ar(64*tt+4*ks,4)}, {"0" if ks==0 else acc}')
        if tt < 2: fill_pop(1)
bg_off()
wait_all_lg()
A('s_barrier')
for kk in range(5): w2_enq(kk)
bg_pop(4)
A(f'v_lshlrev_b32 v{vT}, 5, v{vI}')
A(f'v_add_u32 v{vT}, {L_ST2}, v{vT}')
A(f'v_lshl_add_u32 v{vT+1}, v{vG}, 2, v{vT}')
for rt in range(4):
    lg(f'ds_read_b32 v{vCB+rt}, v{vT+1} offset:{rt*512}', 'cb')
    lg(f'ds_read_b128 {vr(116+4*rt,4)}, v{vT} offset:{rt*512+16}', 'cb')
A(f'v_cmp_eq_u32 vcc, 3, v{vG}')
for tt in range(3):
    A(f'v_lshlrev_b32 v{vBI+tt}, 16, v{vBI+tt}')
    A(f'v_cndmask_b32 v{vCO+4*tt}, v{vCO+4*tt}, v{vBI+tt}, vcc')
wait(None, 'cb')
for rt in range(4):
    for tt in range(3):
        acc = vr(vAC3+12*rt+4*tt, 4)
        A(f'v_mfma_f32_16x16x4_f32 {acc}, v{vCO+4*tt}, v{vCB+rt}, {acc}')
stamp('P3 gemm done')
vG1 = 208; vHP = 224
for rt in range(4):
    if rt < 3: bg_on(opt('igelu', 80))
    a = vAC3 + 12*rt
    c0, c1, iA = 116+4*rt, 117+4*rt, 118+4*rt
    E = range(12)
    for e in E: A(f'v_mul_f32 v{vG1+e}, v{a+e}, v{a+e}')
    for e in E: A(f'v_fma_f32 v{vG1+e}, v{vG1+e}, v{c1}, v{c0}')
    for e in E: A(f'v_mul_f32 v{vG1+e}, v{vG1+e}, v{a+e}')
    for e in E: A(f'v_exp_f32 v{vG1+e}, v{vG1+e}')
    for e in E: A(f'v_fma_f32 v{vG1+e}, v{vG1+e}, v{iA}, v{iA}')
    for e in E: A(f'v_rcp_f32 v{vG1+e}, v{vG1+e}')
    for e in E: A(f'v_mul_f32 v{vG1+e}, v{vG1+e}, v{a+e}')
    p, hf = rt >> 1, rt & 1
    for tt in range(3):
        for h in range(2):
            A(f'v_cvt_pk_bf16_f32 v{vHP+12*p+4*tt+2*hf+h}, v{vG1+4*tt+2*h}, v{vG1+4*tt+2*h+1}')
    bg_off()
    if hf:
        for tt in range(3):
            o = vHP+12*p+4*tt
            A(f'v_permlane16_swap_b32 v{o}, v{o+2}')
            A(f'v_permlane16_swap_b32 v{o+1}, v{o+3}')
        if p: A(f's_add_u32 s{sHB}, s{sHB}, {2*HRT}')
        def st_h(sc, p=p):
            for tt in range(3):
                A(f'buffer_store_dwordx4 {vr(vHP+12*p+4*tt,4)}, v{vPH}, {srd(SWS)}, s{sHB} offen offset:{tt*512}{sc}')
        dual_store(st_h, 3, 'st')
    if rt == 2:
        for kk in (0, 1, 2): w2_read(kk)
wait(None, 'zr2')
bg_flush()
for kk in (5, 6): w2_enq(kk)
bg_flush()
publish(2)
stamp('P3 published')
w2_enq(7); bg_flush()
w2_read(3); w2_read(4)
wait(None, 'zr4')
w2_enq(8); w2_enq(9); bg_flush()
w2_read(5)
vB2 = 72
A(f's_lshl_b32 s{sT0}, s{sJ}, 7')
A(f'v_lshl_add_u32 v{vT}, v{vG}, 3, s{sT0}')
for ct in range(4): vm(f'global_load_dwordx2 {vr(vB2+2*ct,2)}, v{vT}, {sp(sB2)} offset:{ct*32}', 'b2')
wait(None, 'zr5')
w2_enq(10); bg_flush()
vGG = 240
load_cols(5, vF)
vXK = 32
aXK = 176
unpack_cols(vGG, 5, vF)
for kk in (6, 7): w2_read(kk)
le = A.label('Lnoep')
A(f's_cmp_lg_u32 s2, 0')
A(f's_cbranch_scc1 {le}')
A(f's_cmp_lg_u32 s{sWAVE}, 3')
A(f's_cbranch_scc1 {le}')
A(f's_mov_b32 s{sT0}, {WS_XCC}')
lp, ld = A.label('Lep'), A.label('Lepok')
A(f'{lp}:')
A(f'buffer_load_dwordx4 {vr(80,4)}, v{vOFF16}, {srd(SWS)}, s{sT0} offen sc1')
A(f'buffer_load_dwordx4 {vr(84,4)}, v{vOFF16}, {srd(SWS)}, s{sT0} offen offset:1024 sc1')
A('s_waitcnt vmcnt(0)')
A(f'v_xor_b32 v{vT+1}, s{sTAG}, v81')
for r in (83, 85, 87):
    A(f'v_xor_b32 v{vT+2}, s{sTAG}, v{r}')
    A(f'v_or_b32 v{vT+1}, v{vT+1}, v{vT+2}')
A(f'v_cmp_ne_u32 vcc, 0, v{vT+1}')
A(f's_cbranch_vccz {ld}')
spin_guard(lp, ld)
A(f'v_mov_b32 v{vT+1}, s{sTAG}')
A(f'v_mov_b32 v{vT+2}, 0')
A('s_mov_b64 exec, 1')
A(f'buffer_store_dword v{vT+1}, v{vT+2}, {srd(SWS)}, 0 offen sc1')
A('s_mov_b64 exec, -1')
A(f'{le}:')
wait('b2')
for d in range(8):
    unpack(vT, vB2+d)
    A(f'v_fmac_f32 v{vX1+2*d}, v{vGG+2*d}, v{vT}')
    A(f'v_fmac_f32 v{vX1+2*d+1}, v{vGG+2*d+1}, v{vT+1}')
for e in range(16): A(f'v_accvgpr_write_b32 a{aXK+e}, v{vX1+e}')
for kk in (8, 9): w2_read(kk)
order = [1, 2, 3, 0]
sH = {}
k = 0
hs = [4, 5, 6, 7, 8, 9, 10, 11, 12, 13, sLN, sLN+1]
A(f's_mul_i32 s{sT2}, s{sWAVE}, {11*1024}')
A(f's_add_u32 s{sT2}, s{sT2}, s{sCB}')
vRA = 25
for r in range(4):
    A(f's_add_u32 s{sT0}, s{sWAVE}, {r}')
    A(f's_and_b32 s{sT0}, s{sT0}, 3')
    A(f's_mul_i32 s{hs[3*r]}, s{sT0}, {HRT}')
    A(f's_add_u32 s{hs[3*r]}, s{hs[3*r]}, s{sT2}')
    A(f's_add_u32 s{hs[3*r+1]}, s{hs[3*r]}, 4096')
    A(f's_add_u32 s{hs[3*r+2]}, s{hs[3*r]}, 8192')
    A(f's_mul_i32 s{sT0}, s{sT0}, 12288')
    A(f's_add_u32 s{sT0}, s{sT0}, {L_B + (r-1)*4096 if r else L_B}')
    A(f'v_add_u32 v{vRA + (r-1 if r else 3)}, s{sT0}, v{vOFF16}')

await_(2)
stamp('hop2 seen')
vHA = 64; aAC = 112
hseq = [(r, kk) for r in order for kk in range(11)]
def h_load(n):
    r, kk = hseq[n]
    vo = vLAST if kk == 10 else vOFF16
    vm(f'buffer_load_dwordx4 {vr(vHA+44*r+4*kk,4)}, v{vo}, {srd(SWS)}, s{hs[3*r+(kk>>2)]} offen offset:{(kk&3)*1024} sc1', f'h{n}')
LH = opt('lh', 8)
for n in range(LH): h_load(n)
w2_read(10)
wait_all_lg()
for n, (r, kk) in enumerate(hseq):
    oi = n // 11
    if n + LH < 44: h_load(n + LH)
    wait(f'h{n}')
    for ct in range(4):
        acc = ar(aAC+16*r+4*ct, 4)
        A(f'v_mfma_f32_16x16x32_bf16 {acc}, {ar(w2_areg(kk)+4*ct,4)}, {vr(vHA+44*r+4*kk,4)}, {"0" if kk==0 else acc}')
    if oi > 0 and 2 <= kk < 6:
        pr = order[oi-1]; ct = kk - 2
        lg(f'ds_write_b128 v{vRA+pr-1}, {ar(aAC+16*pr+4*ct,4)} offset:{ct*1024}', 'rw')
    if oi == 3 and kk == 7:
        wait(None, 'rw')
        A('s_barrier')
        vR = vHA + 44
        for k in range(12): lg(f'ds_read_b128 {vr(vR+4*k,4)}, v{vRA+3} offset:{k*1024}', f'rr{k//4}')
        vXK = vR + 48
        for e in range(16): A(f'v_accvgpr_read_b32 v{vXK+e}, a{aXK+e}')
stamp('P4 gemm done')
wait(None, 'rr1')
for d in range(8): A(f'v_pk_add_f32 {vr(vR+2*d,2)}, {vr(vR+2*d,2)}, {vr(vR+16+2*d,2)}')
wait(None, 'rr2')
for d in range(8): A(f'v_pk_add_f32 {vr(vR+2*d,2)}, {vr(vR+2*d,2)}, {vr(vR+32+2*d,2)}')
for e in range(16): A(f'v_accvgpr_read_b32 v{vR+16+e}, a{aAC+e}')
for d in range(8): A(f'v_pk_add_f32 {vr(vR+2*d,2)}, {vr(vR+2*d,2)}, {vr(vR+16+2*d,2)}')
for d in range(8): A(f'v_pk_fma_f32 {vr(vXK+2*d,2)}, {vr(vGG+2*d,2)}, {vr(vR+2*d,2)}, {vr(vXK+2*d,2)}')
for d in range(8): A(f'v_cvt_pk_bf16_f32 v{vR+d}, v{vXK+2*d}, v{vXK+2*d+1}')
for ct in range(4):
    A(f'buffer_store_dwordx2 {vr(vR+2*ct,2)}, v{vXO}, {srd(SOUT)}, s{sXO} offen offset:{ct*32}')
if STAMP:
    A('s_waitcnt vmcnt(0)')
    stamp('end')
    l = A.label('Lst')
    A(f's_cmp_lg_u32 s{sWAVE}, 0')
    A(f's_cbranch_scc1 {l}')
    A(f's_memrealtime {sp(sTM)}')
    A('s_waitcnt lgkmcnt(0)')
    A(f's_lshl_b32 s{sT0}, s2, 7')
    A(f's_add_u32 s{sT0}, s{sT0}, {WS_STAMP}')
    A(f'v_writelane_b32 v31, s{sTM}, 29')
    A(f'v_writelane_b32 v31, s{sSPIN}, 30')
    A(f'v_writelane_b32 v31, s{sLOCAL}, 31')
    A(f'v_lshlrev_b32 v{vT}, 2, v{vLANE}')
    A('s_mov_b64 exec, 0xffffffff')
    A(f'buffer_store_dword v31, v{vT}, {srd(SWS)}, s{sT0} offen')
    A(f'{l}:')
A('s_endpgm')
A('.fill 4096, 4, 0xbf800000')

header()
sys.stdout.write(_A.render())
footer()
sys.stderr.write(f'stamps={nstamp[0]} nops={_A.nnop} lines={len(_A.lines)}\n')
```

```python
import sys, struct
from collections import deque
from asmlib import Asm

STAMP = '--stamp' in sys.argv
def opt(name, default):
    for a in sys.argv:
        if a.startswith('--' + name + '='): return int(a.split('=')[1])
    return default
def f2u(x): return struct.unpack('<I', struct.pack('<f', x))[0]
def hx(x): return '0x%08x' % (x & 0xffffffff)
def srd(b): return f's[{b}:{b+3}]'
def vr(b, n=1): return f'v{b}' if n == 1 else f'v[{b}:{b+n-1}]'
def ar(b, n=1): return f'a{b}' if n == 1 else f'a[{b}:{b+n-1}]'
def sp(b): return f's[{b}:{b+1}]'

R_ = Asm()
label = R_.label
class Ctr:
    def __init__(self, mx): self.q = []; self.mx = mx
    def issue(self, tag, w=1): self.q.append((tag, w))
    def need(self, tag):
        idx = [i for i, (t, _) in enumerate(self.q) if t == tag]
        if not idx: return None
        rest = self.q[idx[-1]+1:]
        n = sum(w for _, w in rest)
        if n > self.mx:
            n = self.mx
            while sum(w for _, w in rest) > n: rest = rest[1:]
        self.q = rest
        return n
    def clear(self): self.q = []
VM = Ctr(63); LG = Ctr(15)
STORES = {}
def emit(u):
    text, kind, tag = u
    if tag in ('st', 'stA', 'stB'):
        STORES.setdefault(tag, []).append('buffer_load_dword v5, ' + text.split(', ', 1)[1])
    if ' m0,' in text[:16]: BG.em0 = text
    if text.startswith('s_') and ' s91,' in text[:18]: BG.ed0 = text
    if kind == 'vm': VM.issue(tag)
    elif kind == 'vm0': VM.issue(tag, 0)
    elif kind == 'lg': LG.issue(tag)
    R_(text)
def E0(text, kind=None, tag=None): emit((text, kind, tag))
def ucost(text):
    op = text.split()[0]
    if op.startswith(';'): return 0
    if op.startswith(('v_exp', 'v_rcp', 'v_rsq', 'v_permlane', 'ds_write_b128', 'v_mfma')): return 2
    return 1
class BG:
    q = deque(); on = False; acc = 0; interval = 100; m0 = None; d0 = None; second = False; em0 = None; ed0 = None
HI = deque(); MID = deque(); LO = deque()
def bg_delay(c, ival=None): BG.q.append(('@delay', None, (c, ival)))
def do_delay(u):
    BG.acc = -u[2][0]
    if u[2][1]: BG.interval = u[2][1]
def bg_emit_item():
    while BG.q:
        u = BG.q.popleft()
        if u[0] == '@delay':
            if BG.on: do_delay(u); return None
            continue
        emit(u)
        if u[1] is not None: return u
def bg_pop(n):
    for _ in range(n): bg_emit_item()
def bg_one():
    u = BG.q.popleft()
    if u[0] != '@delay': emit(u)
def bg_flush():
    while BG.q: bg_one()
def bg_until(tag):
    while any(u[2] == tag for u in BG.q): bg_one()
def bg_on(i): BG.on = True; BG.interval = i; BG.acc = 0
def bg_off(): BG.on = False
def bg(text, kind=None, tag=None): BG.q.append((text, kind, tag))
def bg_dma(m0, d0, text, tag):
    if m0 != BG.m0: bg(m0); BG.m0 = m0
    if d0 is not None and d0 != BG.d0: bg(d0); BG.d0 = d0
    bg(text, 'vm', tag)
def bg_front(fn):
    old = list(BG.q); BG.q.clear()
    m0, d0 = BG.m0, BG.d0
    BG.m0 = BG.d0 = None
    fn()
    if old:
        if BG.em0: bg(BG.em0)
        if BG.ed0: bg(BG.ed0)
        BG.q.extend(old); BG.m0, BG.d0 = m0, d0
def charge(u):
    BG.acc = 0 if 'x4' in u[0] else BG.interval*3//4
    if u[2] == 'wmodB': BG.acc = -BG.interval//3
def A(text, kind=None, tag=None):
    emit((text, kind, tag))
    if BG.on and not text.endswith(':'):
        BG.acc += 4*ucost(text)
        if BG.acc >= BG.interval and BG.q:
            u = bg_emit_item()
            if u: charge(u)
def vm(text, tag): A(text, 'vm', tag)
def lg(text, tag): A(text, 'lg', tag)
def q_until(Q, tag):
    while any(u[2] == tag and u[0] != '@wait' for u in Q):
        u = Q.popleft()
        if u[0] == '@wait': wait(u[1], u[2])
        elif u[0] == '@gap': pass
        else: emit(u)
def wait(vtag=None, ltag=None):
    parts = []
    if vtag is not None:
        q_until(HI, vtag); q_until(LO, vtag); bg_until(vtag)
    if ltag is not None:
        q_until(HI, ltag); q_until(MID, ltag); q_until(LO, ltag)
    if vtag is not None:
        n = VM.need(vtag)
        if n is not None: parts.append(f'vmcnt({n})')
    if ltag is not None:
        n = LG.need(ltag)
        if n is not None: parts.append(f'lgkmcnt({n})')
    if parts: R_('s_waitcnt ' + ' '.join(parts))
def wait_all_vm(): R_('s_waitcnt vmcnt(0)'); VM.clear()
def wait_all_lg(): R_('s_waitcnt lgkmcnt(0)'); LG.clear()
def ismem(u): return u[0].startswith(('ds_', 'buffer_', 'global_'))
def mfma(text, slots=2):
    R_(text)
    BG.acc += 16
    first = True; lastmem = False
    while slots > 0:
        if BG.on and BG.q and BG.q[0][0] == '@delay':
            do_delay(BG.q.popleft())
        bg_ok = BG.on and BG.q and (BG.acc >= BG.interval or BG.q[0][1] is None)
        cands = [HI] + ([BG.q] if bg_ok else []) + [MID, LO]
        pick = None
        if not first and BG.second and lastmem and bg_ok and ismem(BG.q[0]): pick = BG.q
        if first and pick is None:
            for Q in cands:
                if Q and ismem(Q[0]): pick = Q; break
        if pick is None:
            for Q in cands:
                if Q and not ismem(Q[0]) and (Q[0][0].startswith(('@', 'v_mfma')) or ucost(Q[0][0]) <= slots): pick = Q; break
        if pick is None: break
        first = False
        u = pick.popleft()
        lastmem = ismem(u)
        if u[0] == '@wait':
            wait(u[1], u[2]); slots -= 1; continue
        if u[0] == '@gap':
            if u[1] > 1: pick.appendleft(('@gap', u[1]-1, None))
            break
        if pick is BG.q and u[1] is not None: charge(u)
        emit(u); slots -= ucost(u[0])
        if u[0].startswith('v_mfma'): BG.acc += 16; slots = 2; first = True
def hi(text, kind=None, tag=None): HI.append((text, kind, tag))
def mid(text, kind=None, tag=None): MID.append((text, kind, tag))
def lo(text, kind=None, tag=None): LO.append((text, kind, tag))
def lo_wait(vt=None, lt=None): LO.append(('@wait', vt, lt))
def lo_gap(n): LO.append(('@gap', n, None))
def lo_flush():
    while LO:
        u = LO.popleft()
        if u[0] == '@wait': wait(u[1], u[2])
        elif u[0] == '@gap': pass
        else: A(*u)
def mid_flush():
    while MID: emit(MID.popleft())
def hi_flush():
    while HI: emit(HI.popleft())
sTM, sSPIN = 30, 85
nstamp = [0]
def stamp(name, level=0):
    if opt('sim', 0):
        R_(f'; stamp 0 {name}'); R_('; -'); R_('; -'); R_('; -'); return
    if not STAMP or (level and level != opt('sl', 0)): return
    k = nstamp[0]; nstamp[0] += 1
    assert k < 28
    R_(f'; stamp {k} {name}')
    sys.stderr.write(f'{k}:{name} ')
    R_(f's_memtime {sp(sTM)}')
    wait_all_lg()
    R_(f'v_writelane_b32 v31, s{sTM}, {k}')
SPIN_MAX = 400000
def spin_guard(loop_label, done_label):
    R_(f's_add_u32 s{sSPIN}, s{sSPIN}, 1')
    R_(f's_cmp_lt_u32 s{sSPIN}, {SPIN_MAX}')
    R_(f's_cbranch_scc1 {loop_label}')
    R_(f'{done_label}:')
def red32(a, b, E=None):
    E = E or A
    E(f'v_permlane32_swap_b32 v{a}, v{b}'); E(f'v_add_f32 v{a}, v{a}, v{b}')
def red16(a, b, E=None):
    E = E or A
    E(f'v_permlane16_swap_b32 v{a}, v{b}'); E(f'v_add_f32 v{a}, v{a}, v{b}')
def ror_add(a, n, E=None):
    (E or A)(f'v_add_f32_dpp v{a}, v{a}, v{a} row_ror:{n} row_mask:0xf bank_mask:0xf')
def unpack(dst, src, E=None):
    E = E or A
    E(f'v_lshlrev_b32 v{dst}, 16, v{src}'); E(f'v_and_b32 v{dst+1}, 0xffff0000, v{src}')
```

```python
from infra import *
NAME = 'adaLN_cond__sliding_local_dilated__mixer_channel_mlp__prompt'
FORCE_GLOBAL = '--global' in sys.argv
WS_XCC, WS_MOD, WS_STAMP, WS_CL = 0x1000, 0x2000, 0x20000, 0x100000
HRT = 43*1024
C_U = 4*HRT; C_A = C_U; C_ST = C_U + 65536; C_FLAG = C_ST + 24576
CLSZ = 0x48000
WS_SIZE = WS_CL + 32*CLSZ
L_A1, L_B, L_MISC = 0, 81920, 147456
L_MODT = L_MISC - 2048
L_ONES = L_MISC + 4096
L_ST1  = L_MISC + 5120
L_ST2  = L_MISC + 13312
L_P0S  = L_MISC + 15360
L_B2   = L_MISC + 15616
LDS_BYTES = 163840
sWAVE = 3
SX, SWQKV, SWO, SW1, SW2, SWS, SOUT, SWMOD = 32, 36, 40, 44, 48, 52, 56, 60
sB1, sB2, sC = 14, 18, 20
sCL, sJ, sTAG, sLOCAL, sR0 = 64, 65, 66, 67, 68
sT0, sT1, sT2 = 69, 70, 71
sLN = 72; sG = 80; sCB = 86
sSOFF, sSLDS, sWOFF, sWLDS, sD0 = 87, 88, 89, 90, 91
sIW, sWMB, sGW, sB1O = 92, 93, 94, 95
sXO, sSB, sHB, sMSK, sP, sCQ = 96, 97, 98, 99, 100, 101
sXCC, sWM, sS1OFF, sOST, sFL = 26, 27, 22, 16, 17
sGM, sGX, sW4 = 23, 24, 25
vLANE, vOFF16, vDQ, vTRQA, vTA, vTCH = 0, 1, 2, 3, 4, 5
vDW, vAR4, vAR, vTRQ, vTRW, vI, vG, vT = 6, 10, 14, 18, 19, 23, 24, 25
vDWO, vXO, vTR1, vPO, vPH, vFLO, vFLV, vZ, vMC, vO8 = 32, 33, 34, 37, 38, 39, 40, 41, 42, 43
vXA, vSTA, vLAST, vONE = 44, 45, 46, 47
vM, vD1, vBI, vWMO, vP0A, vS = 48, 52, 55, 58, 59, 60
LOG2E = 1.4426950408889634
def mk_srd(b, ptr, size):
    A(f's_mov_b32 s{b}, s{ptr}'); A(f's_mov_b32 s{b+1}, s{ptr+1}')
    A(f's_mov_b32 s{b+2}, {hx(size)}'); A(f's_mov_b32 s{b+3}, 0x00020000')

CLW = opt('clw', 8)
vXR0, vHS, vTQ, vTM = 64, 164, 90, 91
A('s_cmp_lt_u32 s2, 256')
A('s_cbranch_scc1 L_go')
A('s_endpgm')
A('L_go:')
TWICE = opt('twice', 0)
if TWICE:
    R_('v_writelane_b32 v31, s0, 40'); R_('v_writelane_b32 v31, s1, 41'); R_('v_mov_b32 v30, 0'); R_('s_mov_b32 s3, 0'); R_('v_writelane_b32 v31, s3, 42')
    R_('L_again:')
A('s_load_dwordx16 s[4:19], s[0:1], 0')
A('s_load_dwordx8 s[20:27], s[0:1], 64')
A('s_load_dwordx2 s[28:29], s[0:1], 96')
A(f's_getpc_b64 {sp(sTM)}')
A(f'v_lshrrev_b32 v{vT}, 6, v0')
A(f'v_and_b32 v{vLANE}, 63, v0')
A(f'v_readfirstlane_b32 s{sWAVE}, v{vT}')
A(f's_bfe_u32 s{sJ}, s2, 0x30003')
A(f's_lshl_b32 s{sT2}, s{sJ}, 2')
A(f's_add_u32 s{sT2}, s{sT2}, s{sWAVE}')
A(f's_mul_i32 s{sT0}, s{sT2}, {CLW*128}')
A(f'v_lshlrev_b32 v{vTA}, 7, v{vLANE}')
A(f'v_add_u32 v{vT}, s{sT0}, v{vTA}')
A(f's_mov_b64 exec, {hx((1<<CLW)-1)}')
vm(f'global_load_dword v{vTCH}, v{vT}, {sp(sTM)}', 'touch')
A('s_mov_b64 exec, -1')
A(f'v_lshlrev_b32 v{vOFF16}, 4, v{vLANE}')
A(f's_and_b32 s{sT0}, s2, 7')
A(f's_lshr_b32 s{sCQ}, s2, 6')
A(f's_lshl_b32 s{sCL}, s{sT0}, 2')
A(f's_add_u32 s{sCL}, s{sCL}, s{sCQ}')
A(f's_lshl_b32 s{sR0}, s{sCL}, 6')
A(f's_lshr_b32 s{sIW}, s2, 3')
A(f's_lshl_b32 s{sIW}, s{sIW}, 2')
A(f's_add_u32 s{sIW}, s{sIW}, s{sWAVE}')
A(f'v_lshrrev_b32 v{vT+2}, 2, v{vLANE}')
A(f'v_mul_u32_u24 v{vTM}, 6144, v{vT+2}')
A(f'v_and_b32 v{vT+2}, 3, v{vLANE}')
A(f'v_lshl_add_u32 v{vTM}, v{vT+2}, 7, v{vTM}')
A(f's_mul_i32 s{sLN+1}, s{sIW}, {4*6144}')
A(f's_lshl_b32 s{sT1}, s{sT0}, 9')
A(f's_add_u32 s{sWMB}, s{sLN+1}, s{sT1}')
A(f's_lshl_b32 s{sT1}, s{sT0}, 8')
A(f's_add_u32 s{sLN+1}, s{sLN+1}, s{sT1}')
sRL = [sG, sG+1, sG+2]; sRG = [sLN+4, sLN+5, sLN+6]
A(f's_mul_i32 s{sRL[0]}, s{sJ}, 10')
A(f's_add_u32 s{sRL[0]}, s{sRL[0]}, s{sWAVE}')
A(f's_add_u32 s{sRL[1]}, s{sRL[0]}, 4')
A(f's_add_u32 s{sRL[2]}, s{sRL[0]}, 8')
A(f's_min_u32 s{sRL[2]}, s{sRL[2]}, 79')
for k in range(3):
    A(f's_add_u32 s{sRG[k]}, s{sRL[k]}, s{sR0}')
    A(f's_sub_u32 s{sRG[k]}, s{sRG[k]}, 16')
    A(f's_max_i32 s{sRG[k]}, s{sRG[k]}, 0')
    A(f's_lshl_b32 s{sRG[k]}, s{sRG[k]}, 10')
A(f's_lshl_b32 s{sP}, s{sT0}, 3')
A(f's_min_u32 s{sT1}, s{sCQ}, 2')
A(f's_lshl_b32 s{sT1}, s{sT1}, 3')
A(f's_add_u32 s{sT1}, s{sT1}, 56')
A(f's_add_u32 s{sT1}, s{sT1}, s{sP}')
A(f's_cmp_eq_u32 s{sCQ}, 0')
A(f's_cselect_b32 s{sT1}, 0, s{sT1}')
A(f's_add_u32 s{sP}, s{sP}, s{sT1}')
A(f's_add_u32 s{sP}, s{sP}, s{sJ}')
A(f's_lshl_b32 s{sGW}, s2, 2')
A(f's_add_u32 s{sGW}, s{sGW}, s{sWAVE}')
A(f's_mul_i32 s{sT1}, s{sGW}, {12*128}')
A(f'v_add_u32 v{vTQ}, s{sT1}, v{vTA}')
A(f's_mul_i32 s{sT1}, s{sIW}, {12*1024}')
A(f's_add_u32 s{sT1}, s{sT1}, {hx(384 - 12*1024)}')
A(f'v_lshl_add_u32 v{vT+2}, v{vLANE}, 10, s{sT1}')
A(f'v_cmp_lt_u32 vcc, 11, v{vLANE}')
A(f'v_lshrrev_b32 v{vT+1}, 1, v{vLANE}')
A(f's_lshl_b32 s{sT0}, s{sWAVE}, 8')
A(f'v_cndmask_b32 v{vTQ}, v{vTQ}, v{vT+2}, vcc')
A(f'v_mul_u32_u24 v{vWMO}, {4*6144}, v{vT+1}')
A(f'v_lshl_add_u32 v{vT+1}, v{vT+1}, 3, s{sT0}')
A(f'v_mov_b32 v{vT+3}, 0')
A('s_waitcnt lgkmcnt(0)')
A(f's_mov_b64 s[0:1], {sp(sTM)}')
stamp('kernarg')
if STAMP:
    R_(f's_memrealtime {sp(sTM)}'); R_('s_waitcnt lgkmcnt(0)'); R_(f'v_writelane_b32 v31, s{sTM}, 28')
mk_srd(SWMOD, 22, 512*3072*2)
A('s_mov_b64 exec, 0x3333')
vm(f'buffer_load_dword v{vTCH}, v{vTM}, {srd(SWMOD)}, s{sLN+1} offen', 'touch')
A('s_mov_b64 exec, -1')
mk_srd(SWS, 28, WS_SIZE)
vE, vCV = vT+4, 62
vm(f'buffer_load_dword v{vE}, v{vT+3}, {srd(SWS)}, 0 offen sc1', 'E')
vm(f'global_load_dwordx2 {vr(vCV,2)}, v{vT+1}, {sp(sC)}', 'E')
mk_srd(SWQKV, 6, 512*1536*2)
A('s_mov_b64 exec, 0xffffff')
vm(f'buffer_load_dword v{vTCH}, v{vTQ}, {srd(SWQKV)}, 0 offen', 'touch')
A('s_mov_b64 exec, -1')
mk_srd(SWO, 8, 512*512*2)
A(f's_lshl_b32 s{sT0}, s{sGW}, 9')
A(f'v_add_u32 v{vTQ}, s{sT0}, v{vTA}')
A(f's_lshl_b32 s{sT0}, s{sIW}, 12')
A(f's_add_u32 s{sT0}, s{sT0}, {hx(384 - 4*1024)}')
A(f'v_lshl_add_u32 v{vT+2}, v{vLANE}, 10, s{sT0}')
A(f'v_cmp_lt_u32 vcc, 3, v{vLANE}')
A(f'v_cndmask_b32 v{vTQ}, v{vTQ}, v{vT+2}, vcc')
A('s_mov_b64 exec, 0xff')
vm(f'buffer_load_dword v{vTCH}, v{vTQ}, {srd(SWO)}, 0 offen', 'touch')
A('s_mov_b64 exec, -1')
mk_srd(SX, 4, 2048*512*2)
mk_srd(SW1, 12, 512*1376*2)
mk_srd(SW2, 16, 1376*512*2)
mk_srd(SOUT, 24, 2048*512*2)
A(f's_mov_b32 s{sSPIN}, 0')
A(f's_mul_i32 s{sCB}, s{sCL}, {CLSZ}')
A(f's_add_u32 s{sCB}, s{sCB}, {WS_CL}')
A(f's_getreg_b32 s{sXCC}, hwreg(HW_REG_XCC_ID)')
A(f's_and_b32 s{sXCC}, s{sXCC}, 15')
A(f's_mul_i32 s{sWM}, s{sWAVE}, {128*6144}')
A(f's_lshl_b32 s{sT1}, s{sP}, 5')
A(f's_add_u32 s{sWM}, s{sWM}, s{sT1}')
t0, t1, t2, t3 = vT, vT+1, vT+2, vT+3
vRR, vC8, vFSW, vL8 = 92, 93, 94, 95
A(f'v_and_b32 v{t3}, 1, v{vLANE}')
A(f'v_lshl_add_u32 v{vWMO}, v{t3}, 4, v{vWMO}')
A(f'v_and_b32 v{vI}, 15, v{vLANE}')
A(f'v_lshrrev_b32 v{vG}, 4, v{vLANE}')
A(f'v_lshrrev_b32 v{t0}, 1, v{vG}')
A(f'v_and_b32 v{t1}, 1, v{vG}')
A(f'v_lshl_add_u32 v{t2}, v{t1}, 1, v{t0}')
A(f'v_lshl_add_u32 v{t2}, v{t3}, 3, v{t2}')
A(f's_lshl_b32 s{sT0}, s{sWAVE}, 6')
A(f's_add_u32 s{sT0}, s{sT0}, {L_P0S}')
A(f'v_lshl_add_u32 v{vP0A}, v{t2}, 2, s{sT0}')
A(f'v_and_b32 v{t3}, 7, v{vLANE}')
A(f'v_lshlrev_b32 v{vFLO}, 2, v{t3}')
A(f'v_lshlrev_b32 v{t3}, 4, v{t3}')
A(f'v_lshlrev_b32 v{t2}, 5, v{t1}')
A(f'v_xor_b32 v{t3}, v{t3}, v{t2}')
A(f'v_lshrrev_b32 v{vL8}, 3, v{vLANE}')
A(f's_and_b32 s{sT2}, s{sWAVE}, 1')
A(f's_lshl_b32 s{sT2}, s{sT2}, 6')
A(f'v_xor_b32 v{t1}, s{sT2}, v{t3}')
A(f'v_mul_u32_u24 v{vDQ}, 3072, v{vL8}')
A(f'v_add_u32 v{vDQ}, v{vDQ}, v{t1}')
A(f's_mul_i32 s{sSOFF}, s{sWAVE}, {8*3072}')
A(f's_lshl_b32 s{sT0}, s{sJ}, 7')
A(f's_add_u32 s{sSOFF}, s{sSOFF}, s{sT0}')
A(f's_mul_i32 s{sSLDS}, s{sWAVE}, 3072')
vWM = 96
def wmod_load_units(dst, tag, kind):
    U = []
    for n in range(4):
        U.append((f's_add_u32 s{sD0}, s{sWM}, {6144*n}', None, None))
        U.append((f'buffer_load_dwordx4 {vr(dst+4*n,4)}, v{vWMO}, {srd(SWMOD)}, s{sD0} offen', kind, tag))
    return U
l0 = label('Lnt')
R_(f's_sub_u32 s{sT1}, s{sCQ}, 1')
R_(f's_cmp_gt_u32 s{sT1}, 1')
R_(f's_cbranch_scc1 {l0}')
R_(f's_and_b32 s{sD0}, s{sP}, 3')
R_(f's_mul_i32 s{sD0}, s{sD0}, 6144')
R_(f's_add_u32 s{sD0}, s{sD0}, s{sWM}')
E0(f'buffer_load_dword v{vTCH}, v{vWMO}, {srd(SWMOD)}, s{sD0} offen', 'vm0', 'touch')
R_(f'{l0}:')
A(f'v_lshl_add_u32 v{vDW}, v{vL8}, 10, v{t3}')
A(f'v_xor_b32 v{vDW+1}, 64, v{vDW}')
A(f'v_add_u32 v{vDW+1}, 7168, v{vDW+1}')
A(f'v_add_u32 v{vDW+2}, {2*7168}, v{vDW}')
A(f'v_add_u32 v{vDW+3}, {2*7168}, v{vDW+1}')
A(f'v_lshl_add_u32 v{vDWO}, v{vL8}, 10, v{t1}')
A(f's_lshl_b32 s{sWOFF}, s{sWAVE}, 13')
A(f's_add_u32 s{sWOFF}, s{sWOFF}, s{sT0}')
A(f's_lshl_b32 s{sWLDS}, s{sWAVE}, 10')
A(f's_lshl_b32 s{sW4}, s{sWAVE}, 12')
A(f'v_mov_b32 v{vONE}, 0x3f803f80')
A(f'v_bfe_u32 v{vRR}, v{vLANE}, 2, 2')
A(f'v_lshrrev_b32 v{t1}, 1, v{vRR}')
A(f'v_and_b32 v{t2}, 1, v{vG}')
A(f'v_lshl_add_u32 v{vFSW}, v{t2}, 1, v{t1}')
A(f'v_and_b32 v{vC8}, 3, v{vLANE}')
A(f'v_lshlrev_b32 v{vC8}, 3, v{vC8}')
A(f'v_mul_u32_u24 v{t2}, 3072, v{vG}')
A(f'v_lshl_add_u32 v{t2}, v{vRR}, 7, v{t2}')
A(f'v_add_u32 v{t2}, v{t2}, v{vC8}')
A(f'v_xor_b32 v{t1}, s{sWAVE}, v{vFSW}')
A(f'v_lshl_add_u32 v{vTRQA}, v{t1}, 5, v{t2}')
A(f'v_add_u32 v{vTRQ}, {L_B}, v{vTRQA}')
A(f'v_lshl_add_u32 v{t3}, v{vG}, 3, v{vRR}')
A(f'v_lshl_add_u32 v{t2}, v{t3}, 7, v{vC8}')
A(f'v_add_u32 v{t2}, {L_B}, v{t2}')
for c in range(4):
    A(f's_add_u32 s{sT1}, s{sWAVE}, {c}')
    A(f's_and_b32 s{sT1}, s{sT1}, 3')
    A(f'v_xor_b32 v{t1}, s{sT1}, v{vFSW}')
    A(f'v_lshl_add_u32 v{vTRW+c}, v{t1}, 5, v{t2}')
A(f'v_mul_u32_u24 v{t0}, 384, v{t3}')
A(f'v_add_u32 v{t0}, v{t0}, v{vC8}')
A(f'v_add_u32 v{t0}, {L_B}, v{t0}')
A(f's_mul_i32 s{sT1}, s{sWAVE}, 3')
A(f's_mul_i32 s{sHB}, s{sJ}, 12')
A(f's_min_u32 s{sHB}, s{sHB}, 74')
A(f's_mul_i32 s{sS1OFF}, s{sWAVE}, {8*2752}')
A(f's_lshl_b32 s{sT0}, s{sHB}, 5')
A(f's_add_u32 s{sS1OFF}, s{sS1OFF}, s{sT0}')
A(f's_add_u32 s{sHB}, s{sHB}, s{sT1}')
A(f's_lshl_b32 s{sB1O}, s{sHB}, 5')
A(f's_lshl_b32 s{sHB}, s{sHB}, 9')
A(f's_add_u32 s{sHB}, s{sHB}, s{sCB}')
for tt in range(3):
    A(f'v_xor_b32 v{t1}, s{sT1}, v{vFSW}')
    A(f'v_lshl_add_u32 v{vTR1+tt}, v{t1}, 5, v{t0}')
    if tt < 2: A(f's_add_u32 s{sT1}, s{sT1}, 1')
for k in range(3):
    A(f's_and_b32 s{sT0}, s{sRL[k]}, 15')
    A(f's_lshl_b32 s{sT1}, s{sRL[k]}, 10')
    if k == 2:
        A(f's_cmp_lt_u32 s{sWAVE}, 2')
        A(f's_cselect_b32 s{sT1}, s{sT1}, 0x7ff00000')
    A(f'v_xor_b32 v{t0}, s{sT0}, v{vLANE}')
    A(f'v_lshl_add_u32 v{vHS+k}, v{t0}, 4, s{sT1}')
A(f'v_lshlrev_b32 v{t1}, 10, v{vI}')
A(f'v_lshl_add_u32 v{vXO}, v{vG}, 3, v{t1}')
for m in range(4):
    A(f'v_add_u32 v{t0}, {4*m}, v{vG}')
    A(f'v_xor_b32 v{t0}, v{t0}, v{vI}')
    A(f'v_lshl_add_u32 v{vAR+m}, v{t0}, 4, v{t1}')
    A(f'v_add_u32 v{vAR4+m}, 0x10000, v{vAR+m}')
for n in range(3):
    A(f'v_add_u32 v{t0}, {64*n}, v{vLANE}')
    A(f'v_mul_u32_u24 v{t1}, 2731, v{t0}')
    A(f'v_lshrrev_b32 v{t1}, 16, v{t1}')
    A(f'v_mul_u32_u24 v{t2}, 24, v{t1}')
    A(f'v_sub_u32 v{t2}, v{t0}, v{t2}')
    A(f'v_lshlrev_b32 v{t2}, 4, v{t2}')
    A(f'v_bfe_u32 v{t3}, v{t1}, 1, 1')
    A(f'v_lshlrev_b32 v{t3}, 5, v{t3}')
    A(f'v_xor_b32 v{t2}, v{t2}, v{t3}')
    A(f'v_xor_b32 v{t2}, s{sT2}, v{t2}')
    A(f'v_mul_u32_u24 v{t1}, 2752, v{t1}')
    A(f'v_add_u32 v{vD1+n}, v{t1}, v{t2}')
    if n: A(f'v_subrev_u32 v{vD1+n}, {n*1024}, v{vD1+n}')
A(f's_cmp_eq_u32 s{sWAVE}, 3')
A(f's_cselect_b32 s{sT0}, 0x7ffffff0, 0')
A(f'v_or_b32 v{vLAST}, s{sT0}, v{vOFF16}')
A(f's_mov_b32 s{sMSK}, 0x7f800000')
A(f's_cmp_eq_u32 s{sCL}, 0')
A(f's_cselect_b32 s{sMSK}, {hx(f2u(-4e9))}, s{sMSK}')
A(f'v_lshlrev_b32 v{t0}, 2, v{vG}')
for r in range(4):
    A(f'v_add_u32 v{t1}, {r}, v{t0}')
    A(f'v_cmp_le_u32 {sp(4+2*r)}, v{t1}, v{vI}')
A(f'v_and_b32 v{t1}, 1, v{vI}')
A(f'v_cmp_eq_u32 {sp(12)}, 1, v{t1}')
A(f'v_mov_b32 v{t2}, 0xffff')
A(f'v_mov_b32 v{t3}, 0xffff0000')
A(f'v_cndmask_b32 v{t2}, v{t2}, v{t3}, {sp(12)}')
A(f'v_add_u32 v{t1}, v{t1}, v{t0}')
for k in range(2):
    A(f'v_cmp_le_u32 vcc, v{t1}, v{vI}')
    A(f'v_cndmask_b32 v{vM+2+k}, 0, v{t2}, vcc')
    A(f'v_xor_b32 v{vM+k}, v{vM+2+k}, v{t2}')
    if k == 0: A(f'v_add_u32 v{t1}, 2, v{t1}')
A(f'v_lshrrev_b32 v{t0}, 1, v{vG}')
A(f'v_and_b32 v{t1}, 1, v{vG}')
A(f'v_lshlrev_b32 v{t0}, 8, v{t0}')
A(f'v_lshl_add_u32 v{t0}, v{vI}, 4, v{t0}')
A(f'v_lshl_add_u32 v{vPO}, v{t1}, 14, v{t0}')
A(f'v_mul_u32_u24 v{t1}, {HRT}, v{t1}')
A(f'v_add_u32 v{vPH}, v{t1}, v{t0}')
A(f's_lshl_b32 s{sOST}, s{sJ}, 11')
A(f's_lshl_b32 s{sT1}, s{sWAVE}, 9')
A(f's_add_u32 s{sOST}, s{sOST}, s{sT1}')
A(f's_add_u32 s{sOST}, s{sOST}, s{sCB}')
A(f's_add_u32 s{sFL}, s{sCB}, {C_FLAG}')
A(f's_lshl_b32 s{sT0}, s{sJ}, 2')
A(f'v_mov_b32 v{vZ}, s{sT0}')
A(f's_lshl_b32 s{sT0}, s{sJ}, 7')
A(f's_lshl_b32 s{sT1}, s{sWAVE}, 5')
A(f's_add_u32 s{sT0}, s{sT0}, s{sT1}')
A(f's_lshl_b32 s{sXO}, s{sR0}, 10')
A(f's_add_u32 s{sXO}, s{sXO}, s{sT0}')
A(f's_add_u32 s{sT0}, s{sT0}, {L_MODT}')
A(f'v_lshl_add_u32 v{vMC}, v{vG}, 3, s{sT0}')
A(f'v_lshlrev_b32 v{vO8}, 3, v{vLANE}')
A(f's_lshl_b32 s{sSB}, s{sWAVE}, 8')
A(f's_add_u32 s{sSB}, s{sSB}, s{sCB}')
A(f's_add_u32 s{sSB}, s{sSB}, {C_ST}')
A(f'v_mul_u32_u24 v{vSTA}, 6144, v{vG}')
A(f'v_lshl_add_u32 v{vSTA}, v{vI}, 4, v{vSTA}')
A(f'v_lshrrev_b32 v{t0}, 2, v{vI}')
A(f'v_mov_b32 v{vXA}, {L_ONES}')
A(f'v_mov_b32 v{t2}, {L_MODT+4*1024}')
A(f'v_cmp_eq_u32 vcc, 0, v{t0}')
A(f'v_cndmask_b32 v{vXA}, v{vXA}, v{t2}, vcc')
A(f'v_mov_b32 v{t2}, {L_MODT+3*1024}')
A(f'v_cmp_eq_u32 vcc, 1, v{t0}')
A(f'v_cndmask_b32 v{vXA}, v{vXA}, v{t2}, vcc')
A(f'v_lshl_add_u32 v{vXA}, v{vG}, 4, v{vXA}')
A(f's_lshl_b32 s{sGX}, s{sCL}, 6')
A(f's_add_u32 s{sGX}, s{sGX}, {WS_XCC}')
A(f's_lshl_b32 s{sGM}, s{sWAVE}, 11')
A(f's_add_u32 s{sGM}, s{sGM}, {WS_MOD + 4096}')
vTP, vTW2 = 252, 178
A(f'v_bfe_u32 v{t0}, v{vLANE}, 2, 2')
A(f'v_mul_u32_u24 v{t0}, 6144, v{t0}')
A(f'v_and_b32 v{t1}, 3, v{vLANE}')
A(f'v_lshl_add_u32 v{vTP}, v{t1}, 7, v{t0}')
A(f's_mul_i32 s{sT0}, s{sGW}, {11*128}')
A(f'v_min_u32 v{t0}, {10*128}, v{vTA}')
A(f'v_add_u32 v{vTP+1}, s{sT0}, v{t0}')
A(f'v_lshl_add_u32 v{vTP+2}, v{vI}, 1, s{sB1O}')
A(f's_lshl_b32 s{sT0}, s{sJ}, 7')
A(f'v_min_u32 v{t0}, 31, v{vLANE}')
A(f'v_lshl_add_u32 v{vTP+3}, v{t0}, 2, s{sT0}')
A(f's_mul_i32 s{sT0}, s{sIW}, {11*1024}')
A(f's_add_u32 s{sT0}, s{sT0}, {hx(384 - 11*1024)}')
A(f'v_min_u32 v{t0}, 21, v{vLANE}')
A(f'v_lshl_add_u32 v{t0}, v{t0}, 10, s{sT0}')
A(f'v_cmp_lt_u32 vcc, 10, v{vLANE}')
A(f'v_cndmask_b32 v{vTW2}, v{vTP+1}, v{t0}, vcc')
vON = 180
for r in range(4): A(f'v_mov_b32 v{vON+r}, 0x3f803f80')
A(f'v_add_u32 v{t1}, {L_ONES}, v{vOFF16}')
lg(f'ds_write_b128 v{t1}, {vr(vON,4)}', 'ones')
stamp('setup', 1)
l0 = label('Lnw')
R_(f's_cmp_eq_u32 s{sCQ}, 3')
R_(f's_cbranch_scc1 {l0}')
for u in wmod_load_units(vWM, 'wmodA', 'vm0'): emit(u)
R_(f'{l0}:')

def q_lds(n):
    if n == 0: return 65536
    if n <= 5: return L_B + (n-1)*12288
    if n <= 11: return L_A1 + (n-6)*12288
    return L_B + (n-12)*12288
def q_enq(n):
    for p in range(3):
        bg_dma(f's_add_u32 m0, s{sSLDS}, {q_lds(n)}', f's_add_u32 s{sD0}, s{sSOFF}, {n*32*3072}',
               f'buffer_load_dwordx4 v{vDQ}, {srd(SWQKV)}, s{sD0} offen offset:{p*1024} lds', f'q{n}')
def q_read(lo_, hi_, E):
    for n in range(lo_, hi_):
        for p in range(3):
            a = 64*p + 4*n
            base, off = (vTRQA, q_lds(n) - L_A1) if q_lds(n) < L_B else (vTRQ, q_lds(n) - L_B)
            if n == 0: base, off = vT+2, 0
            off += p*1024
            E(f'ds_read_b64_tr_b16 {ar(a,2)}, v{base} offset:{off}', 'lg', f'qr{n}')
            E(f'ds_read_b64_tr_b16 {ar(a+2,2)}, v{base} offset:{off+512}', 'lg', f'qr{n}')
def wo_enq(kk):
    bg_dma(f's_add_u32 m0, s{sWLDS}, {L_A1 + kk*4096}', f's_add_u32 s{sD0}, s{sWOFF}, {kk*32*1024}',
           f'buffer_load_dwordx4 v{vDWO}, {srd(SWO)}, s{sD0} offen lds', 'wo')

for kk in range(opt('xat', 4)): wo_enq(kk)
for k in range(3):
    bg(f'buffer_load_dwordx4 {vr(vXR0+8*k+4,4)}, v{vOFF16}, {srd(SX)}, s{sRG[k]} offen', 'vm', 'x')
for kk in range(opt('xat', 4), 16): wo_enq(kk)
for n in range(6): q_enq(n)
bg_pop(opt('pre0', 2))
wait('E')
stamp('E', 1)
A(f'v_readfirstlane_b32 s{sTAG}, v{vE}')
A(f's_mul_i32 s{sTAG}, s{sTAG}, 1664525')
A(f's_add_u32 s{sTAG}, s{sTAG}, 1013904223')
if TWICE:
    R_(f'v_readlane_b32 s{sT0}, v31, 42'); R_('s_nop 3'); R_(f's_add_u32 s{sTAG}, s{sTAG}, s{sT0}')
unpack(vS, vCV); unpack(vS+2, vCV+1)
for n in range(4): A(f'v_mul_f32 v{88+n}, {hx(f2u(-LOG2E))}, v{vS+n}')
for n in range(4): A(f'v_exp_f32 v{88+n}, v{88+n}')
for n in range(4): A(f'v_add_f32 v{88+n}, 1.0, v{88+n}')
for n in range(4): A(f'v_rcp_f32 v{88+n}, v{88+n}')
for n in range(4): A(f'v_mul_f32 v{vS+n}, v{vS+n}, v{88+n}')
A(f'v_cvt_pk_bf16_f32 v88, v{vS}, v{vS+1}')
A(f'v_cvt_pk_bf16_f32 v89, v{vS+2}, v{vS+3}')
unpack(vS, 88); unpack(vS+2, 89)
def p0_body(E, wm, ac, tp, pk=True):
    for n in range(4):
        for d in range(4): unpack(tp+2*d, wm+4*n+d, E)
        for d in range(4):
            if not pk:
                for h in range(2):
                    E(f'{"v_mul_f32" if n == 0 else "v_fmac_f32"} v{ac+2*d+h}, v{tp+2*d+h}, v{vS+n}')
            elif n == 0: E(f'v_pk_mul_f32 {vr(ac+2*d,2)}, {vr(tp+2*d,2)}, {vr(vS,2)} op_sel_hi:[1,0]')
            else:
                b = vS + (n & 2); o = n & 1
                E(f'v_pk_fma_f32 {vr(ac+2*d,2)}, {vr(tp+2*d,2)}, {vr(b,2)}, {vr(ac+2*d,2)} op_sel:[0,{o},0] op_sel_hi:[1,{o},1]')
    for e in (0, 2, 4, 6): E(f'v_permlane32_swap_b32 v{ac+e}, v{ac+e+1}')
    for e in (0, 2, 4, 6): E(f'v_add_f32 v{ac+e}, v{ac+e}, v{ac+e+1}')
    for e in (0, 4): E(f'v_permlane16_swap_b32 v{ac+e}, v{ac+e+2}')
    for e in (0, 4): E(f'v_add_f32 v{ac+e}, v{ac+e}, v{ac+e+2}')
    for n in (8, 4, 2):
        ror_add(ac, n, E); ror_add(ac+4, n, E)
    E(f'ds_write_b32 v{vP0A}, v{ac}', 'lg', 'p0w')
    E(f'ds_write_b32 v{vP0A}, v{ac+4} offset:16', 'lg', 'p0w')
def p0_publish(tb):
    R_(f'v_lshlrev_b32 v{tb+8}, 1, v{vFLO}')
    R_(f'v_add_u32 v{tb+9}, {L_P0S}, v{tb+8}')
    R_(f's_lshl_b32 s{sT0}, s{sP}, 6')
    for w in range(4): R_(f'ds_read_b64 {vr(tb+2*w,2)}, v{tb+9} offset:{64*w}')
    R_(f's_add_u32 s{sT0}, s{sT0}, {WS_MOD}')
    R_('s_waitcnt lgkmcnt(0)')
    R_(f'v_pk_add_f32 {vr(tb,2)}, {vr(tb,2)}, {vr(tb+2,2)}')
    R_(f'v_pk_add_f32 {vr(tb+4,2)}, {vr(tb+4,2)}, {vr(tb+6,2)}')
    R_(f'v_pk_add_f32 {vr(tb,2)}, {vr(tb,2)}, {vr(tb+4,2)}')
    R_(f'v_cvt_pk_bf16_f32 v{tb}, v{tb}, v{tb+1}')
    R_(f'v_mov_b32 v{tb+1}, s{sTAG}')
    R_(f's_mov_b64 exec, 0xff')
    R_(f'buffer_store_dwordx2 {vr(tb,2)}, v{tb+8}, {srd(SWS)}, s{sT0} offen sc1')
    R_(f's_mov_b64 exec, -1')
l0 = label('Lp0e')
R_(f's_cmp_eq_u32 s{sCQ}, 3')
R_(f's_cbranch_scc1 {l0}')
saveV, saveL, saveB = list(VM.q), list(LG.q), list(BG.q)
wait('wmodA')
bg_on(opt('ip0', 60))
p0_body(A, vWM, 112, 120)
bg_off()
npop = len(saveB) - len(BG.q)
l3 = label('Lp0j')
R_(f's_branch {l3}')
R_(f'{l0}:')
VM.q, LG.q = saveV, saveL
for u in saveB[:npop]: emit(u)
R_(f'{l3}:')
wait_all_lg()
R_('s_barrier')
l0, l1 = label('Lpub0'), label('Lpub0')
R_(f's_cmp_lg_u32 s{sWAVE}, 0')
R_(f's_cbranch_scc1 {l0}')
R_(f's_cmp_eq_u32 s{sCQ}, 3')
R_(f's_cbranch_scc1 {l1}')
p0_publish(vWM)
R_(f'{l1}:')
R_(f'v_mov_b32 v{vT+2}, s{sTAG}')
R_(f'v_mov_b32 v{vT+1}, s{sXCC}')
R_(f'v_lshlrev_b32 v{vT}, 1, v{vZ}')
R_('s_mov_b64 exec, 1')
R_(f'buffer_store_dwordx2 {vr(vT+1,2)}, v{vT}, {srd(SWS)}, s{sGX} offen sc1')
R_('s_mov_b64 exec, -1')
R_(f'{l0}:')
stamp('p0 early done')
bg_pop(opt('qpre', 12))
bg_on(opt('iln', 60))
wait('x')
sa = [88, 89, 90, 91]; sq = [92, 93, 94, 95]
for d in range(4):
    for q in range(3):
        A(f'v_dot2_f32_bf16 v{sa[q]}, v{vXR0+8*q+4+d}, v{vONE}, {"0" if d==0 else "v%d"%sa[q]}')
    for q in range(3):
        A(f'v_dot2_f32_bf16 v{sq[q]}, v{vXR0+8*q+4+d}, v{vXR0+8*q+4+d}, {"0" if d==0 else "v%d"%sq[q]}')
A(f'v_mov_b32 v{sa[3]}, 0'); A(f'v_mov_b32 v{sq[3]}, 0')
U = []
for q in range(3):
    for d in range(4): unpack(vXR0+8*q+2*d, vXR0+8*q+4+d, U.append)
C = []
red32(sa[0], sa[2], C.append); red32(sa[1], sa[3], C.append); red32(sq[0], sq[2], C.append); red32(sq[1], sq[3], C.append)
red16(sa[0], sa[1], C.append); red16(sq[0], sq[1], C.append)
for n in (8, 4, 2, 1):
    ror_add(sa[0], n, C.append); ror_add(sq[0], n, C.append)
C.append(f'v_mul_f32 v{sa[0]}, {hx(f2u(1/512))}, v{sa[0]}')
C.append(f'v_mul_f32 v{sq[0]}, {hx(f2u(1/512))}, v{sq[0]}')
C.append(f'v_fma_f32 v{sq[0]}, -v{sa[0]}, v{sa[0]}, v{sq[0]}')
C.append(f'v_max_f32 v{sq[0]}, 0, v{sq[0]}')
C.append(f'v_add_f32 v{sq[0]}, {hx(f2u(1e-5))}, v{sq[0]}')
C.append(f'v_rsq_f32 v{sq[0]}, v{sq[0]}')
C.append(f'v_mul_f32 v{sa[0]}, -v{sa[0]}, v{sq[0]}')
for q in range(3):
    C.append(f'v_readlane_b32 s{sLN+2*q}, v{sq[0]}, {16*q}')
    C.append(f'v_readlane_b32 s{sLN+2*q+1}, v{sa[0]}, {16*q}')
while C:
    if U: A(U.pop(0))
    A(C.pop(0))
for q in range(3):
    b = vXR0 + 8*q
    for d in range(4):
        A(f'v_pk_fma_f32 {vr(b+2*d,2)}, {vr(b+2*d,2)}, {sp(sLN+2*q)}, {sp(sLN+2*q)} op_sel:[0,0,1] op_sel_hi:[1,0,1]')
bg_off()
stamp('ln done', 1)
vG1R, vXC, vGS = 128, 144, 148
A(f'v_lshlrev_b32 v{vT+5}, 5, v{vLANE}')
A(f'v_lshlrev_b32 v{vT+4}, 1, v{vFLO}')
A(f's_mov_b32 s{sT2}, {WS_MOD}')
def gather1_issue(E):
    for n in range(4):
        E(f'buffer_load_dwordx4 {vr(vG1R+4*n,4)}, v{vT+5}, {srd(SWS)}, s{sT2} offen offset:{(n>>1)*2048 + (n&1)*16} sc1', 'vm', 'g1')
    E(f'buffer_load_dwordx2 {vr(vXC,2)}, v{vT+4}, {srd(SWS)}, s{sGX} offen sc1', 'vm', 'g1')
A(f'v_add_u32 v{vT+2}, 0x10000, v{vTRQA}')
A(f'v_subrev_u32 v{vT+3}, {L_B}, v{vTRW}')
NG = opt('ng', 4)
k_ = max(i_ for i_, u in enumerate(BG.q) if u[2] == f'q{NG}') + 1
rest = list(BG.q)[k_:]
for _ in rest: BG.q.pop()
gather1_issue(bg)
bg(f'buffer_load_dword v{vTCH}, v{vFLO}, {srd(SWS)}, s{sFL} offen sc1', 'vm', 'touch')
bg(f'buffer_load_dword v{vTCH}, v{vFLO}, {srd(SWS)}, s{sFL} offen offset:128 sc1', 'vm', 'touch')
BG.q.extend(rest)
IR = opt('ird', 44)
QS = dict(read=0, enq=6)
def q_pred(m): return 0 if m <= 11 else m - 11
def q_pre(until, landed):
    bg_until(f'q{min(until, QS["enq"]-1)}')
    wait(f'q{landed}', f'qr{QS["read"]-1}')
def q_post(landed, pace=True):
    while QS['enq'] < 16 and q_pred(QS['enq']) < QS['read']:
        q_enq(QS['enq']); QS['enq'] += 1
    if pace: bg_pop(opt('qpp', 2)); bg_on(IR)
    if QS['read'] == 0:
        for k2 in range(16):
            lg(f'ds_read_b64_tr_b16 {ar(192+4*k2,2)}, v{vT+3} offset:{k2*4096}', 'wor')
            lg(f'ds_read_b64_tr_b16 {ar(194+4*k2,2)}, v{vT+3} offset:{k2*4096+512}', 'wor')
    q_read(QS['read'], landed + 1, A)
    QS['read'] = max(QS['read'], landed + 1)
    bg_off()
def qbar(name, until, landed):
    until, landed = opt(name + 'u', until), opt(name + 'l', landed)
    q_pre(until, landed); R_('s_barrier'); stamp(name, 1); q_post(landed)
qbar('B1', 3, 0)
qbar('B2', 5, 1)
bg_until(f'q{opt("gq_", 9)}')
def tag_check(regs, t):
    R_(f'v_xor_b32 v{t}, s{sTAG}, v{regs[0]}')
    for r in regs[1:]:
        R_(f'v_xor_b32 v{t+1}, s{sTAG}, v{r}')
        R_(f'v_or_b32 v{t}, v{t}, v{t+1}')
    R_(f'v_cmp_ne_u32 vcc, 0, v{t}')
def checked(tag, issue, regs):
    wait(tag)
    lp, ld = label('Lg'), label('Lgok')
    tag_check(regs, vT)
    R_(f's_cbranch_vccz {ld}')
    R_(f'{lp}:')
    issue(lambda t, k, g: R_(t))
    R_('s_waitcnt vmcnt(0)')
    tag_check(regs, vT)
    R_(f's_cbranch_vccz {ld}')
    spin_guard(lp, ld)
checked('g1', gather1_issue, [vG1R+1+2*k for k in range(9)])
stamp('mod arrived')
for d in range(4): unpack(vGS+2*d, vG1R+8+2*d)
for d in range(4): A(f'v_pk_add_f32 {vr(vGS+2*d,2)}, {vr(vGS+2*d,2)}, 1.0 op_sel_hi:[1,0]')
for d in range(4):
    A(f'v_cvt_pk_bf16_f32 v{vG1R+8+2*d}, v{vGS+2*d}, v{vGS+2*d+1}')
    unpack(vGS+8+2*d, vG1R+2*d)
for d in range(4): unpack(vGS+2*d, vG1R+8+2*d)
A(f's_add_u32 s{sT2}, s{sCB}, {C_A}')
for q in range(3):
    b = vXR0 + 8*q
    for d in range(4): A(f'v_pk_fma_f32 {vr(b+2*d,2)}, {vr(b+2*d,2)}, {vr(vGS+2*d,2)}, {vr(vGS+8+2*d,2)}')
    for d in range(4): A(f'v_cvt_pk_bf16_f32 v{b+d}, v{b+2*d}, v{b+2*d+1}')
    vm(f'buffer_store_dwordx4 {vr(b,4)}, v{vHS+q}, {srd(SWS)}, s{sT2} offen sc1', 'st')
R_(f'v_cmp_ne_u32 vcc, s{sXCC}, v{vXC}')
R_(f's_cmp_eq_u64 vcc, 0')
R_(f's_cselect_b32 s{sLOCAL}, {0 if FORCE_GLOBAL else 1}, 0')
vG2 = 96
def gather2_issue(E):
    for n in range(2):
        E(f'buffer_load_dwordx4 {vr(vG2+4*n,4)}, v{vOFF16}, {srd(SWS)}, s{sGM} offen offset:{n*1024} sc1', 'vm', 'g2')
gather2_issue(E0)
qbar('B3', 11, 5)
checked('g2', gather2_issue, [vG2+1, vG2+3, vG2+5, vG2+7])
R_(f's_cmp_eq_u32 s{sWAVE}, 2')
R_(f's_cselect_b32 s{sT1}, 1.0, 0')
for k in range(4):
    unpack(vT+2, vG2+2*k)
    A(f'v_add_f32 v{vT+2}, s{sT1}, v{vT+2}')
    A(f'v_add_f32 v{vT+3}, s{sT1}, v{vT+3}')
    A(f'v_cvt_pk_bf16_f32 v{vG2+8+k}, v{vT+2}, v{vT+3}')
A(f's_add_u32 s{sT0}, s{sWLDS}, {L_MODT + 2048}')
A(f'v_add_u32 v{vT+4}, s{sT0}, v{vO8}')
for n in range(2): lg(f'ds_write_b64 v{vT+4}, {vr(vG2+8+2*n,2)} offset:{n*512}', 'modw')
wait(None, 'modw')
q_pre(opt('B4u', 10), opt('B4l', 7))

def code_touch(E):
    E(f's_and_b32 s{sT0}, s{sIW}, 31')
    E(f's_mul_i32 s{sT0}, s{sT0}, {CLW*128}')
    E(f'v_min_u32 v{vT+1}, {(CLW-1)*128}, v{vTA}')
    E(f'v_add_u32 v{vT+1}, s{sT0}, v{vT+1}')
    E(f'global_load_dword v{vTCH}, v{vT+1}, s[0:1]', 'vm', 'touch')
def flag(h, tag, E=E0, ct=False):
    l, l2 = label('Lpub'), label('Lpub')
    R_(f's_cmp_lg_u32 s{sWAVE}, 0')
    R_(f's_cbranch_scc1 {l}')
    R_(f's_add_u32 s{sT1}, s{sTAG}, {h+1}')
    R_(f'v_mov_b32 v{vT}, s{sT1}')
    R_('s_mov_b64 exec, 1')
    R_(f's_cmp_eq_u32 s{sLOCAL}, 1')
    R_(f's_cbranch_scc1 {l2}')
    R_(f'buffer_store_dword v{vT}, v{vZ}, {srd(SWS)}, s{sFL} offen offset:{32*h} sc1')
    R_(f's_mov_b64 exec, -1')
    R_(f's_branch {l}')
    R_(f'{l2}:')
    R_(f'buffer_store_dword v{vT}, v{vZ}, {srd(SWS)}, s{sFL} offen offset:{32*h}')
    R_('s_mov_b64 exec, -1')
    R_(f'{l}:')
    R_(f'; pub {h}')
    if opt('pt', 1):
        for t in STORES[tag]: E(t, 'vm', 'touch')
    STORES[tag] = []
    if ct and opt('ct', 1): code_touch(E0)
def publish(h, tag='st', ltag=None, ct=True):
    wait(tag, ltag)
    R_('s_barrier')
    flag(h, tag, E0, ct)
def poll_issue(h, E=E0):
    E(f'buffer_load_dword v{vFLV}, v{vFLO}, {srd(SWS)}, s{sFL} offen offset:{32*h} sc1', 'vm', 'poll')
def poll_check(h):
    R_(f's_add_u32 s{sT1}, s{sTAG}, {h+1}')
    wait('poll')
    lp, ld = label('Lw'), label('Lwok')
    R_(f'v_cmp_ne_u32 vcc, s{sT1}, v{vFLV}')
    R_(f's_cbranch_vccz {ld}')
    R_(f'{lp}:')
    R_(f'buffer_load_dword v{vFLV}, v{vFLO}, {srd(SWS)}, s{sFL} offen offset:{32*h} sc1')
    R_('s_waitcnt vmcnt(0)')
    R_(f'v_cmp_ne_u32 vcc, s{sT1}, v{vFLV}')
    R_(f's_cbranch_vccz {ld}')
    spin_guard(lp, ld)
def await_(h):
    poll_issue(h); poll_check(h)
sQ = sLN
def tile_enq(rt, tag):
    for j in range(4):
        bg_dma(f's_add_u32 m0, s{sW4}, {L_A1 + rt*16384}', f's_add_u32 s{sD0}, s{sQ}, {rt*16384}',
               f'buffer_load_dwordx4 v{vOFF16}, {srd(SWS)}, s{sD0} offen offset:{j*1024} sc1 lds', f'{tag}{rt}')
A(f's_add_u32 s{sQ}, s{sT2}, s{sW4}')
publish(0)
stamp('h published')
q_post(opt('B4l', 7))
bg_until(f'q{opt("pq", 14)}')
poll_issue(0)
qbar('B5', 14, 11)
bg_flush()
vGA, vGB, vGP, vSP, vGG = 224, 228, 232, 236, 240
A(f'v_and_b32 v{vT+5}, {hx(~8)}, v{vMC}')
A(f'v_add_u32 v{vT+1}, {L_MODT}, v{vOFF16}')
lg(f'ds_read_b128 {vr(144,4)}, v{vT+1} offset:{4*1024}', 'c')
lg(f'ds_read_b128 {vr(148,4)}, v{vT+1} offset:{3*1024}', 'c')
lg(f'ds_read_b64 {vr(vGA+2,2)}, v{vMC} offset:{2*1024}', 'c')
lg(f'ds_read_b64 {vr(vGB+2,2)}, v{vMC} offset:{4*1024}', 'c')
lg(f'ds_read_b128 {vr(vGP,4)}, v{vT+5} offset:{4*1024}', 'c')
lg(f'ds_read_b128 {vr(vSP,4)}, v{vT+5} offset:{3*1024}', 'c')
wait(None, 'c')
q5 = [244, 245, 246, 247, 248]
for d in range(4):
    c = lambda r: '0' if d == 0 else f'v{r}'
    A(f'v_dot2_f32_bf16 v{q5[0]}, v{144+d}, v{vONE}, {c(q5[0])}')
    A(f'v_dot2_f32_bf16 v{q5[1]}, v{144+d}, v{144+d}, {c(q5[1])}')
    A(f'v_dot2_f32_bf16 v{q5[2]}, v{148+d}, v{vONE}, {c(q5[2])}')
    A(f'v_dot2_f32_bf16 v{q5[3]}, v{148+d}, v{148+d}, {c(q5[3])}')
    A(f'v_dot2_f32_bf16 v{q5[4]}, v{144+d}, v{148+d}, {c(q5[4])}')
L_ = lo
for b in (vGA, vGB):
    unpack(b, b+2, lo); unpack(b+2, b+3, lo)
red32(q5[0], q5[2], L_); red32(q5[1], q5[3], L_)
L_(f'v_mov_b32 v{q5[4]+1}, v{q5[4]}'); lo_gap(1)
red16(q5[0], q5[1], L_); red32(q5[4], q5[4]+1, L_)
L_(f'v_mov_b32 v{q5[4]+1}, v{q5[4]}'); lo_gap(1); red16(q5[4], q5[4]+1, L_)
for n in (8, 4, 2, 1):
    lo_gap(1); ror_add(q5[0], n, L_); ror_add(q5[4], n, L_)
L_(f'v_mul_f32 v{q5[0]}, {hx(f2u(1/512))}, v{q5[0]}')
L_(f'v_mul_f32 v{q5[4]}, {hx(f2u(1/512))}, v{q5[4]}')
for k in range(4): L_(f'v_readlane_b32 s{sG+k}, v{q5[0]}, {16*k}')
L_(f'v_readlane_b32 s{sG+4}, v{q5[4]}, 0')

poll_check(0)
stamp('hop h seen')
QL = opt('B6l', 13)
q_pre(15, QL); R_('s_barrier')
assert QS['read'] >= 12 and QS['enq'] == 16
vWB, vLA = 224, 240
def touch_batch():
    bg(f'buffer_load_dword v{vTCH}, v{vTP+1}, {srd(SW1)}, 0 offen', 'vm', 'touch')
    for tt in range(3): bg(f'global_load_ushort v{vBI+tt}, v{vTP+2}, {sp(sB1)} offset:{32*tt}', 'vm', 'b1')
    bg(f's_mov_b32 m0, {L_B2}')
    bg(f'global_load_lds_dword v{vTP+3}, {sp(sB2)}', 'vm', 'b2')
    bg(f'buffer_load_dword v{vTCH}, v{vZ}, {srd(SOUT)}, s{sXO} offen', 'vm', 'touch')
    BG.m0 = None
def w2_touch():
    bg(f'buffer_load_dword v{vTCH}, v{vTW2}, {srd(SW2)}, 0 offen', 'vm', 'touch')
TPOS = opt('tpos', 3)
for rt in range(TPOS): tile_enq(rt, 'a')
touch_batch()
if opt('w2t', 1) == 0: w2_touch()
for rt in range(TPOS, 5): tile_enq(rt, 'a')
bg_pop(opt('hpre', 14))
q_read(QS['read'], QL + 1, A)

NA = min(2, opt('na', 2))
def w1_lds(n):
    if n == 15: return 65536
    if 5 <= n < 5 + NA: return 32768 + (n - 5)*12288
    return L_B + ((n if n < 5 else n - NA) % 5)*12288
def w1_enq(*ns):
    for n in ns:
        for p in range(3):
            bg_dma(f's_add_u32 m0, s{sSLDS}, {w1_lds(n)}', f's_add_u32 s{sD0}, s{sS1OFF}, {n*32*2752}',
                   f'buffer_load_dwordx4 v{vD1+p}, {srd(SW1)}, s{sD0} offen offset:{p*1024} lds', f'w{n}')
vTR1B = vAR4; vTR1C = vAR
W1ORD = list(range(5 + NA)) + [15] + list(range(5 + NA, 15))
class W1:
    enq = 0; landed = 0; read = 0; done = 0; gate15 = False; afree = 0
def w1_can():
    if W1.enq >= 16: return False
    n = W1ORD[W1.enq]
    if n == 15: return W1.gate15
    if n < 5: return True
    if n < 5 + NA: return w1_lds(n) + 12288 <= W1.afree
    prev = n - NA - 5 if n - NA - 5 < 5 else n - 5
    return W1ORD.index(prev) < W1.done
def w1_more(k):
    for _ in range(k):
        if not w1_can(): return
        w1_enq(W1ORD[W1.enq]); W1.enq += 1
def w1_pre(back):
    tgt = max(W1.landed, W1.enq - back)
    if tgt > W1.landed: wait(f'w{W1ORD[tgt-1]}')
    if W1.read > W1.done: wait(None, f'wr{W1ORD[W1.read-1]}')
    W1.nl, W1.nd = tgt, W1.read
def w1_post():
    W1.landed, W1.done = W1.nl, W1.nd
def w1_bar(back):
    w1_pre(back); R_('s_barrier'); w1_post()
def w1_issued():
    return W1.enq - (len([u for u in BG.q if u[1] and u[2][0] == 'w']) + 2) // 3
def w1_auto(margin, least=0):
    w1_pre(W1.enq - max(W1.landed, w1_issued() - margin, least))
def xbar(name, margin, least=0, more=16):
    w1_auto(opt(name, margin), least); R_('s_barrier'); w1_post(); w1_more(more)
def w1_reads(E):
    R_(f'; w1 reads {W1ORD[W1.read:W1.landed]}')
    for n in W1ORD[W1.read:W1.landed]:
        for tt in range(3):
            a = 64*tt + 4*n
            base, off = (vTR1+tt, w1_lds(n) - L_B) if w1_lds(n) >= L_B else (vTR1B+tt, w1_lds(n) - 8192)
            if off < 0: base, off = vTR1C+tt, w1_lds(n)
            E(f'ds_read_b64_tr_b16 {ar(a,2)}, v{base} offset:{off}', 'lg', f'wr{n}')
            E(f'ds_read_b64_tr_b16 {ar(a+2,2)}, v{base} offset:{off+1536}', 'lg', f'wr{n}')
    W1.read = W1.landed

def accK(rt): return 96 + 12*rt
def accV(rt): return 96 + 12*rt + 4
def accQ(rt): return 96 + 12*rt + 8
vKF, vVF, vQF, vOP = 156, 166, 176, 216
def tmp(t, k): return 184 + 16*(t & 1) + k
CS = 0.25 * LOG2E
sCS = sLN+1
A(f's_mov_b32 s{sCS}, {hx(f2u(CS))}')
sOS2 = sLN+2
A(f's_add_u32 s{sOS2}, s{sOST}, 32768')
def attn(t, E, gap):
    attn_a(t, E, gap, True)
    if t: attn_b(t, E, gap, False)
def attn_a(t, E, gap, withv):
    gap(3)
    for h in range(2): E(f'v_cvt_pk_bf16_f32 v{vKF+2*t+h}, v{accK(t)+2*h}, v{accK(t)+2*h+1}')
    if t:
        for h in range(2): E(f'v_cvt_pk_bf16_f32 v{vQF+h}, v{accQ(t)+2*h}, v{accQ(t)+2*h+1}')
    if withv:
        for h in range(2): E(f'v_cvt_pk_bf16_f32 v{vVF+2*t+h}, v{accV(t)+2*h}, v{accV(t)+2*h+1}')
    else: gap(1)
    if not t: return
    E(f'v_mfma_f32_16x16x16_bf16 {vr(tmp(t,0),4)}, {vr(vKF+2*(t-1),2)}, {vr(vQF,2)}, 0')
    E(f'v_mfma_f32_16x16x16_bf16 {vr(tmp(t,4),4)}, {vr(vKF+2*t,2)}, {vr(vQF,2)}, 0')
    gap(4)
    if t == 1:
        for r in range(4): E(f'v_min_f32 v{tmp(t,r)}, s{sMSK}, v{tmp(t,r)}')
    for r in range(4): E(f'v_cndmask_b32 v{tmp(t,r)}, v{tmp(t,r)}, v{tmp(t,4+r)}, {sp(4+2*r)}')
    E(f'v_cndmask_b32 v{tmp(t,0)}, v{tmp(t,0)}, v{tmp(t,1)}, {sp(12)}')
    E(f'v_cndmask_b32 v{tmp(t,1)}, v{tmp(t,2)}, v{tmp(t,3)}, {sp(12)}')
    E(f'v_max_f32 v{tmp(t,2)}, v{tmp(t,0)}, v{tmp(t,1)}')
    for op in ('v_permlane16_swap_b32', 'v_permlane32_swap_b32'):
        E(f'v_mov_b32 v{tmp(t,3)}, v{tmp(t,2)}')
        gap(1)
        E(f'{op} v{tmp(t,2)}, v{tmp(t,3)}')
        E(f'v_max_f32 v{tmp(t,2)}, v{tmp(t,2)}, v{tmp(t,3)}')
    E(f'v_mul_f32 v{tmp(t,2)}, {hx(f2u(-CS))}, v{tmp(t,2)}')
    E(f'v_fma_f32 v{tmp(t,0)}, v{tmp(t,0)}, s{sCS}, v{tmp(t,2)}')
    E(f'v_fma_f32 v{tmp(t,1)}, v{tmp(t,1)}, s{sCS}, v{tmp(t,2)}')
    E(f'v_exp_f32 v{tmp(t,0)}, v{tmp(t,0)}')
    E(f'v_exp_f32 v{tmp(t,1)}, v{tmp(t,1)}')
    E(f'v_cvt_pk_bf16_f32 v{tmp(t,0)}, v{tmp(t,0)}, v{tmp(t,0)}')
    E(f'v_cvt_pk_bf16_f32 v{tmp(t,1)}, v{tmp(t,1)}, v{tmp(t,1)}')
    E(f'v_and_b32 v{tmp(t,4)}, v{tmp(t,0)}, v{vM}')
    E(f'v_and_b32 v{tmp(t,5)}, v{tmp(t,1)}, v{vM+1}')
    E(f'v_and_b32 v{tmp(t,6)}, v{tmp(t,0)}, v{vM+2}')
    E(f'v_and_b32 v{tmp(t,7)}, v{tmp(t,1)}, v{vM+3}')
    gap(1)
    E(f'v_mfma_f32_16x16x32_bf16 {vr(tmp(t,12),4)}, {vr(vON,4)}, {vr(tmp(t,4),4)}, 0')
def attn_b(t, E, gap, withv):
    if withv:
        for h in range(2): E(f'v_cvt_pk_bf16_f32 v{vVF+2*t+h}, v{accV(t)+2*h}, v{accV(t)+2*h+1}')
    E(f'v_mfma_f32_16x16x32_bf16 {vr(tmp(t,8),4)}, {vr(vVF+2*(t-1),4)}, {vr(tmp(t,4),4)}, 0')
    gap(4)
    E(f'v_rcp_f32 v{tmp(t,12)}, v{tmp(t,12)}')
    for r in range(4): E(f'v_mul_f32 v{tmp(t,8+r)}, v{tmp(t,8+r)}, v{tmp(t,12)}')
    p, hf = (t-1) >> 1, (t-1) & 1
    o = vOP + 4*p
    for h in range(2): E(f'v_cvt_pk_bf16_f32 v{o+2*hf+h}, v{tmp(t,8+2*h)}, v{tmp(t,9+2*h)}')
    if hf:
        gap(1)
        E(f'v_permlane16_swap_b32 v{o}, v{o+2}')
        E(f'v_permlane16_swap_b32 v{o+1}, v{o+3}')
        E(f'buffer_store_dwordx4 {vr(o,4)}, v{vPO}, {srd(SWS)}, s{sOS2 if p else sOST} offen sc1', 'vm', 'stB' if p else 'stA')
bufs = [64 + 4*k for k in range(8)]
NB = 8
seq = [(rt, ks) for rt in range(6) for ks in range(16)]
def a1_read(n, E):
    rt, ks = seq[n]
    rt = min(rt, 4)
    base = vAR4 if rt == 4 else vAR
    E(f'ds_read_b128 {vr(bufs[n%NB],4)}, v{base+(ks&3)} offset:{(rt%4)*16384 + (ks>>2)*256}', 'lg', f'af{n}')
nread = 0; vis = 1
EARLY = opt('early', 8)
vXR = 240
for n, (rt, ks) in enumerate(seq):
    if n == 0:
        wait('a0'); R_('s_barrier')
        stamp('gemm start')
        while nread < NB - 1: a1_read(nread, E0); nread += 1
        q_read(QL + 1, 16, mid)
        bg_on(opt('ig1', 64))
    if ks == 16 - EARLY and rt < 4:
        if rt == 0:
            wait('a1', 'qr15'); R_('s_barrier'); vis = 2
            w1_more(opt('w1x', 2))
            bg_delay(opt('hold', 600), opt('ig2', 128))
            w1_more(5)
            if opt('w2t', 1) == 1: w2_touch()
        if rt == 1:
            wait('a2'); R_('s_barrier'); vis = 3
        if rt == 2:
            wait('a3'); R_('s_barrier'); vis = 4
        if rt == 3:
            wait('a4'); R_('s_barrier'); vis = 6
            pass
    if n == opt('x1', 78):
        wait('stA'); R_('s_barrier'); flag(1, 'stA', hi)
        W1.afree = 65536; w1_more(5)
    if n == opt('x2', 84): poll_issue(1, hi)
    if n == 66:
        for r2 in range(4):
            lo(f's_add_u32 s{sT0}, s{sXO}, {r2*16384}')
            lo(f'buffer_load_dwordx2 {vr(vXR+2*r2,2)}, v{vXO}, {srd(SX)}, s{sT0} offen', 'vm', 'xr')
    if ks == 0 and rt > 0:
        stamp(f'p1rt{rt}', 2)
        if rt < 5: attn(rt-1, lo, lo_gap)
        else:
            lo_flush(); attn_a(4, lo, lo_gap, False)
    if rt == 0: wait(None, f'qr{ks}')
    if nread < min(n + NB, len(seq)) and seq[nread][0] < vis:
        a1_read(nread, hi); nread += 1
    assert nread > n + (1 - n % 2)
    if n % 2 == 0: wait(None, f'af{n+1}')
    g3 = 2 if n % 2 == 0 else 1
    f = vr(bufs[n%NB], 4)
    c = lambda r: '0' if ks == 0 else vr(r, 4)
    if rt == 5:
        mfma(f'v_mfma_f32_16x16x32_bf16 {vr(accV(4),4)}, {f}, {ar(128+4*ks,4)}, {c(accV(4))}', 3)
        continue
    mfma(f'v_mfma_f32_16x16x32_bf16 {vr(accK(rt),4)}, {ar(64+4*ks,4)}, {f}, {c(accK(rt))}', 2 + (opt('xs', 1) if rt in (2, 3) else 0))
    if rt < 4:
        mfma(f'v_mfma_f32_16x16x32_bf16 {vr(accV(rt),4)}, {f}, {ar(128+4*ks,4)}, {c(accV(rt))}', 2 if rt else g3)
    if rt > 0:
        mfma(f'v_mfma_f32_16x16x32_bf16 {vr(accQ(rt),4)}, {ar(4*ks,4)}, {f}, {c(accQ(rt))}', g3)
stamp('P1 gemm done')
bg_off()
lo_flush()
attn_b(4, A, lambda k: None, True)
stamp('attn done')
A(f's_add_u32 s{sQ}, s{sCB}, s{sW4}')
poll_check(1)
stamp('oA seen')
bg_front(lambda: (tile_enq(0, 'o'), tile_enq(1, 'o')))
bg_until('o0')
for tt in range(3): A(f'v_subrev_u32 v{vTR1B+tt}, {L_B - 8192}, v{vTR1+tt}')
W1.gate15 = True
xbar('m1', 1)
bg_on(opt('i1', 30))
w1_reads(A)
bg_until('o1')
vX1 = 112
wait('xr')
for r2 in range(4):
    unpack(vX1+4*r2, vXR+2*r2); unpack(vX1+4*r2+2, vXR+2*r2+1)
bg_off()
wait('stB'); xbar('m2', 2); flag(2, 'stB', E0, True)
stamp('oB published')
vAC2, vXP, vUF, vUP = 96, 144, 152, 160
sUS = [sLN+1, sLN+2]
A(f's_add_u32 s{sUS[0]}, s{sOST}, {C_U}')
A(f's_add_u32 s{sUS[1]}, s{sOST}, {C_U + 32768}')
def epi2(p, E, gap, pk):
    gap(5)
    for rt in (2*p, 2*p+1):
        x, a = vX1+4*rt, vAC2+4*rt
        xp, up, uf = vXP+2*rt, vUP+2*rt, vUF+4*(rt&1)
        if pk:
            for h in range(2): E(f'v_pk_fma_f32 {vr(x+2*h,2)}, {vr(vGA+2*h,2)}, {vr(a+2*h,2)}, {vr(x+2*h,2)}')
        else:
            for e in range(4): E(f'v_fmac_f32 v{x+e}, v{vGA+e}, v{a+e}')
        for h in range(2): E(f'v_cvt_pk_bf16_f32 v{xp+h}, v{x+2*h}, v{x+2*h+1}')
        for h in range(2): unpack(x+2*h, xp+h, E)
        if pk:
            for h in range(2): E(f'v_pk_mul_f32 {vr(uf+2*h,2)}, {vr(x+2*h,2)}, {vr(vGB+2*h,2)}')
        else:
            for e in range(4): E(f'v_mul_f32 v{uf+e}, v{x+e}, v{vGB+e}')
        for h in range(2): E(f'v_cvt_pk_bf16_f32 v{up+h}, v{uf+2*h}, v{uf+2*h+1}')
    o = vUP + 4*p
    gap(1)
    E(f'v_permlane16_swap_b32 v{o}, v{o+2}')
    E(f'v_permlane16_swap_b32 v{o+1}, v{o+3}')
    E(f'buffer_store_dwordx4 {vr(o,4)}, v{vPO}, {srd(SWS)}, s{sUS[p]} offen sc1', 'vm', 'stB' if p else 'stA')
seq = [(rt, ks) for rt in range(4) for ks in range(16)]
def f_read(n, E, tag):
    rt, ks = seq[n]
    E(f'ds_read_b128 {vr(bufs[n%NB],4)}, v{vOFF16} offset:{L_A1 + rt*16384 + ks*1024}', 'lg', f'{tag}{n}')
S = [[168+k for k in range(6)], [176+k for k in range(6)]]
def stat_dots(p):
    x, u = vXP + 4*p, vUP + 4*p
    A(f'v_permlane16_swap_b32 v{x}, v{x+2}')
    A(f'v_permlane16_swap_b32 v{x+1}, v{x+3}')
    for d in range(4):
        c = lambda r: '0' if d == 0 else f'v{r}'
        A(f'v_dot2_f32_bf16 v{S[p][2]}, v{u+d}, v{vONE}, {c(S[p][2])}')
        A(f'v_dot2_f32_bf16 v{S[p][3]}, v{u+d}, v{u+d}, {c(S[p][3])}')
        A(f'v_dot2_f32_bf16 v{S[p][4]}, v{u+d}, v{vGP+d}, {c(S[p][4])}')
        A(f'v_dot2_f32_bf16 v{S[p][5]}, v{u+d}, v{vSP+d}, {c(S[p][5])}')
        A(f'v_dot2_f32_bf16 v{S[p][0]}, v{x+d}, v{vONE}, {c(S[p][0])}')
        A(f'v_dot2_f32_bf16 v{S[p][1]}, v{x+d}, v{x+d}, {c(S[p][1])}')
vCO, vCB, vCS, vSTT, vAC3, vG1, vHP = 128, 140, 96, 144, 168, 216, 228
xdone = [0]
def extra_tile(upto, regs):
    upto = min(upto, W1.read, xdone[0] + len(regs))
    kss = W1ORD[xdone[0]:upto]
    for ks, r in zip(kss, regs): E0(f'ds_read_b128 {vr(r,4)}, v{vXA} offset:{ks*64}', 'lg', f'xf{ks}')
    for ks, r in zip(kss, regs):
        wait(None, f'wr{ks}'); wait(None, f'xf{ks}')
        for tt in range(3):
            acc = vr(vCO+4*tt, 4)
            mfma(f'v_mfma_f32_16x16x32_bf16 {acc}, {vr(r,4)}, {ar(64*tt+4*ks,4)}, {"0" if xdone[0] == 0 else acc}')
        xdone[0] += 1
XR1 = [184 + 4*k for k in range(8)]
sW2L, sSB2, sSTS = sLN+6, sLN+4, sLN+7
vTR2 = vAR
def late_consts(L_):
    L_(f's_mul_i32 s{sWOFF}, s{sWAVE}, {11*32*1024}')
    L_(f's_lshl_b32 s{sT0}, s{sJ}, 7')
    L_(f's_add_u32 s{sWOFF}, s{sWOFF}, s{sT0}')
    L_(f's_lshr_b32 s{sT0}, s{sWAVE}, 1')
    L_(f's_and_b32 s{sT0}, s{sT0}, s{sWAVE}')
    L_(f's_lshl_b32 s{sT0}, s{sT0}, 15')
    L_(f's_sub_u32 s{sW2L}, s{sWOFF}, s{sT0}')
    L_(f's_add_u32 s{sW2L}, s{sW2L}, {10*32*1024}')
    L_(f's_add_u32 s{sSB2}, s{sSB}, 3072')
    for c in range(4): L_(f'v_add_u32 v{vTRW+c}, s{sW4}, v{vTRW+c}')
    for c in range(4): L_(f'v_subrev_u32 v{vTR2+c}, {L_B - 16384}, v{vTRW+c}')
    L_(f's_mul_i32 s{sT0}, s{sWAVE}, 1536')
    L_(f's_add_u32 s{sT0}, s{sT0}, {L_ST1}')
    L_(f'v_add_u32 v{vT+4}, s{sT0}, v{vO8}')
    L_(f's_min_u32 s{sT0}, s{sWAVE}, 2')
    L_(f's_lshl_b32 s{sSTS}, s{sT0}, 10')
    L_(f's_lshl_b32 s{sT0}, s{sT0}, 9')
    L_(f's_add_u32 s{sT0}, s{sT0}, {L_ST1}')
    L_(f'v_add_u32 v{vT+5}, s{sT0}, v{vO8}')
    L_(f's_mul_i32 s{sT0}, s{sJ}, 3072')
    L_(f's_add_u32 s{sSTS}, s{sSTS}, s{sT0}')
    L_(f's_add_u32 s{sSTS}, s{sSTS}, s{sCB}')
    L_(f's_add_u32 s{sSTS}, s{sSTS}, {C_ST}')
def p2_half(p, hook):
    n0 = 32*p
    nread = n0; lim = n0 + 16
    wait(f'o{2*p}'); R_('s_barrier')
    while nread < n0 + NB - 1: f_read(nread, E0, 'of'); nread += 1
    BG.second = True
    for n in range(n0, n0 + 32):
        rt, ks = seq[n]
        hook(n - n0)
        if n - n0 == opt('obk', 8):
            wait(f'o{2*p+1}'); R_('s_barrier'); lim = n0 + 32
        if nread < min(lim, n + NB): f_read(nread, hi, 'of'); nread += 1
        if n % 2 == 0: wait(None, f'of{n+1}')
        acc = vr(vAC2+4*rt, 4)
        mfma(f'v_mfma_f32_16x16x32_bf16 {acc}, {ar(192+4*ks,4)}, {vr(bufs[n%NB],4)}, {"0" if ks==0 else acc}', 2 if n % 2 == 0 else 1)
    BG.second = False
bg_pop(opt('p1', 3))
bg_on(opt('ip2', 100))
late_consts(lo)
def hookA(k):
    if k == opt('pob', 24): bg_front(lambda: poll_issue(2, bg)); bg_until('poll')
p2_half(0, hookA)
bg_off()
stamp('P2A done')
epi2(0, A, lambda k: None, True)
lo_flush()
bg_until(f'w{W1ORD[4+NA]}')
xbar('m3', 2, 5 + NA)
w1_reads(A)
le = label('Lnoep')
if TWICE:
    R_(f'v_readlane_b32 s{sT0}, v31, 42'); R_('s_nop 3'); R_(f's_cmp_eq_u32 s{sT0}, 0'); R_(f's_cbranch_scc1 {le}')
R_(f's_cmp_lg_u32 s2, 0')
R_(f's_cbranch_scc1 {le}')
R_(f's_cmp_lg_u32 s{sWAVE}, 3')
R_(f's_cbranch_scc1 {le}')
R_(f's_mov_b32 s{sT0}, {WS_XCC}')
lp, ld = label('Lep'), label('Lepok')
R_(f'{lp}:')
R_(f'buffer_load_dwordx4 {vr(184,4)}, v{vOFF16}, {srd(SWS)}, s{sT0} offen sc1')
R_(f'buffer_load_dwordx4 {vr(188,4)}, v{vOFF16}, {srd(SWS)}, s{sT0} offen offset:1024 sc1')
R_('s_waitcnt vmcnt(0)')
tag_check([185, 187, 189, 191], vT)
R_(f's_cbranch_vccz {ld}')
spin_guard(lp, ld)
R_(f'v_mov_b32 v{vT+1}, s{sTAG}')
R_(f'v_mov_b32 v{vT+2}, 0')
R_('s_mov_b64 exec, 1')
R_(f'buffer_store_dword v{vT+1}, v{vT+2}, {srd(SWS)}, 0 offen sc1')
R_('s_mov_b64 exec, -1')
R_(f'{le}:')
poll_check(2)
stamp('oB seen')
xbar('m4', 2)
assert W1.done >= 5 + NA
bg_front(lambda: (tile_enq(2, 'o'), tile_enq(3, 'o')))
bg_until('o2')
bg_on(opt('i2', 40))
stat_dots(0)
w1_reads(A)
bg_until('o3')
extra_tile(opt('xa', 4), XR1)
bg_off()
wait('stA'); xbar('m5', 2); flag(3, 'stA', E0)
stamp('uA published')
bg_pop(opt('p2', 3))
bg_on(opt('ip2', 100))
def hookB(k):
    if k == opt('pua', 28): bg_front(lambda: poll_issue(3, bg)); bg_until('poll')
p2_half(1, hookB)
bg_off()
stamp('P2 gemm done')
epi2(1, A, lambda k: None, True)
A(f's_add_u32 s{sQ}, s{sQ}, {C_U}')
stat_dots(1)
for k in range(6): A(f'v_permlane32_swap_b32 v{S[0][k]}, v{S[1][k]}')
for k in range(6): A(f'v_add_f32 v{S[0][k]}, v{S[0][k]}, v{S[1][k]}')
for k in range(3): lg(f'ds_write_b64 v{vT+4}, {vr(S[0][2*k],2)} offset:{512*k}', 'sw')
poll_check(3)
stamp('uA seen')
bg_front(lambda: (tile_enq(0, 'u'), tile_enq(1, 'u')))
bg_until('u0')
wait(None, 'sw')
xbar('m6', 2)
bg_on(opt('i3', 30))
for w in range(4): lg(f'ds_read_b64 {vr(248+2*w,2)}, v{vT+5} offset:{1536*w}', 'sr')
w1_reads(A)
bg_until('u1')
wait(None, 'sr')
A(f'v_pk_add_f32 {vr(248,2)}, {vr(248,2)}, {vr(250,2)}')
A(f'v_pk_add_f32 {vr(252,2)}, {vr(252,2)}, {vr(254,2)}')
A(f'v_mov_b32 v251, s{sTAG}')
A(f'v_add_f32 v250, v249, v253')
A(f'v_add_f32 v248, v248, v252')
A(f'v_mov_b32 v249, s{sTAG}')
bg_off()
vm(f'buffer_store_dwordx4 {vr(248,4)}, v{vOFF16}, {srd(SWS)}, s{sSTS} offen sc1', 'sts')
wait('stB'); xbar('m7', 2); flag(4, 'stB', E0, True)
stamp('uB published')
bg_on(opt('i4', 64))
w1_reads(mid)
extra_tile(opt('xb', 10), XR1)
mid_flush()
wait('u1'); xbar('m8', 2)
stamp('u1 landed')

def stat_issue(E):
    for m in range(2):
        for k in range(3):
            E(f'buffer_load_dwordx4 {vr(vSTT+12*m+4*k,4)}, v{vSTA}, {srd(SWS)}, s{sSB2 if m else sSB} offen offset:{k*1024} sc1', 'vm', 'stt')
W2SLOT = {}; W2FREE = []; W2N = [0]
def w2_more():
    while W2FREE and W2N[0] < 11:
        kk = W2N[0]; W2N[0] += 1
        W2SLOT[kk] = W2FREE.pop(0)
        for j in range(4):
            bg_dma(f's_add_u32 m0, s{sW4}, {W2SLOT[kk]}',
                   f's_add_u32 s{sD0}, s{sWOFF}, {kk*32*1024}' if kk < 10 else f's_mov_b32 s{sD0}, s{sW2L}',
                   f'buffer_load_dwordx4 v{vDW+j}, {srd(SW2)}, s{sD0} offen offset:{j*1024} lds', f'z{kk}')
def w2_areg(kk): return 192 + 16*kk if kk < 4 else 16*(kk-4)
def w2_read(kk, E):
    o = W2SLOT[kk]
    for c in range(4):
        a = w2_areg(kk) + 4*c
        base, off = (vTRW+c, o - L_B) if o >= L_B else (vTR2+c, o - 16384)
        E(f'ds_read_b64_tr_b16 {ar(a,2)}, v{base} offset:{off}', 'lg', f'zr{kk}')
        E(f'ds_read_b64_tr_b16 {ar(a+2,2)}, v{base} offset:{off+512}', 'lg', f'zr{kk}')
def stats_fin(E, gap):
    b = vSTT
    X = [b+2*k for k in range(6)]
    for k in range(6): E(f'v_add_f32 v{X[k]}, v{X[k]}, v{b+12+2*k}')
    for op in ('v_permlane16_swap_b32', 'v_permlane32_swap_b32'):
        for k in range(6): E(f'v_mov_b32 v{X[k]+1}, v{X[k]}')
        for k in range(6): E(f'{op} v{X[k]}, v{X[k]+1}')
        for k in range(6): E(f'v_add_f32 v{X[k]}, v{X[k]}, v{X[k]+1}')
    X1, X2, X3, X4, X5, X6 = X
    a_, b_, c_, d_ = b+1, b+3, b+5, b+7
    co = [b+12, b+13, b+14, b+15]; cs = [b+16, b+17, b+18, b+19]
    for r in X: E(f'v_mul_f32 v{r}, {hx(f2u(1/512))}, v{r}')
    E(f'v_fma_f32 v{X2}, -v{X1}, v{X1}, v{X2}')
    E(f'v_max_f32 v{X2}, 0, v{X2}')
    E(f'v_add_f32 v{X2}, {hx(f2u(1e-5))}, v{X2}')
    E(f'v_rsq_f32 v{a_}, v{X2}')
    E(f'v_fma_f32 v{X3}, -v{X1}, s{sG}, v{X3}')
    E(f'v_mul_f32 v{co[1]}, v{X2}, v{a_}')
    E(f'v_fma_f32 v{b_}, v{X3}, v{a_}, s{sG+2}')
    E(f'v_mul_f32 v{c_}, s{sG+1}, v{X1}')
    E(f'v_fma_f32 v{c_}, -2.0, v{X5}, v{c_}')
    E(f'v_fma_f32 v{X4}, v{X1}, v{c_}, v{X4}')
    E(f'v_fma_f32 v{X6}, -v{X1}, s{sG+4}, v{X6}')
    E(f'v_add_f32 v{X6}, v{X6}, v{X6}')
    E(f'v_fma_f32 v{X4}, v{X4}, v{a_}, v{X6}')
    E(f'v_fma_f32 v{X4}, v{X4}, v{a_}, s{sG+3}')
    E(f'v_fma_f32 v{X4}, -v{b_}, v{b_}, v{X4}')
    E(f'v_max_f32 v{X4}, 0, v{X4}')
    E(f'v_add_f32 v{X4}, {hx(f2u(1e-5))}, v{X4}')
    E(f'v_rsq_f32 v{d_}, v{X4}')
    K0 = -2.0 * 0.7978845608028654 * LOG2E
    K1_ = K0 * 0.044715
    E(f'v_sub_f32 v{co[0]}, 0, v{X1}')
    E(f'v_mul_f32 v{X4}, v{X4}, v{d_}')
    E(f'v_mul_f32 v{co[2]}, -v{b_}, v{co[1]}')
    E(f'v_mul_f32 v{co[3]}, v{co[1]}, v{X4}')
    E(f'v_mul_f32 v{d_}, v{a_}, v{d_}')
    E(f'v_mul_f32 v{cs[0]}, {hx(f2u(K0))}, v{d_}')
    E(f'v_mul_f32 v{cs[1]}, v{d_}, v{d_}')
    E(f'v_mul_f32 v{cs[1]}, v{cs[1]}, v{d_}')
    E(f'v_mul_f32 v{cs[1]}, {hx(f2u(K1_))}, v{cs[1]}')
    E(f'v_mov_b32 v{cs[2]}, v{co[3]}')
    E(f'v_mov_b32 v{cs[3]}, 0')
    E(f's_lshl_b32 s{sT0}, s{sWAVE}, 9')
    E(f'v_lshlrev_b32 v{vT+2}, 5, v{vI}')
    E(f'v_add_u32 v{vT+2}, {L_ST2}, v{vT+2}')
    E(f'v_add_u32 v{vT+4}, s{sT0}, v{vT+2}')
    E(f'v_lshl_add_u32 v{vT+3}, v{vG}, 2, v{vT+2}')
    E(f'ds_write_b128 v{vT+4}, {vr(co[0],4)}', 'lg', 'sw2')
    E(f'ds_write_b128 v{vT+4}, {vr(cs[0],4)} offset:16', 'lg', 'sw2')
sHB2 = sLN+5
def gelu(rt, E, pk):
    a = vAC3 + 12*rt
    c0 = vCS + 4*rt
    if pk:
        P = range(0, 12, 2)
        for e in P: E(f'v_pk_mul_f32 {vr(vG1+e,2)}, {vr(a+e,2)}, {vr(a+e,2)}')
        for e in P: E(f'v_pk_fma_f32 {vr(vG1+e,2)}, {vr(vG1+e,2)}, {vr(c0,2)}, {vr(c0,2)} op_sel:[0,1,0] op_sel_hi:[1,1,0]')
        for e in P: E(f'v_pk_mul_f32 {vr(vG1+e,2)}, {vr(vG1+e,2)}, {vr(a+e,2)}')
        for e in range(12): E(f'v_exp_f32 v{vG1+e}, v{vG1+e}')
        for e in P: E(f'v_pk_fma_f32 {vr(vG1+e,2)}, {vr(vG1+e,2)}, {vr(c0+2,2)}, {vr(c0+2,2)} op_sel_hi:[1,0,0]')
        for e in range(12): E(f'v_rcp_f32 v{vG1+e}, v{vG1+e}')
        for e in P: E(f'v_pk_mul_f32 {vr(vG1+e,2)}, {vr(vG1+e,2)}, {vr(a+e,2)}')
    else:
        Ee = range(12)
        for e in Ee: E(f'v_mul_f32 v{vG1+e}, v{a+e}, v{a+e}')
        for e in Ee: E(f'v_fma_f32 v{vG1+e}, v{vG1+e}, v{c0+1}, v{c0}')
        for e in Ee: E(f'v_mul_f32 v{vG1+e}, v{vG1+e}, v{a+e}')
        for e in Ee: E(f'v_exp_f32 v{vG1+e}, v{vG1+e}')
        for e in Ee: E(f'v_fma_f32 v{vG1+e}, v{vG1+e}, v{c0+2}, v{c0+2}')
        for e in Ee: E(f'v_rcp_f32 v{vG1+e}, v{vG1+e}')
        for e in Ee: E(f'v_mul_f32 v{vG1+e}, v{vG1+e}, v{a+e}')
    p, hf = rt >> 1, rt & 1
    for tt in range(3):
        for h in range(2):
            E(f'v_cvt_pk_bf16_f32 v{vHP+12*p+4*tt+2*hf+h}, v{vG1+4*tt+2*h}, v{vG1+4*tt+2*h+1}')
    if hf:
        for tt in range(3):
            o = vHP+12*p+4*tt
            E(f'v_permlane16_swap_b32 v{o}, v{o+2}')
            E(f'v_permlane16_swap_b32 v{o+1}, v{o+3}')
        for tt in range(3):
            o = vHP+12*p+4*tt
            E(f'buffer_store_dwordx4 {vr(o,4)}, v{vPH}, {srd(SWS)}, s{sHB2 if p else sHB} offen offset:{tt*512} sc1', 'vm', 'stB' if p else 'stA')
def corr(rt):
    for tt in range(3):
        acc = vr(vAC3+12*rt+4*tt, 4)
        mfma(f'v_mfma_f32_16x16x4_f32 {acc}, v{vCO+4*tt}, v{vCB+rt}, {acc}', 4)
zread = set(); zenq = set()
NGH = opt('ngh', 1)
seq = [(rt, ks) for ks in W1ORD for rt in (0, 1)] + [(rt, ks) for rt in (2, 3) for ks in W1ORD]
nread = 0; vis = 2
w2go = [False, False]
def w2_start():
    if not w2go[1] and W1.enq == 16 and W1.done > 5 + NA:
        W2FREE.append(65536); w2_more(); w2go[1] = True
    if not w2go[0] and W1.done == 16:
        W2FREE.extend(L_B + 16384*k for k in range(4)); w2_more()
        w2go[0] = True
XR2 = [216 + 4*k for k in range(8)]
for n, (rt, ks) in enumerate(seq):
    if n == 0:
        while nread < NB - 1: f_read(nread, E0, 'uf'); nread += 1
        w1_more(16); w1_reads(mid)
        bg_on(opt('ip3a', 100))
        lo(f's_add_u32 s{sHB2}, s{sHB}, {2*HRT}')
        for tt in range(3): lo(f'v_lshlrev_b32 v{vBI+tt}, 16, v{vBI+tt}')
    if n % 16 == 0 and n: stamp(f'p3q{n//16}', 3)
    if n == opt('pin', 8):
        bg_front(lambda: (poll_issue(4, bg), stat_issue(bg))); bg_until('poll')
    if n in (opt('wb1', 6), opt('wb2', 16)) and W1.done < 16:
        xbar('m9', 2); w1_reads(mid); w2_start()
    if n < 32 and W1ORD.index(ks) + 2 > W1.read and W1.read < 16:
        xbar('m10', 1, min(16, W1ORD.index(ks) + 2)); w1_reads(mid); w2_start()
    if n == opt('pcn', 18):
        poll_check(4)
        bg_front(lambda: (tile_enq(2, 'u'), tile_enq(3, 'u'), bg_delay(0, opt('ip3b', 96))))
        BG.interval = 48
    if n == opt('stn', 20):
        checked('stt', stat_issue, [vSTT+1+2*k for k in range(12)])
        stats_fin(lo, lo_gap)
    if n == opt('ub2', 29):
        wait('u2'); w1_bar(0); vis = 3; w2_start()
    if n == 32:
        extra_tile(16, XR2); extra_tile(16, XR2); assert xdone[0] == 16
    if n == opt('sb', 33):
        lo_flush()
        wait(None, 'sw2'); w1_bar(0); w2_start()
        for r2 in range(4):
            mid(f'ds_read_b32 v{vCB+r2}, v{vT+3} offset:{r2*512}', 'lg', 'cb')
            mid(f'ds_read_b128 {vr(vCS+4*r2,4)}, v{vT+2} offset:{r2*512+16}', 'lg', 'cb')
        lo(f'v_cmp_eq_u32 vcc, 3, v{vG}'); lo_gap(1)
        for tt in range(3): lo(f'v_cndmask_b32 v{vCO+4*tt}, v{vCO+4*tt}, v{vBI+tt}, vcc')
    if n == opt('sb', 33) + 5:
        lo_flush(); wait(None, 'cb')
        corr(0); corr(1)
        gelu(0, lo, 0)
    if n == opt('ub3', 41):
        wait('u3'); R_('s_barrier'); vis = 4
    assert opt('g1n', 52) >= 49
    if n == opt('g1n', 52):
        lo_flush(); gelu(1, A, 1)
        stamp('h1A stored', 3)
        corr(2); lo_gap(3)
        if opt('g2h', 1): gelu(2, lo, 0)
    Z = [opt('za', 44), opt('zb', 52), opt('zc', 58), opt('zd', 99)]
    for kk in range(4):
        if n == Z[kk]:
            wait(f'z{kk}'); w2_read(kk, mid); zread.add(kk)
        if n == Z[kk] + 6:
            wait(None, f'zr{kk}'); W2FREE.append(W2SLOT[kk]); w2_more(); zenq.add(kk)
    for _ in range(2):
        if nread < min(n + NB, len(seq)) and seq[nread][0] < vis and len(HI) < 2:
            f_read(nread, hi, 'uf'); nread += 1
    assert nread > n + (1 - n % 2)
    wait(None, f'wr{ks}')
    if n % 2 == 0: wait(None, f'uf{n+1}')
    f = vr(bufs[n%NB], 4)
    for tt in range(3):
        acc = vr(vAC3+12*rt+4*tt, 4)
        mfma(f'v_mfma_f32_16x16x32_bf16 {acc}, {ar(64*tt+4*ks,4)}, {f}, {"0" if ks == W1ORD[0] else acc}', 2 if tt < 2 or n % 2 == 0 else 1)
assert w2go[0]
corr(3)
FA = opt('fa', 0)
if FA == 0: wait('stA')
R_('s_barrier')
if FA == 0: flag(5, 'stA', E0)
stamp('P3 gemm done')
mid_flush()
W2FREE.extend([16384, 32768, 49152]); w2_more()
BG.interval = opt('igelu', 70)
lo_flush()
stamp('lo flushed', 3)
def z_catch(kk, E=E0):
    if kk not in zread:
        wait(f'z{kk}'); w2_read(kk, E); zread.add(kk)
def z_refill():
    for kk in sorted(zread):
        if kk not in zenq and W2N[0] < 11:
            wait(None, f'zr{kk}'); W2FREE.append(W2SLOT[kk]); w2_more(); zenq.add(kk)
z_refill()
for kk in range(opt('zc0', 4)): z_catch(kk)
if not opt('g2h', 1): gelu(2, A, 1)
if FA == 1:
    bg_off(); wait('stA'); R_('s_barrier'); flag(5, 'stA', E0); BG.on = True
gelu(3, A, 1)
z_refill()
assert W2N[0] == 11
bg_off()
stamp('gelu done', 3)
poll_issue(5)
bg_flush()
vGG = 136
lg(f'ds_read_b64 {vr(vGG+2,2)}, v{vMC} offset:{5*1024}', 'c5')
A(f'v_lshlrev_b32 v{vT}, 3, v{vG}')
A(f's_lshl_b32 s{sT0}, s{sWAVE}, 5')
A(f's_add_u32 s{sT0}, s{sT0}, {L_B2}')
A(f'v_add_u32 v{vT}, s{sT0}, v{vT}')
lg(f'ds_read_b64 {vr(134,2)}, v{vT}', 'c5')
hs = [4, 5, 6, 7, 8, 9, 10, 11, 12, 13, sLN, sLN+1]
A(f's_mul_i32 s{hs[0]}, s{sWAVE}, {11*1024}')
A(f's_add_u32 s{hs[0]}, s{hs[0]}, s{sCB}')
for k in range(1, 6): A(f's_add_u32 s{hs[k]}, s{hs[0]}, {(k//3)*HRT + (k%3)*4096}')

poll_check(5)
stamp('h1A seen')
aAC = 112
NH = 16
hb = [144 + 4*k for k in range(NH)]
hseq = [(r, kk) for kk in range(11) for r in (0, 1)] + [(r, kk) for r in (2, 3) for kk in range(11)]
def h_load(n, E):
    r, kk = hseq[n]
    vo = vLAST if kk == 10 else vOFF16
    E(f'buffer_load_dwordx4 {vr(hb[n%NH],4)}, v{vo}, {srd(SWS)}, s{hs[3*r+(kk>>2)]} offen offset:{(kk&3)*1024} sc1', 'vm', f'h{n}')
LH = opt('lh', 10)
for n in range(opt('lh0', 6)): h_load(n, A)
nload = opt('lh0', 6)
for kk in range(opt('zc1', 8)): z_catch(kk)
wait('stB'); R_('s_barrier'); flag(6, 'stB', E0)
stamp('h1B published')
for k in range(6, 12): lo(f's_add_u32 s{hs[k]}, s{hs[0]}, {(k//3)*HRT + (k%3)*4096}')
vRA = vT + 2; vPX = vDQ
L_RED = L_B
for c in range(4):
    lo(f's_add_u32 s{sT0}, s{sWAVE}, {c}')
    lo(f's_and_b32 s{sT0}, s{sT0}, 3')
    lo(f's_mul_i32 s{sT0}, s{sT0}, 12288')
    lo(f's_add_u32 s{sT0}, s{sT0}, {L_RED + max(c-1, 0)*4096}')
    lo(f'v_add_u32 v{vRA + (c-1 if c else 3)}, s{sT0}, v{vOFF16}')
lo(f'v_and_b32 v{vT+1}, 1, v{vG}')
lo(f'v_lshlrev_b32 v{vPX}, 10, v{vI}')
lo(f'v_lshl_add_u32 v{vPX}, v{vT+1}, 14, v{vPX}')
lo(f'v_lshrrev_b32 v{vT+1}, 1, v{vG}')
lo(f'v_lshl_add_u32 v{vPX}, v{vT+1}, 4, v{vPX}')
sXO2 = sLN+2
lo(f's_add_u32 s{sXO2}, s{sXO}, 32768')
lo_wait(None, 'c5')
unpack(vGG, vGG+2, lo); unpack(vGG+2, vGG+3, lo); unpack(132, 134, lo); unpack(134, 135, lo)
for r2 in range(4):
    for e in range(4): lo(f'v_fmac_f32 v{vX1+4*r2+e}, v{vGG+e}, v{132+e}')
vR, vOW, vOUT = 64, 208, 224
def red_write(r, E):
    for c in range(1, 4):
        E(f'ds_write_b128 v{vRA+c-1}, {ar(aAC+16*r+4*c,4)} offset:{r*1024}', 'lg', f'rw{r}')
def red_read(r, E):
    for c in range(3):
        E(f'ds_read_b128 {vr(vR+12*r+4*c,4)}, v{vRA+3} offset:{c*4096 + r*1024}', 'lg', f'rr{r}')
def fin(r, E, pk):
    y = vR + 12*r
    for e in range(4): E(f'v_accvgpr_read_b32 v{vOW+4*r+e}, a{aAC+16*r+e}')
    if pk:
        for h in range(2): E(f'v_pk_add_f32 {vr(y+2*h,2)}, {vr(y+2*h,2)}, {vr(y+4+2*h,2)}')
        for h in range(2): E(f'v_pk_add_f32 {vr(y+8+2*h,2)}, {vr(y+8+2*h,2)}, {vr(vOW+4*r+2*h,2)}')
        for h in range(2): E(f'v_pk_add_f32 {vr(y+2*h,2)}, {vr(y+2*h,2)}, {vr(y+8+2*h,2)}')
        for h in range(2): E(f'v_pk_fma_f32 {vr(y+2*h,2)}, {vr(vGG+2*h,2)}, {vr(y+2*h,2)}, {vr(vX1+4*r+2*h,2)}')
    else:
        for e in range(4): E(f'v_add_f32 v{y+e}, v{y+e}, v{y+4+e}')
        for e in range(4): E(f'v_add_f32 v{y+8+e}, v{y+8+e}, v{vOW+4*r+e}')
        for e in range(4): E(f'v_add_f32 v{y+e}, v{y+e}, v{y+8+e}')
        for e in range(4): E(f'v_fma_f32 v{y+e}, v{vGG+e}, v{y+e}, v{vX1+4*r+e}')
    o = vOUT + 4*(r >> 1)
    for h in range(2): E(f'v_cvt_pk_bf16_f32 v{o+2*(r&1)+h}, v{y+2*h}, v{y+2*h+1}')
    if r & 1:
        E(f'v_permlane16_swap_b32 v{o}, v{o+2}')
        E(f'v_permlane16_swap_b32 v{o+1}, v{o+3}')
        E(f'buffer_store_dwordx4 {vr(o,4)}, v{vPX}, {srd(SOUT)}, s{sXO2 if r >> 1 else sXO} offen', 'vm', 'out')
okB = False
for n, (r, kk) in enumerate(hseq):
    if n == opt('pb4', 4): poll_issue(6, hi)
    if n == opt('pc4', 13):
        lo_flush(); poll_check(6); okB = True
        stamp('h1B seen', 3)
    for _ in range(2):
        if nload < min(n + LH, 44 if okB else 22) and len(HI) < 2:
            h_load(nload, hi); nload += 1
    if n < 22 and r == 0 and kk + 2 < 11: z_catch(kk + 2, mid)
    if n == 23:
        mid_flush(); wait_all_lg(); R_('s_barrier')
    if n == 24: red_write(0, mid); red_write(1, mid)
    if n == 35: red_write(2, mid)
    if n == opt('rb', 38):
        wait(None, 'rw2'); R_('s_barrier')
        for r2 in range(3): red_read(r2, mid)
        for r2 in range(3):
            lo_wait(None, f'rr{r2}'); fin(r2, lo, False)
    assert nload > n
    wait(f'h{n}', f'zr{kk}')
    cs_ = [1, 2, 3, 0]
    for ci, c in enumerate(cs_):
        acc = ar(aAC+16*r+4*c, 4)
        mfma(f'v_mfma_f32_16x16x32_bf16 {acc}, {ar(w2_areg(kk)+4*c,4)}, {vr(hb[n%NH],4)}, {"0" if kk==0 else acc}', 2 if ci < 3 else 1)
stamp('P4 gemm done')
mid_flush()
red_write(3, A)
lo_flush()
wait(None, 'rw3'); R_('s_barrier')
red_read(3, A)
wait(None, 'rr3')
fin(3, A, True)
if TWICE:
    R_('s_waitcnt vmcnt(0)')
    R_('s_barrier')
    R_(f'v_readlane_b32 s{sT0}, v31, 42'); R_('s_nop 3'); R_(f's_cmp_lg_u32 s{sT0}, 0'); R_('s_cbranch_scc1 L_fin')
    R_(f's_mov_b32 s{sT0}, 256'); R_(f'v_writelane_b32 v31, s{sT0}, 42')
    R_('v_readlane_b32 s0, v31, 40'); R_('v_readlane_b32 s1, v31, 41')
    R_(f's_lshl_b32 s{sT0}, s{sWAVE}, 6'); R_(f'v_or_b32 v0, s{sT0}, v0'); R_('s_nop 4')
    R_('s_branch L_again')
    R_('L_fin:')
if STAMP:
    R_('s_waitcnt vmcnt(0)')
    stamp('end')
    R_(f's_memrealtime {sp(sTM)}')
    R_('s_waitcnt lgkmcnt(0)')
    R_(f's_lshl_b32 s{sT0}, s2, 7')
    R_(f's_lshl_b32 s{sT1}, s{sWAVE}, 15')
    R_(f's_add_u32 s{sT0}, s{sT0}, s{sT1}')
    R_(f's_add_u32 s{sT0}, s{sT0}, {WS_STAMP}')
    R_(f'v_writelane_b32 v31, s{sTM}, 29')
    R_(f'v_writelane_b32 v31, s{sSPIN}, 30')
    R_(f'v_writelane_b32 v31, s{sLOCAL}, 31')
    R_(f'v_lshlrev_b32 v{vT}, 2, v{vLANE}')
    R_('s_mov_b64 exec, 0xffffffff')
    R_(f'buffer_store_dword v31, v{vT}, {srd(SWS)}, s{sT0} offen')
R_('s_endpgm')
R_('.fill 2048, 4, 0xbf800000')
assert not HI and not LO and not BG.q and not MID
print(f"""; Kernarg layout (104 bytes, ptrs only, base s[0:1]): A_x, A_wqkv, A_wo, B_x, B_w1, B_b1, B_w2, B_b2, c, w_mod, d_out, d_debug, d_ws
; @launch grid=(256,1,1) block=(256,1,1) lds={LDS_BYTES}
.amdgcn_target "amdgcn-amd-amdhsa--gfx950"
.text
.globl {NAME}_kernel
.p2align 8
.type {NAME}_kernel,@function
{NAME}_kernel:""")
sys.stdout.write(R_.render())
print(f""".section .rodata,"a"
.p2align 6
.amdhsa_kernel {NAME}_kernel
  .amdhsa_next_free_vgpr 512
  .amdhsa_next_free_sgpr 102
  .amdhsa_accum_offset 256
  .amdhsa_group_segment_fixed_size 0
  .amdhsa_kernarg_size 104
  .amdhsa_user_sgpr_count 2
  .amdhsa_user_sgpr_kernarg_segment_ptr 1
  .amdhsa_system_sgpr_workgroup_id_x 1
.end_amdhsa_kernel""")
sys.stderr.write(f'\nstamps={nstamp[0]} nops={R_.nnop} lines={len(R_.lines)}\n')
```

```python
from infra import *
NAME = 'adaLN_cond__sliding_local_dilated__mixer_channel_mlp__prompt'
FORCE_GLOBAL = '--global' in sys.argv
WS_XCC, WS_MOD, WS_STAMP, WS_CL = 0x1000, 0x2000, 0x20000, 0x100000
HRT = 43*1024
C_U = 4*HRT; C_A = C_U; C_ST = C_U + 65536; C_FLAG = C_ST + 24576
CLSZ = 0x48000
WS_SIZE = WS_CL + 32*CLSZ
L_A1, L_B, L_MISC = 0, 81920, 147456
L_MODT = L_MISC - 2048
L_ONES = L_MISC + 4096
L_ST1  = L_MISC + 5120
L_ST2  = L_MISC + 13312
L_P0S  = L_MISC + 15360
L_B2   = L_MISC + 15616
LDS_BYTES = 163840
sWAVE = 3
SX, SWQKV, SWO, SW1, SW2, SWS, SOUT, SWMOD = 32, 36, 40, 44, 48, 52, 56, 60
sB1, sB2, sC = 14, 18, 20
sCL, sJ, sTAG, sLOCAL, sR0 = 64, 65, 66, 67, 68
sT0, sT1, sT2 = 69, 70, 71
sLN = 72; sG = 80; sCB = 86
sSOFF, sSLDS, sWOFF, sWLDS, sD0 = 87, 88, 89, 90, 91
sIW, sWMB, sGW, sB1O = 92, 93, 94, 95
sXO, sSB, sHB, sMSK, sP, sCQ = 96, 97, 98, 99, 100, 101
sXCC, sWM, sS1OFF, sOST, sFL = 26, 27, 22, 16, 17
sGM, sGX, sW4 = 23, 24, 25
vLANE, vOFF16, vDQ, vTRQA, vTA, vTCH = 0, 1, 2, 3, 4, 5
vDW, vAR4, vAR, vTRQ, vTRW, vI, vG, vT = 6, 10, 14, 18, 19, 23, 24, 25
vDWO, vXO, vTR1, vPO, vPH, vFLO, vFLV, vZ, vMC, vO8 = 32, 33, 34, 37, 38, 39, 40, 41, 42, 43
vXA, vSTA, vLAST, vONE = 44, 45, 46, 47
vM, vD1, vBI, vWMO, vP0A, vS = 48, 52, 55, 58, 59, 60
LOG2E = 1.4426950408889634
def mk_srd(b, ptr, size):
    A(f's_mov_b32 s{b}, s{ptr}'); A(f's_mov_b32 s{b+1}, s{ptr+1}')
    A(f's_mov_b32 s{b+2}, {hx(size)}'); A(f's_mov_b32 s{b+3}, 0x00020000')

CLW = opt('clw', 8)
vXR0, vHS, vTQ, vTM = 64, 164, 90, 91
A('s_cmp_lt_u32 s2, 256')
A('s_cbranch_scc1 L_go')
A('s_endpgm')
A('L_go:')
TWICE = opt('twice', 0)
if TWICE:
    R_('v_writelane_b32 v31, s0, 40'); R_('v_writelane_b32 v31, s1, 41'); R_('v_mov_b32 v30, 0'); R_('s_mov_b32 s3, 0'); R_('v_writelane_b32 v31, s3, 42')
    R_('L_again:')
A('s_load_dwordx16 s[4:19], s[0:1], 0')
A('s_load_dwordx8 s[20:27], s[0:1], 64')
A('s_load_dwordx2 s[28:29], s[0:1], 96')
A(f's_getpc_b64 {sp(sTM)}')
A(f'v_lshrrev_b32 v{vT}, 6, v0')
A(f'v_and_b32 v{vLANE}, 63, v0')
A(f'v_readfirstlane_b32 s{sWAVE}, v{vT}')
A(f's_bfe_u32 s{sJ}, s2, 0x30003')
A(f's_lshl_b32 s{sT2}, s{sJ}, 2')
A(f's_add_u32 s{sT2}, s{sT2}, s{sWAVE}')
A(f's_mul_i32 s{sT0}, s{sT2}, {CLW*128}')
A(f'v_lshlrev_b32 v{vTA}, 7, v{vLANE}')
A(f'v_add_u32 v{vT}, s{sT0}, v{vTA}')
A(f's_mov_b64 exec, {hx((1<<CLW)-1)}')
vm(f'global_load_dword v{vTCH}, v{vT}, {sp(sTM)}', 'touch')
A('s_mov_b64 exec, -1')
A(f'v_lshlrev_b32 v{vOFF16}, 4, v{vLANE}')
A(f's_and_b32 s{sT0}, s2, 7')
A(f's_lshr_b32 s{sCQ}, s2, 6')
A(f's_lshl_b32 s{sCL}, s{sT0}, 2')
A(f's_add_u32 s{sCL}, s{sCL}, s{sCQ}')
A(f's_lshl_b32 s{sR0}, s{sCL}, 6')
A(f's_lshr_b32 s{sIW}, s2, 3')
A(f's_lshl_b32 s{sIW}, s{sIW}, 2')
A(f's_add_u32 s{sIW}, s{sIW}, s{sWAVE}')
A(f'v_lshrrev_b32 v{vT+2}, 2, v{vLANE}')
A(f'v_mul_u32_u24 v{vTM}, 6144, v{vT+2}')
A(f'v_and_b32 v{vT+2}, 3, v{vLANE}')
A(f'v_lshl_add_u32 v{vTM}, v{vT+2}, 7, v{vTM}')
A(f's_mul_i32 s{sLN+1}, s{sIW}, {4*6144}')
A(f's_lshl_b32 s{sT1}, s{sT0}, 9')
A(f's_add_u32 s{sWMB}, s{sLN+1}, s{sT1}')
A(f's_lshl_b32 s{sT1}, s{sT0}, 8')
A(f's_add_u32 s{sLN+1}, s{sLN+1}, s{sT1}')
sRL = [sG, sG+1, sG+2]; sRG = [sLN+4, sLN+5, sLN+6]
A(f's_mul_i32 s{sRL[0]}, s{sJ}, 10')
A(f's_add_u32 s{sRL[0]}, s{sRL[0]}, s{sWAVE}')
A(f's_add_u32 s{sRL[1]}, s{sRL[0]}, 4')
A(f's_add_u32 s{sRL[2]}, s{sRL[0]}, 8')
A(f's_min_u32 s{sRL[2]}, s{sRL[2]}, 79')
for k in range(3):
    A(f's_add_u32 s{sRG[k]}, s{sRL[k]}, s{sR0}')
    A(f's_sub_u32 s{sRG[k]}, s{sRG[k]}, 16')
    A(f's_max_i32 s{sRG[k]}, s{sRG[k]}, 0')
    A(f's_lshl_b32 s{sRG[k]}, s{sRG[k]}, 10')
A(f's_lshl_b32 s{sP}, s{sT0}, 3')
A(f's_min_u32 s{sT1}, s{sCQ}, 2')
A(f's_lshl_b32 s{sT1}, s{sT1}, 3')
A(f's_add_u32 s{sT1}, s{sT1}, 56')
A(f's_add_u32 s{sT1}, s{sT1}, s{sP}')
A(f's_cmp_eq_u32 s{sCQ}, 0')
A(f's_cselect_b32 s{sT1}, 0, s{sT1}')
A(f's_add_u32 s{sP}, s{sP}, s{sT1}')
A(f's_add_u32 s{sP}, s{sP}, s{sJ}')
A(f's_lshl_b32 s{sGW}, s2, 2')
A(f's_add_u32 s{sGW}, s{sGW}, s{sWAVE}')
A(f's_mul_i32 s{sT1}, s{sGW}, {12*128}')
A(f'v_add_u32 v{vTQ}, s{sT1}, v{vTA}')
A(f's_mul_i32 s{sT1}, s{sIW}, {12*1024}')
A(f's_add_u32 s{sT1}, s{sT1}, {hx(384 - 12*1024)}')
A(f'v_lshl_add_u32 v{vT+2}, v{vLANE}, 10, s{sT1}')
A(f'v_cmp_lt_u32 vcc, 11, v{vLANE}')
A(f'v_lshrrev_b32 v{vT+1}, 1, v{vLANE}')
A(f's_lshl_b32 s{sT0}, s{sWAVE}, 8')
A(f'v_cndmask_b32 v{vTQ}, v{vTQ}, v{vT+2}, vcc')
A(f'v_mul_u32_u24 v{vWMO}, {4*6144}, v{vT+1}')
A(f'v_lshl_add_u32 v{vT+1}, v{vT+1}, 3, s{sT0}')
A(f'v_mov_b32 v{vT+3}, 0')
A('s_waitcnt lgkmcnt(0)')
A(f's_mov_b64 s[0:1], {sp(sTM)}')
DBG = opt('dbg', 0)
if DBG:
    R_('v_writelane_b32 v31, s26, 50'); R_('v_writelane_b32 v31, s27, 51')
    R_(f's_memrealtime {sp(sTM)}'); R_('s_waitcnt lgkmcnt(0)'); R_(f'v_writelane_b32 v31, s{sTM}, 52')
    R_(f's_memtime {sp(sTM)}'); R_('s_waitcnt lgkmcnt(0)'); R_(f'v_writelane_b32 v31, s{sTM}, 53')
stamp('kernarg')
if STAMP:
    R_(f's_memrealtime {sp(sTM)}'); R_('s_waitcnt lgkmcnt(0)'); R_(f'v_writelane_b32 v31, s{sTM}, 28')
mk_srd(SWMOD, 22, 512*3072*2)
A('s_mov_b64 exec, 0x3333')
vm(f'buffer_load_dword v{vTCH}, v{vTM}, {srd(SWMOD)}, s{sLN+1} offen', 'touch')
A('s_mov_b64 exec, -1')
mk_srd(SWS, 28, WS_SIZE)
vE, vCV = vT+4, 62
vm(f'buffer_load_dword v{vE}, v{vT+3}, {srd(SWS)}, 0 offen sc1', 'E')
vm(f'global_load_dwordx2 {vr(vCV,2)}, v{vT+1}, {sp(sC)}', 'E')
mk_srd(SWQKV, 6, 512*1536*2)
A('s_mov_b64 exec, 0xffffff')
vm(f'buffer_load_dword v{vTCH}, v{vTQ}, {srd(SWQKV)}, 0 offen', 'touch')
A('s_mov_b64 exec, -1')
mk_srd(SWO, 8, 512*512*2)
A(f's_lshl_b32 s{sT0}, s{sGW}, 9')
A(f'v_add_u32 v{vTQ}, s{sT0}, v{vTA}')
A(f's_lshl_b32 s{sT0}, s{sIW}, 12')
A(f's_add_u32 s{sT0}, s{sT0}, {hx(384 - 4*1024)}')
A(f'v_lshl_add_u32 v{vT+2}, v{vLANE}, 10, s{sT0}')
A(f'v_cmp_lt_u32 vcc, 3, v{vLANE}')
A(f'v_cndmask_b32 v{vTQ}, v{vTQ}, v{vT+2}, vcc')
A('s_mov_b64 exec, 0xff')
vm(f'buffer_load_dword v{vTCH}, v{vTQ}, {srd(SWO)}, 0 offen', 'touch')
A('s_mov_b64 exec, -1')
mk_srd(SX, 4, 2048*512*2)
mk_srd(SW1, 12, 512*1376*2)
mk_srd(SW2, 16, 1376*512*2)
mk_srd(SOUT, 24, 2048*512*2)
A(f's_mov_b32 s{sSPIN}, 0')
A(f's_mul_i32 s{sCB}, s{sCL}, {CLSZ}')
A(f's_add_u32 s{sCB}, s{sCB}, {WS_CL}')
A(f's_getreg_b32 s{sXCC}, hwreg(HW_REG_XCC_ID)')
A(f's_and_b32 s{sXCC}, s{sXCC}, 15')
A(f's_mul_i32 s{sWM}, s{sWAVE}, {128*6144}')
A(f's_lshl_b32 s{sT1}, s{sP}, 5')
A(f's_add_u32 s{sWM}, s{sWM}, s{sT1}')
t0, t1, t2, t3 = vT, vT+1, vT+2, vT+3
vRR, vC8, vFSW, vL8 = 92, 93, 94, 95
A(f'v_and_b32 v{t3}, 1, v{vLANE}')
A(f'v_lshl_add_u32 v{vWMO}, v{t3}, 4, v{vWMO}')
A(f'v_and_b32 v{vI}, 15, v{vLANE}')
A(f'v_lshrrev_b32 v{vG}, 4, v{vLANE}')
A(f'v_lshrrev_b32 v{t0}, 1, v{vG}')
A(f'v_and_b32 v{t1}, 1, v{vG}')
A(f'v_lshl_add_u32 v{t2}, v{t1}, 1, v{t0}')
A(f'v_lshl_add_u32 v{t2}, v{t3}, 3, v{t2}')
A(f's_lshl_b32 s{sT0}, s{sWAVE}, 6')
A(f's_add_u32 s{sT0}, s{sT0}, {L_P0S}')
A(f'v_lshl_add_u32 v{vP0A}, v{t2}, 2, s{sT0}')
A(f'v_and_b32 v{t3}, 7, v{vLANE}')
A(f'v_lshlrev_b32 v{vFLO}, 2, v{t3}')
A(f'v_lshlrev_b32 v{t3}, 4, v{t3}')
A(f'v_lshlrev_b32 v{t2}, 5, v{t1}')
A(f'v_xor_b32 v{t3}, v{t3}, v{t2}')
A(f'v_lshrrev_b32 v{vL8}, 3, v{vLANE}')
A(f's_and_b32 s{sT2}, s{sWAVE}, 1')
A(f's_lshl_b32 s{sT2}, s{sT2}, 6')
A(f'v_xor_b32 v{t1}, s{sT2}, v{t3}')
A(f'v_mul_u32_u24 v{vDQ}, 3072, v{vL8}')
A(f'v_add_u32 v{vDQ}, v{vDQ}, v{t1}')
A(f's_mul_i32 s{sSOFF}, s{sWAVE}, {8*3072}')
A(f's_lshl_b32 s{sT0}, s{sJ}, 7')
A(f's_add_u32 s{sSOFF}, s{sSOFF}, s{sT0}')
A(f's_mul_i32 s{sSLDS}, s{sWAVE}, 3072')
vWM = 96
def wmod_load_units(dst, tag, kind):
    U = []
    for n in range(4):
        U.append((f's_add_u32 s{sD0}, s{sWM}, {6144*n}', None, None))
        U.append((f'buffer_load_dwordx4 {vr(dst+4*n,4)}, v{vWMO}, {srd(SWMOD)}, s{sD0} offen', kind, tag))
    return U
l0 = label('Lnt')
R_(f's_sub_u32 s{sT1}, s{sCQ}, 1')
R_(f's_cmp_gt_u32 s{sT1}, 1')
R_(f's_cbranch_scc1 {l0}')
R_(f's_and_b32 s{sD0}, s{sP}, 3')
R_(f's_mul_i32 s{sD0}, s{sD0}, 6144')
R_(f's_add_u32 s{sD0}, s{sD0}, s{sWM}')
E0(f'buffer_load_dword v{vTCH}, v{vWMO}, {srd(SWMOD)}, s{sD0} offen', 'vm0', 'touch')
R_(f'{l0}:')
A(f'v_lshl_add_u32 v{vDW}, v{vL8}, 10, v{t3}')
A(f'v_xor_b32 v{vDW+1}, 64, v{vDW}')
A(f'v_add_u32 v{vDW+1}, 7168, v{vDW+1}')
A(f'v_add_u32 v{vDW+2}, {2*7168}, v{vDW}')
A(f'v_add_u32 v{vDW+3}, {2*7168}, v{vDW+1}')
A(f'v_lshl_add_u32 v{vDWO}, v{vL8}, 10, v{t1}')
A(f's_lshl_b32 s{sWOFF}, s{sWAVE}, 13')
A(f's_add_u32 s{sWOFF}, s{sWOFF}, s{sT0}')
A(f's_lshl_b32 s{sWLDS}, s{sWAVE}, 10')
A(f's_lshl_b32 s{sW4}, s{sWAVE}, 12')
A(f'v_mov_b32 v{vONE}, 0x3f803f80')
A(f'v_bfe_u32 v{vRR}, v{vLANE}, 2, 2')
A(f'v_lshrrev_b32 v{t1}, 1, v{vRR}')
A(f'v_and_b32 v{t2}, 1, v{vG}')
A(f'v_lshl_add_u32 v{vFSW}, v{t2}, 1, v{t1}')
A(f'v_and_b32 v{vC8}, 3, v{vLANE}')
A(f'v_lshlrev_b32 v{vC8}, 3, v{vC8}')
A(f'v_mul_u32_u24 v{t2}, 3072, v{vG}')
A(f'v_lshl_add_u32 v{t2}, v{vRR}, 7, v{t2}')
A(f'v_add_u32 v{t2}, v{t2}, v{vC8}')
A(f'v_xor_b32 v{t1}, s{sWAVE}, v{vFSW}')
A(f'v_lshl_add_u32 v{vTRQA}, v{t1}, 5, v{t2}')
A(f'v_add_u32 v{vTRQ}, {L_B}, v{vTRQA}')
A(f'v_lshl_add_u32 v{t3}, v{vG}, 3, v{vRR}')
A(f'v_lshl_add_u32 v{t2}, v{t3}, 7, v{vC8}')
A(f'v_add_u32 v{t2}, {L_B}, v{t2}')
for c in range(4):
    A(f's_add_u32 s{sT1}, s{sWAVE}, {c}')
    A(f's_and_b32 s{sT1}, s{sT1}, 3')
    A(f'v_xor_b32 v{t1}, s{sT1}, v{vFSW}')
    A(f'v_lshl_add_u32 v{vTRW+c}, v{t1}, 5, v{t2}')
A(f'v_mul_u32_u24 v{t0}, 384, v{t3}')
A(f'v_add_u32 v{t0}, v{t0}, v{vC8}')
A(f'v_add_u32 v{t0}, {L_B}, v{t0}')
A(f's_mul_i32 s{sT1}, s{sWAVE}, 3')
A(f's_mul_i32 s{sHB}, s{sJ}, 12')
A(f's_min_u32 s{sHB}, s{sHB}, 74')
A(f's_mul_i32 s{sS1OFF}, s{sWAVE}, {8*2752}')
A(f's_lshl_b32 s{sT0}, s{sHB}, 5')
A(f's_add_u32 s{sS1OFF}, s{sS1OFF}, s{sT0}')
A(f's_add_u32 s{sHB}, s{sHB}, s{sT1}')
A(f's_lshl_b32 s{sB1O}, s{sHB}, 5')
A(f's_lshl_b32 s{sHB}, s{sHB}, 9')
A(f's_add_u32 s{sHB}, s{sHB}, s{sCB}')
for tt in range(3):
    A(f'v_xor_b32 v{t1}, s{sT1}, v{vFSW}')
    A(f'v_lshl_add_u32 v{vTR1+tt}, v{t1}, 5, v{t0}')
    if tt < 2: A(f's_add_u32 s{sT1}, s{sT1}, 1')
for k in range(3):
    A(f's_and_b32 s{sT0}, s{sRL[k]}, 15')
    A(f's_lshl_b32 s{sT1}, s{sRL[k]}, 10')
    if k == 2:
        A(f's_cmp_lt_u32 s{sWAVE}, 2')
        A(f's_cselect_b32 s{sT1}, s{sT1}, 0x7ff00000')
    A(f'v_xor_b32 v{t0}, s{sT0}, v{vLANE}')
    A(f'v_lshl_add_u32 v{vHS+k}, v{t0}, 4, s{sT1}')
A(f'v_lshlrev_b32 v{t1}, 10, v{vI}')
A(f'v_lshl_add_u32 v{vXO}, v{vG}, 3, v{t1}')
for m in range(4):
    A(f'v_add_u32 v{t0}, {4*m}, v{vG}')
    A(f'v_xor_b32 v{t0}, v{t0}, v{vI}')
    A(f'v_lshl_add_u32 v{vAR+m}, v{t0}, 4, v{t1}')
    A(f'v_add_u32 v{vAR4+m}, 0x10000, v{vAR+m}')
for n in range(3):
    A(f'v_add_u32 v{t0}, {64*n}, v{vLANE}')
    A(f'v_mul_u32_u24 v{t1}, 2731, v{t0}')
    A(f'v_lshrrev_b32 v{t1}, 16, v{t1}')
    A(f'v_mul_u32_u24 v{t2}, 24, v{t1}')
    A(f'v_sub_u32 v{t2}, v{t0}, v{t2}')
    A(f'v_lshlrev_b32 v{t2}, 4, v{t2}')
    A(f'v_bfe_u32 v{t3}, v{t1}, 1, 1')
    A(f'v_lshlrev_b32 v{t3}, 5, v{t3}')
    A(f'v_xor_b32 v{t2}, v{t2}, v{t3}')
    A(f'v_xor_b32 v{t2}, s{sT2}, v{t2}')
    A(f'v_mul_u32_u24 v{t1}, 2752, v{t1}')
    A(f'v_add_u32 v{vD1+n}, v{t1}, v{t2}')
    if n: A(f'v_subrev_u32 v{vD1+n}, {n*1024}, v{vD1+n}')
A(f's_cmp_eq_u32 s{sWAVE}, 3')
A(f's_cselect_b32 s{sT0}, 0x7ffffff0, 0')
A(f'v_or_b32 v{vLAST}, s{sT0}, v{vOFF16}')
A(f's_mov_b32 s{sMSK}, 0x7f800000')
A(f's_cmp_eq_u32 s{sCL}, 0')
A(f's_cselect_b32 s{sMSK}, {hx(f2u(-4e9))}, s{sMSK}')
A(f'v_lshlrev_b32 v{t0}, 2, v{vG}')
for r in range(4):
    A(f'v_add_u32 v{t1}, {r}, v{t0}')
    A(f'v_cmp_le_u32 {sp(4+2*r)}, v{t1}, v{vI}')
A(f'v_and_b32 v{t1}, 1, v{vI}')
A(f'v_cmp_eq_u32 {sp(12)}, 1, v{t1}')
A(f'v_mov_b32 v{t2}, 0xffff')
A(f'v_mov_b32 v{t3}, 0xffff0000')
A(f'v_cndmask_b32 v{t2}, v{t2}, v{t3}, {sp(12)}')
A(f'v_add_u32 v{t1}, v{t1}, v{t0}')
for k in range(2):
    A(f'v_cmp_le_u32 vcc, v{t1}, v{vI}')
    A(f'v_cndmask_b32 v{vM+2+k}, 0, v{t2}, vcc')
    A(f'v_xor_b32 v{vM+k}, v{vM+2+k}, v{t2}')
    if k == 0: A(f'v_add_u32 v{t1}, 2, v{t1}')
A(f'v_lshrrev_b32 v{t0}, 1, v{vG}')
A(f'v_and_b32 v{t1}, 1, v{vG}')
A(f'v_lshlrev_b32 v{t0}, 8, v{t0}')
A(f'v_lshl_add_u32 v{t0}, v{vI}, 4, v{t0}')
A(f'v_lshl_add_u32 v{vPO}, v{t1}, 14, v{t0}')
A(f'v_mul_u32_u24 v{t1}, {HRT}, v{t1}')
A(f'v_add_u32 v{vPH}, v{t1}, v{t0}')
A(f's_lshl_b32 s{sOST}, s{sJ}, 11')
A(f's_lshl_b32 s{sT1}, s{sWAVE}, 9')
A(f's_add_u32 s{sOST}, s{sOST}, s{sT1}')
A(f's_add_u32 s{sOST}, s{sOST}, s{sCB}')
A(f's_add_u32 s{sFL}, s{sCB}, {C_FLAG}')
A(f's_lshl_b32 s{sT0}, s{sJ}, 2')
A(f'v_mov_b32 v{vZ}, s{sT0}')
A(f's_lshl_b32 s{sT0}, s{sJ}, 7')
A(f's_lshl_b32 s{sT1}, s{sWAVE}, 5')
A(f's_add_u32 s{sT0}, s{sT0}, s{sT1}')
A(f's_lshl_b32 s{sXO}, s{sR0}, 10')
A(f's_add_u32 s{sXO}, s{sXO}, s{sT0}')
A(f's_add_u32 s{sT0}, s{sT0}, {L_MODT}')
A(f'v_lshl_add_u32 v{vMC}, v{vG}, 3, s{sT0}')
A(f'v_lshlrev_b32 v{vO8}, 3, v{vLANE}')
A(f's_lshl_b32 s{sSB}, s{sWAVE}, 8')
A(f's_add_u32 s{sSB}, s{sSB}, s{sCB}')
A(f's_add_u32 s{sSB}, s{sSB}, {C_ST}')
A(f'v_mul_u32_u24 v{vSTA}, 6144, v{vG}')
A(f'v_lshl_add_u32 v{vSTA}, v{vI}, 4, v{vSTA}')
A(f'v_lshrrev_b32 v{t0}, 2, v{vI}')
A(f'v_mov_b32 v{vXA}, {L_ONES}')
A(f'v_mov_b32 v{t2}, {L_MODT+4*1024}')
A(f'v_cmp_eq_u32 vcc, 0, v{t0}')
A(f'v_cndmask_b32 v{vXA}, v{vXA}, v{t2}, vcc')
A(f'v_mov_b32 v{t2}, {L_MODT+3*1024}')
A(f'v_cmp_eq_u32 vcc, 1, v{t0}')
A(f'v_cndmask_b32 v{vXA}, v{vXA}, v{t2}, vcc')
A(f'v_lshl_add_u32 v{vXA}, v{vG}, 4, v{vXA}')
A(f's_lshl_b32 s{sGX}, s{sCL}, 6')
A(f's_add_u32 s{sGX}, s{sGX}, {WS_XCC}')
A(f's_lshl_b32 s{sGM}, s{sWAVE}, 11')
A(f's_add_u32 s{sGM}, s{sGM}, {WS_MOD + 4096}')
vTP, vTW2 = 252, 178
A(f'v_bfe_u32 v{t0}, v{vLANE}, 2, 2')
A(f'v_mul_u32_u24 v{t0}, 6144, v{t0}')
A(f'v_and_b32 v{t1}, 3, v{vLANE}')
A(f'v_lshl_add_u32 v{vTP}, v{t1}, 7, v{t0}')
A(f's_mul_i32 s{sT0}, s{sGW}, {11*128}')
A(f'v_min_u32 v{t0}, {10*128}, v{vTA}')
A(f'v_add_u32 v{vTP+1}, s{sT0}, v{t0}')
A(f'v_lshl_add_u32 v{vTP+2}, v{vI}, 1, s{sB1O}')
A(f's_lshl_b32 s{sT0}, s{sJ}, 7')
A(f'v_min_u32 v{t0}, 31, v{vLANE}')
A(f'v_lshl_add_u32 v{vTP+3}, v{t0}, 2, s{sT0}')
A(f's_mul_i32 s{sT0}, s{sIW}, {11*1024}')
A(f's_add_u32 s{sT0}, s{sT0}, {hx(384 - 11*1024)}')
A(f'v_min_u32 v{t0}, 21, v{vLANE}')
A(f'v_lshl_add_u32 v{t0}, v{t0}, 10, s{sT0}')
A(f'v_cmp_lt_u32 vcc, 10, v{vLANE}')
A(f'v_cndmask_b32 v{vTW2}, v{vTP+1}, v{t0}, vcc')
vON = 180
for r in range(4): A(f'v_mov_b32 v{vON+r}, 0x3f803f80')
A(f'v_add_u32 v{t1}, {L_ONES}, v{vOFF16}')
lg(f'ds_write_b128 v{t1}, {vr(vON,4)}', 'ones')
stamp('setup', 1)
l0 = label('Lnw')
R_(f's_cmp_eq_u32 s{sCQ}, 3')
R_(f's_cbranch_scc1 {l0}')
for u in wmod_load_units(vWM, 'wmodA', 'vm0'): emit(u)
R_(f'{l0}:')

def q_lds(n):
    if n == 0: return 65536
    if n <= 5: return L_B + (n-1)*12288
    if n <= 11: return L_A1 + (n-6)*12288
    return L_B + (n-12)*12288
def q_enq(n):
    for p in range(3):
        bg_dma(f's_add_u32 m0, s{sSLDS}, {q_lds(n)}', f's_add_u32 s{sD0}, s{sSOFF}, {n*32*3072}',
               f'buffer_load_dwordx4 v{vDQ}, {srd(SWQKV)}, s{sD0} offen offset:{p*1024} lds', f'q{n}')
def q_read(lo_, hi_, E):
    for n in range(lo_, hi_):
        for p in range(3):
            a = 64*p + 4*n
            base, off = (vTRQA, q_lds(n) - L_A1) if q_lds(n) < L_B else (vTRQ, q_lds(n) - L_B)
            if n == 0: base, off = vT+2, 0
            off += p*1024
            E(f'ds_read_b64_tr_b16 {ar(a,2)}, v{base} offset:{off}', 'lg', f'qr{n}')
            E(f'ds_read_b64_tr_b16 {ar(a+2,2)}, v{base} offset:{off+512}', 'lg', f'qr{n}')
def wo_enq(kk):
    bg_dma(f's_add_u32 m0, s{sWLDS}, {L_A1 + kk*4096}', f's_add_u32 s{sD0}, s{sWOFF}, {kk*32*1024}',
           f'buffer_load_dwordx4 v{vDWO}, {srd(SWO)}, s{sD0} offen lds', 'wo')

for kk in range(opt('xat', 4)): wo_enq(kk)
for k in range(3):
    bg(f'buffer_load_dwordx4 {vr(vXR0+8*k+4,4)}, v{vOFF16}, {srd(SX)}, s{sRG[k]} offen', 'vm', 'x')
for kk in range(opt('xat', 4), 16): wo_enq(kk)
for n in range(6): q_enq(n)
bg_pop(opt('pre0', 2))
wait('E')
stamp('E', 1)
A(f'v_readfirstlane_b32 s{sTAG}, v{vE}')
A(f's_mul_i32 s{sTAG}, s{sTAG}, 1664525')
A(f's_add_u32 s{sTAG}, s{sTAG}, 1013904223')
if TWICE:
    R_(f'v_readlane_b32 s{sT0}, v31, 42'); R_('s_nop 3'); R_(f's_add_u32 s{sTAG}, s{sTAG}, s{sT0}')
unpack(vS, vCV); unpack(vS+2, vCV+1)
for n in range(4): A(f'v_mul_f32 v{88+n}, {hx(f2u(-LOG2E))}, v{vS+n}')
for n in range(4): A(f'v_exp_f32 v{88+n}, v{88+n}')
for n in range(4): A(f'v_add_f32 v{88+n}, 1.0, v{88+n}')
for n in range(4): A(f'v_rcp_f32 v{88+n}, v{88+n}')
for n in range(4): A(f'v_mul_f32 v{vS+n}, v{vS+n}, v{88+n}')
A(f'v_cvt_pk_bf16_f32 v88, v{vS}, v{vS+1}')
A(f'v_cvt_pk_bf16_f32 v89, v{vS+2}, v{vS+3}')
unpack(vS, 88); unpack(vS+2, 89)
def p0_body(E, wm, ac, tp, pk=True):
    for n in range(4):
        for d in range(4): unpack(tp+2*d, wm+4*n+d, E)
        for d in range(4):
            if not pk:
                for h in range(2):
                    E(f'{"v_mul_f32" if n == 0 else "v_fmac_f32"} v{ac+2*d+h}, v{tp+2*d+h}, v{vS+n}')
            elif n == 0: E(f'v_pk_mul_f32 {vr(ac+2*d,2)}, {vr(tp+2*d,2)}, {vr(vS,2)} op_sel_hi:[1,0]')
            else:
                b = vS + (n & 2); o = n & 1
                E(f'v_pk_fma_f32 {vr(ac+2*d,2)}, {vr(tp+2*d,2)}, {vr(b,2)}, {vr(ac+2*d,2)} op_sel:[0,{o},0] op_sel_hi:[1,{o},1]')
    for e in (0, 2, 4, 6): E(f'v_permlane32_swap_b32 v{ac+e}, v{ac+e+1}')
    for e in (0, 2, 4, 6): E(f'v_add_f32 v{ac+e}, v{ac+e}, v{ac+e+1}')
    for e in (0, 4): E(f'v_permlane16_swap_b32 v{ac+e}, v{ac+e+2}')
    for e in (0, 4): E(f'v_add_f32 v{ac+e}, v{ac+e}, v{ac+e+2}')
    for n in (8, 4, 2):
        ror_add(ac, n, E); ror_add(ac+4, n, E)
    E(f'ds_write_b32 v{vP0A}, v{ac}', 'lg', 'p0w')
    E(f'ds_write_b32 v{vP0A}, v{ac+4} offset:16', 'lg', 'p0w')
def p0_publish(tb):
    R_(f'v_lshlrev_b32 v{tb+8}, 1, v{vFLO}')
    R_(f'v_add_u32 v{tb+9}, {L_P0S}, v{tb+8}')
    R_(f's_lshl_b32 s{sT0}, s{sP}, 6')
    for w in range(4): R_(f'ds_read_b64 {vr(tb+2*w,2)}, v{tb+9} offset:{64*w}')
    R_(f's_add_u32 s{sT0}, s{sT0}, {WS_MOD}')
    R_('s_waitcnt lgkmcnt(0)')
    R_(f'v_pk_add_f32 {vr(tb,2)}, {vr(tb,2)}, {vr(tb+2,2)}')
    R_(f'v_pk_add_f32 {vr(tb+4,2)}, {vr(tb+4,2)}, {vr(tb+6,2)}')
    R_(f'v_pk_add_f32 {vr(tb,2)}, {vr(tb,2)}, {vr(tb+4,2)}')
    R_(f'v_cvt_pk_bf16_f32 v{tb}, v{tb}, v{tb+1}')
    R_(f'v_mov_b32 v{tb+1}, s{sTAG}')
    R_(f's_mov_b64 exec, 0xff')
    R_(f'buffer_store_dwordx2 {vr(tb,2)}, v{tb+8}, {srd(SWS)}, s{sT0} offen sc1')
    R_(f's_mov_b64 exec, -1')
l0 = label('Lp0e')
R_(f's_cmp_eq_u32 s{sCQ}, 3')
R_(f's_cbranch_scc1 {l0}')
saveV, saveL, saveB = list(VM.q), list(LG.q), list(BG.q)
wait('wmodA')
bg_on(opt('ip0', 60))
p0_body(A, vWM, 112, 120)
bg_off()
npop = len(saveB) - len(BG.q)
l3 = label('Lp0j')
R_(f's_branch {l3}')
R_(f'{l0}:')
VM.q, LG.q = saveV, saveL
for u in saveB[:npop]: emit(u)
R_(f'{l3}:')
wait_all_lg()
R_('s_barrier')
l0, l1 = label('Lpub0'), label('Lpub0')
R_(f's_cmp_lg_u32 s{sWAVE}, 0')
R_(f's_cbranch_scc1 {l0}')
R_(f's_cmp_eq_u32 s{sCQ}, 3')
R_(f's_cbranch_scc1 {l1}')
p0_publish(vWM)
R_(f'{l1}:')
R_(f'v_mov_b32 v{vT+2}, s{sTAG}')
R_(f'v_mov_b32 v{vT+1}, s{sXCC}')
R_(f'v_lshlrev_b32 v{vT}, 1, v{vZ}')
R_('s_mov_b64 exec, 1')
R_(f'buffer_store_dwordx2 {vr(vT+1,2)}, v{vT}, {srd(SWS)}, s{sGX} offen sc1')
R_('s_mov_b64 exec, -1')
R_(f'{l0}:')
stamp('p0 early done')
bg_pop(opt('qpre', 12))
bg_on(opt('iln', 60))
wait('x')
sa = [88, 89, 90, 91]; sq = [92, 93, 94, 95]
for d in range(4):
    for q in range(3):
        A(f'v_dot2_f32_bf16 v{sa[q]}, v{vXR0+8*q+4+d}, v{vONE}, {"0" if d==0 else "v%d"%sa[q]}')
    for q in range(3):
        A(f'v_dot2_f32_bf16 v{sq[q]}, v{vXR0+8*q+4+d}, v{vXR0+8*q+4+d}, {"0" if d==0 else "v%d"%sq[q]}')
A(f'v_mov_b32 v{sa[3]}, 0'); A(f'v_mov_b32 v{sq[3]}, 0')
U = []
for q in range(3):
    for d in range(4): unpack(vXR0+8*q+2*d, vXR0+8*q+4+d, U.append)
C = []
red32(sa[0], sa[2], C.append); red32(sa[1], sa[3], C.append); red32(sq[0], sq[2], C.append); red32(sq[1], sq[3], C.append)
red16(sa[0], sa[1], C.append); red16(sq[0], sq[1], C.append)
for n in (8, 4, 2, 1):
    ror_add(sa[0], n, C.append); ror_add(sq[0], n, C.append)
C.append(f'v_mul_f32 v{sa[0]}, {hx(f2u(1/512))}, v{sa[0]}')
C.append(f'v_mul_f32 v{sq[0]}, {hx(f2u(1/512))}, v{sq[0]}')
C.append(f'v_fma_f32 v{sq[0]}, -v{sa[0]}, v{sa[0]}, v{sq[0]}')
C.append(f'v_max_f32 v{sq[0]}, 0, v{sq[0]}')
C.append(f'v_add_f32 v{sq[0]}, {hx(f2u(1e-5))}, v{sq[0]}')
C.append(f'v_rsq_f32 v{sq[0]}, v{sq[0]}')
C.append(f'v_mul_f32 v{sa[0]}, -v{sa[0]}, v{sq[0]}')
for q in range(3):
    C.append(f'v_readlane_b32 s{sLN+2*q}, v{sq[0]}, {16*q}')
    C.append(f'v_readlane_b32 s{sLN+2*q+1}, v{sa[0]}, {16*q}')
while C:
    if U: A(U.pop(0))
    A(C.pop(0))
for q in range(3):
    b = vXR0 + 8*q
    for d in range(4):
        A(f'v_pk_fma_f32 {vr(b+2*d,2)}, {vr(b+2*d,2)}, {sp(sLN+2*q)}, {sp(sLN+2*q)} op_sel:[0,0,1] op_sel_hi:[1,0,1]')
bg_off()
stamp('ln done', 1)
vG1R, vXC, vGS = 128, 144, 148
A(f'v_lshlrev_b32 v{vT+5}, 5, v{vLANE}')
A(f'v_lshlrev_b32 v{vT+4}, 1, v{vFLO}')
A(f's_mov_b32 s{sT2}, {WS_MOD}')
def gather1_issue(E):
    for n in range(4):
        E(f'buffer_load_dwordx4 {vr(vG1R+4*n,4)}, v{vT+5}, {srd(SWS)}, s{sT2} offen offset:{(n>>1)*2048 + (n&1)*16} sc1', 'vm', 'g1')
    E(f'buffer_load_dwordx2 {vr(vXC,2)}, v{vT+4}, {srd(SWS)}, s{sGX} offen sc1', 'vm', 'g1')
A(f'v_add_u32 v{vT+2}, 0x10000, v{vTRQA}')
A(f'v_subrev_u32 v{vT+3}, {L_B}, v{vTRW}')
NG = opt('ng', 4)
k_ = max(i_ for i_, u in enumerate(BG.q) if u[2] == f'q{NG}') + 1
rest = list(BG.q)[k_:]
for _ in rest: BG.q.pop()
gather1_issue(bg)
bg(f'buffer_load_dword v{vTCH}, v{vFLO}, {srd(SWS)}, s{sFL} offen sc1', 'vm', 'touch')
bg(f'buffer_load_dword v{vTCH}, v{vFLO}, {srd(SWS)}, s{sFL} offen offset:128 sc1', 'vm', 'touch')
BG.q.extend(rest)
IR = opt('ird', 44)
QS = dict(read=0, enq=6)
def q_pred(m): return 0 if m <= 11 else m - 11
def q_pre(until, landed):
    bg_until(f'q{min(until, QS["enq"]-1)}')
    wait(f'q{landed}', f'qr{QS["read"]-1}')
def q_post(landed, pace=True):
    while QS['enq'] < 16 and q_pred(QS['enq']) < QS['read']:
        q_enq(QS['enq']); QS['enq'] += 1
    if pace: bg_pop(opt('qpp', 2)); bg_on(IR)
    if QS['read'] == 0:
        for k2 in range(16):
            lg(f'ds_read_b64_tr_b16 {ar(192+4*k2,2)}, v{vT+3} offset:{k2*4096}', 'wor')
            lg(f'ds_read_b64_tr_b16 {ar(194+4*k2,2)}, v{vT+3} offset:{k2*4096+512}', 'wor')
    q_read(QS['read'], landed + 1, A)
    QS['read'] = max(QS['read'], landed + 1)
    bg_off()
def qbar(name, until, landed):
    until, landed = opt(name + 'u', until), opt(name + 'l', landed)
    q_pre(until, landed); R_('s_barrier'); stamp(name, 1); q_post(landed)
qbar('B1', 3, 0)
qbar('B2', 5, 1)
bg_until(f'q{opt("gq_", 9)}')
def tag_check(regs, t):
    R_(f'v_xor_b32 v{t}, s{sTAG}, v{regs[0]}')
    for r in regs[1:]:
        R_(f'v_xor_b32 v{t+1}, s{sTAG}, v{r}')
        R_(f'v_or_b32 v{t}, v{t}, v{t+1}')
    R_(f'v_cmp_ne_u32 vcc, 0, v{t}')
def checked(tag, issue, regs):
    wait(tag)
    lp, ld = label('Lg'), label('Lgok')
    tag_check(regs, vT)
    R_(f's_cbranch_vccz {ld}')
    R_(f'{lp}:')
    issue(lambda t, k, g: R_(t))
    R_('s_waitcnt vmcnt(0)')
    tag_check(regs, vT)
    R_(f's_cbranch_vccz {ld}')
    spin_guard(lp, ld)
checked('g1', gather1_issue, [vG1R+1+2*k for k in range(9)])
stamp('mod arrived')
for d in range(4): unpack(vGS+2*d, vG1R+8+2*d)
for d in range(4): A(f'v_pk_add_f32 {vr(vGS+2*d,2)}, {vr(vGS+2*d,2)}, 1.0 op_sel_hi:[1,0]')
for d in range(4):
    A(f'v_cvt_pk_bf16_f32 v{vG1R+8+2*d}, v{vGS+2*d}, v{vGS+2*d+1}')
    unpack(vGS+8+2*d, vG1R+2*d)
for d in range(4): unpack(vGS+2*d, vG1R+8+2*d)
A(f's_add_u32 s{sT2}, s{sCB}, {C_A}')
for q in range(3):
    b = vXR0 + 8*q
    for d in range(4): A(f'v_pk_fma_f32 {vr(b+2*d,2)}, {vr(b+2*d,2)}, {vr(vGS+2*d,2)}, {vr(vGS+8+2*d,2)}')
    for d in range(4): A(f'v_cvt_pk_bf16_f32 v{b+d}, v{b+2*d}, v{b+2*d+1}')
    vm(f'buffer_store_dwordx4 {vr(b,4)}, v{vHS+q}, {srd(SWS)}, s{sT2} offen sc1', 'st')
R_(f'v_cmp_ne_u32 vcc, s{sXCC}, v{vXC}')
R_(f's_cmp_eq_u64 vcc, 0')
R_(f's_cselect_b32 s{sLOCAL}, {0 if FORCE_GLOBAL else 1}, 0')
vG2 = 96
def gather2_issue(E):
    for n in range(2):
        E(f'buffer_load_dwordx4 {vr(vG2+4*n,4)}, v{vOFF16}, {srd(SWS)}, s{sGM} offen offset:{n*1024} sc1', 'vm', 'g2')
gather2_issue(E0)
qbar('B3', 11, 5)
checked('g2', gather2_issue, [vG2+1, vG2+3, vG2+5, vG2+7])
R_(f's_cmp_eq_u32 s{sWAVE}, 2')
R_(f's_cselect_b32 s{sT1}, 1.0, 0')
for k in range(4):
    unpack(vT+2, vG2+2*k)
    A(f'v_add_f32 v{vT+2}, s{sT1}, v{vT+2}')
    A(f'v_add_f32 v{vT+3}, s{sT1}, v{vT+3}')
    A(f'v_cvt_pk_bf16_f32 v{vG2+8+k}, v{vT+2}, v{vT+3}')
A(f's_add_u32 s{sT0}, s{sWLDS}, {L_MODT + 2048}')
A(f'v_add_u32 v{vT+4}, s{sT0}, v{vO8}')
for n in range(2): lg(f'ds_write_b64 v{vT+4}, {vr(vG2+8+2*n,2)} offset:{n*512}', 'modw')
wait(None, 'modw')
q_pre(opt('B4u', 10), opt('B4l', 7))

def code_touch(E):
    E(f's_and_b32 s{sT0}, s{sIW}, 31')
    E(f's_mul_i32 s{sT0}, s{sT0}, {CLW*128}')
    E(f'v_min_u32 v{vT+1}, {(CLW-1)*128}, v{vTA}')
    E(f'v_add_u32 v{vT+1}, s{sT0}, v{vT+1}')
    E(f'global_load_dword v{vTCH}, v{vT+1}, s[0:1]', 'vm', 'touch')
def flag(h, tag, E=E0, ct=False):
    l, l2 = label('Lpub'), label('Lpub')
    R_(f's_cmp_lg_u32 s{sWAVE}, 0')
    R_(f's_cbranch_scc1 {l}')
    R_(f's_add_u32 s{sT1}, s{sTAG}, {h+1}')
    R_(f'v_mov_b32 v{vT}, s{sT1}')
    R_('s_mov_b64 exec, 1')
    R_(f's_cmp_eq_u32 s{sLOCAL}, 1')
    R_(f's_cbranch_scc1 {l2}')
    R_(f'buffer_store_dword v{vT}, v{vZ}, {srd(SWS)}, s{sFL} offen offset:{32*h} sc1')
    R_(f's_mov_b64 exec, -1')
    R_(f's_branch {l}')
    R_(f'{l2}:')
    R_(f'buffer_store_dword v{vT}, v{vZ}, {srd(SWS)}, s{sFL} offen offset:{32*h}')
    R_('s_mov_b64 exec, -1')
    R_(f'{l}:')
    R_(f'; pub {h}')
    if opt('pt', 1):
        for t in STORES[tag]: E(t, 'vm', 'touch')
    STORES[tag] = []
    if ct and opt('ct', 1): code_touch(E0)
def publish(h, tag='st', ltag=None, ct=True):
    wait(tag, ltag)
    R_('s_barrier')
    flag(h, tag, E0, ct)
def poll_issue(h, E=E0):
    E(f'buffer_load_dword v{vFLV}, v{vFLO}, {srd(SWS)}, s{sFL} offen offset:{32*h} sc1', 'vm', 'poll')
def poll_check(h):
    R_(f's_add_u32 s{sT1}, s{sTAG}, {h+1}')
    wait('poll')
    lp, ld = label('Lw'), label('Lwok')
    R_(f'v_cmp_ne_u32 vcc, s{sT1}, v{vFLV}')
    R_(f's_cbranch_vccz {ld}')
    R_(f'{lp}:')
    R_(f'buffer_load_dword v{vFLV}, v{vFLO}, {srd(SWS)}, s{sFL} offen offset:{32*h} sc1')
    R_('s_waitcnt vmcnt(0)')
    R_(f'v_cmp_ne_u32 vcc, s{sT1}, v{vFLV}')
    R_(f's_cbranch_vccz {ld}')
    spin_guard(lp, ld)
def await_(h):
    poll_issue(h); poll_check(h)
sQ = sLN
def tile_enq(rt, tag):
    for j in range(4):
        bg_dma(f's_add_u32 m0, s{sW4}, {L_A1 + rt*16384}', f's_add_u32 s{sD0}, s{sQ}, {rt*16384}',
               f'buffer_load_dwordx4 v{vOFF16}, {srd(SWS)}, s{sD0} offen offset:{j*1024} sc1 lds', f'{tag}{rt}')
A(f's_add_u32 s{sQ}, s{sT2}, s{sW4}')
publish(0)
stamp('h published')
q_post(opt('B4l', 7))
bg_until(f'q{opt("pq", 14)}')
poll_issue(0)
qbar('B5', 14, 11)
bg_flush()
vGA, vGB, vGP, vSP, vGG = 224, 228, 232, 236, 240
A(f'v_and_b32 v{vT+5}, {hx(~8)}, v{vMC}')
A(f'v_add_u32 v{vT+1}, {L_MODT}, v{vOFF16}')
lg(f'ds_read_b128 {vr(144,4)}, v{vT+1} offset:{4*1024}', 'c')
lg(f'ds_read_b128 {vr(148,4)}, v{vT+1} offset:{3*1024}', 'c')
lg(f'ds_read_b64 {vr(vGA+2,2)}, v{vMC} offset:{2*1024}', 'c')
lg(f'ds_read_b64 {vr(vGB+2,2)}, v{vMC} offset:{4*1024}', 'c')
lg(f'ds_read_b128 {vr(vGP,4)}, v{vT+5} offset:{4*1024}', 'c')
lg(f'ds_read_b128 {vr(vSP,4)}, v{vT+5} offset:{3*1024}', 'c')
wait(None, 'c')
q5 = [244, 245, 246, 247, 248]
for d in range(4):
    c = lambda r: '0' if d == 0 else f'v{r}'
    A(f'v_dot2_f32_bf16 v{q5[0]}, v{144+d}, v{vONE}, {c(q5[0])}')
    A(f'v_dot2_f32_bf16 v{q5[1]}, v{144+d}, v{144+d}, {c(q5[1])}')
    A(f'v_dot2_f32_bf16 v{q5[2]}, v{148+d}, v{vONE}, {c(q5[2])}')
    A(f'v_dot2_f32_bf16 v{q5[3]}, v{148+d}, v{148+d}, {c(q5[3])}')
    A(f'v_dot2_f32_bf16 v{q5[4]}, v{144+d}, v{148+d}, {c(q5[4])}')
L_ = lo
for b in (vGA, vGB):
    unpack(b, b+2, lo); unpack(b+2, b+3, lo)
red32(q5[0], q5[2], L_); red32(q5[1], q5[3], L_)
L_(f'v_mov_b32 v{q5[4]+1}, v{q5[4]}'); lo_gap(1)
red16(q5[0], q5[1], L_); red32(q5[4], q5[4]+1, L_)
L_(f'v_mov_b32 v{q5[4]+1}, v{q5[4]}'); lo_gap(1); red16(q5[4], q5[4]+1, L_)
for n in (8, 4, 2, 1):
    lo_gap(1); ror_add(q5[0], n, L_); ror_add(q5[4], n, L_)
L_(f'v_mul_f32 v{q5[0]}, {hx(f2u(1/512))}, v{q5[0]}')
L_(f'v_mul_f32 v{q5[4]}, {hx(f2u(1/512))}, v{q5[4]}')
for k in range(4): L_(f'v_readlane_b32 s{sG+k}, v{q5[0]}, {16*k}')
L_(f'v_readlane_b32 s{sG+4}, v{q5[4]}, 0')

poll_check(0)
stamp('hop h seen')
QL = opt('B6l', 13)
q_pre(15, QL); R_('s_barrier')
assert QS['read'] >= 12 and QS['enq'] == 16
vWB, vLA = 224, 240
def touch_batch():
    bg(f'buffer_load_dword v{vTCH}, v{vTP+1}, {srd(SW1)}, 0 offen', 'vm', 'touch')
    for tt in range(3): bg(f'global_load_ushort v{vBI+tt}, v{vTP+2}, {sp(sB1)} offset:{32*tt}', 'vm', 'b1')
    bg(f's_mov_b32 m0, {L_B2}')
    bg(f'global_load_lds_dword v{vTP+3}, {sp(sB2)}', 'vm', 'b2')
    bg(f'buffer_load_dword v{vTCH}, v{vZ}, {srd(SOUT)}, s{sXO} offen', 'vm', 'touch')
    BG.m0 = None
def w2_touch():
    bg(f'buffer_load_dword v{vTCH}, v{vTW2}, {srd(SW2)}, 0 offen', 'vm', 'touch')
TPOS = opt('tpos', 3)
for rt in range(TPOS): tile_enq(rt, 'a')
touch_batch()
if opt('w2t', 1) == 0: w2_touch()
for rt in range(TPOS, 5): tile_enq(rt, 'a')
bg_pop(opt('hpre', 14))
q_read(QS['read'], QL + 1, A)

NA = min(2, opt('na', 2))
def w1_lds(n):
    if n == 15: return 65536
    if 5 <= n < 5 + NA: return 32768 + (n - 5)*12288
    return L_B + ((n if n < 5 else n - NA) % 5)*12288
def w1_enq(*ns):
    for n in ns:
        for p in range(3):
            bg_dma(f's_add_u32 m0, s{sSLDS}, {w1_lds(n)}', f's_add_u32 s{sD0}, s{sS1OFF}, {n*32*2752}',
                   f'buffer_load_dwordx4 v{vD1+p}, {srd(SW1)}, s{sD0} offen offset:{p*1024} lds', f'w{n}')
vTR1B = vAR4; vTR1C = vAR
W1ORD = list(range(5 + NA)) + [15] + list(range(5 + NA, 15))
class W1:
    enq = 0; landed = 0; read = 0; done = 0; gate15 = False; afree = 0
def w1_can():
    if W1.enq >= 16: return False
    n = W1ORD[W1.enq]
    if n == 15: return W1.gate15
    if n < 5: return True
    if n < 5 + NA: return w1_lds(n) + 12288 <= W1.afree
    prev = n - NA - 5 if n - NA - 5 < 5 else n - 5
    return W1ORD.index(prev) < W1.done
def w1_more(k):
    for _ in range(k):
        if not w1_can(): return
        w1_enq(W1ORD[W1.enq]); W1.enq += 1
def w1_pre(back):
    tgt = max(W1.landed, W1.enq - back)
    if tgt > W1.landed: wait(f'w{W1ORD[tgt-1]}')
    if W1.read > W1.done: wait(None, f'wr{W1ORD[W1.read-1]}')
    W1.nl, W1.nd = tgt, W1.read
def w1_post():
    W1.landed, W1.done = W1.nl, W1.nd
def w1_bar(back):
    w1_pre(back); R_('s_barrier'); w1_post()
def w1_issued():
    return W1.enq - (len([u for u in BG.q if u[1] and u[2][0] == 'w']) + 2) // 3
def w1_auto(margin, least=0):
    w1_pre(W1.enq - max(W1.landed, w1_issued() - margin, least))
def xbar(name, margin, least=0, more=16):
    w1_auto(opt(name, margin), least); R_('s_barrier'); w1_post(); w1_more(more)
def w1_reads(E):
    R_(f'; w1 reads {W1ORD[W1.read:W1.landed]}')
    for n in W1ORD[W1.read:W1.landed]:
        for tt in range(3):
            a = 64*tt + 4*n
            base, off = (vTR1+tt, w1_lds(n) - L_B) if w1_lds(n) >= L_B else (vTR1B+tt, w1_lds(n) - 8192)
            if off < 0: base, off = vTR1C+tt, w1_lds(n)
            E(f'ds_read_b64_tr_b16 {ar(a,2)}, v{base} offset:{off}', 'lg', f'wr{n}')
            E(f'ds_read_b64_tr_b16 {ar(a+2,2)}, v{base} offset:{off+1536}', 'lg', f'wr{n}')
    W1.read = W1.landed

def accK(rt): return 96 + 12*rt
def accV(rt): return 96 + 12*rt + 4
def accQ(rt): return 96 + 12*rt + 8
vKF, vVF, vQF, vOP = 156, 166, 176, 216
def tmp(t, k): return 184 + 16*(t & 1) + k
CS = 0.25 * LOG2E
sCS = sLN+1
A(f's_mov_b32 s{sCS}, {hx(f2u(CS))}')
sOS2 = sLN+2
A(f's_add_u32 s{sOS2}, s{sOST}, 32768')
def attn(t, E, gap):
    attn_a(t, E, gap, True)
    if t: attn_b(t, E, gap, False)
def attn_a(t, E, gap, withv):
    gap(3)
    for h in range(2): E(f'v_cvt_pk_bf16_f32 v{vKF+2*t+h}, v{accK(t)+2*h}, v{accK(t)+2*h+1}')
    if t:
        for h in range(2): E(f'v_cvt_pk_bf16_f32 v{vQF+h}, v{accQ(t)+2*h}, v{accQ(t)+2*h+1}')
    if withv:
        for h in range(2): E(f'v_cvt_pk_bf16_f32 v{vVF+2*t+h}, v{accV(t)+2*h}, v{accV(t)+2*h+1}')
    else: gap(1)
    if not t: return
    E(f'v_mfma_f32_16x16x16_bf16 {vr(tmp(t,0),4)}, {vr(vKF+2*(t-1),2)}, {vr(vQF,2)}, 0')
    E(f'v_mfma_f32_16x16x16_bf16 {vr(tmp(t,4),4)}, {vr(vKF+2*t,2)}, {vr(vQF,2)}, 0')
    gap(4)
    if t == 1:
        for r in range(4): E(f'v_min_f32 v{tmp(t,r)}, s{sMSK}, v{tmp(t,r)}')
    for r in range(4): E(f'v_cndmask_b32 v{tmp(t,r)}, v{tmp(t,r)}, v{tmp(t,4+r)}, {sp(4+2*r)}')
    E(f'v_cndmask_b32 v{tmp(t,0)}, v{tmp(t,0)}, v{tmp(t,1)}, {sp(12)}')
    E(f'v_cndmask_b32 v{tmp(t,1)}, v{tmp(t,2)}, v{tmp(t,3)}, {sp(12)}')
    E(f'v_max_f32 v{tmp(t,2)}, v{tmp(t,0)}, v{tmp(t,1)}')
    for op in ('v_permlane16_swap_b32', 'v_permlane32_swap_b32'):
        E(f'v_mov_b32 v{tmp(t,3)}, v{tmp(t,2)}')
        gap(1)
        E(f'{op} v{tmp(t,2)}, v{tmp(t,3)}')
        E(f'v_max_f32 v{tmp(t,2)}, v{tmp(t,2)}, v{tmp(t,3)}')
    E(f'v_mul_f32 v{tmp(t,2)}, {hx(f2u(-CS))}, v{tmp(t,2)}')
    E(f'v_fma_f32 v{tmp(t,0)}, v{tmp(t,0)}, s{sCS}, v{tmp(t,2)}')
    E(f'v_fma_f32 v{tmp(t,1)}, v{tmp(t,1)}, s{sCS}, v{tmp(t,2)}')
    E(f'v_exp_f32 v{tmp(t,0)}, v{tmp(t,0)}')
    E(f'v_exp_f32 v{tmp(t,1)}, v{tmp(t,1)}')
    E(f'v_cvt_pk_bf16_f32 v{tmp(t,0)}, v{tmp(t,0)}, v{tmp(t,0)}')
    E(f'v_cvt_pk_bf16_f32 v{tmp(t,1)}, v{tmp(t,1)}, v{tmp(t,1)}')
    E(f'v_and_b32 v{tmp(t,4)}, v{tmp(t,0)}, v{vM}')
    E(f'v_and_b32 v{tmp(t,5)}, v{tmp(t,1)}, v{vM+1}')
    E(f'v_and_b32 v{tmp(t,6)}, v{tmp(t,0)}, v{vM+2}')
    E(f'v_and_b32 v{tmp(t,7)}, v{tmp(t,1)}, v{vM+3}')
    gap(1)
    E(f'v_mfma_f32_16x16x32_bf16 {vr(tmp(t,12),4)}, {vr(vON,4)}, {vr(tmp(t,4),4)}, 0')
def attn_b(t, E, gap, withv):
    if withv:
        for h in range(2): E(f'v_cvt_pk_bf16_f32 v{vVF+2*t+h}, v{accV(t)+2*h}, v{accV(t)+2*h+1}')
    E(f'v_mfma_f32_16x16x32_bf16 {vr(tmp(t,8),4)}, {vr(vVF+2*(t-1),4)}, {vr(tmp(t,4),4)}, 0')
    gap(4)
    E(f'v_rcp_f32 v{tmp(t,12)}, v{tmp(t,12)}')
    for r in range(4): E(f'v_mul_f32 v{tmp(t,8+r)}, v{tmp(t,8+r)}, v{tmp(t,12)}')
    p, hf = (t-1) >> 1, (t-1) & 1
    o = vOP + 4*p
    for h in range(2): E(f'v_cvt_pk_bf16_f32 v{o+2*hf+h}, v{tmp(t,8+2*h)}, v{tmp(t,9+2*h)}')
    if hf:
        gap(1)
        E(f'v_permlane16_swap_b32 v{o}, v{o+2}')
        E(f'v_permlane16_swap_b32 v{o+1}, v{o+3}')
        E(f'buffer_store_dwordx4 {vr(o,4)}, v{vPO}, {srd(SWS)}, s{sOS2 if p else sOST} offen sc1', 'vm', 'stB' if p else 'stA')
bufs = [64 + 4*k for k in range(8)]
NB = 8
seq = [(rt, ks) for rt in range(6) for ks in range(16)]
def a1_read(n, E):
    rt, ks = seq[n]
    rt = min(rt, 4)
    base = vAR4 if rt == 4 else vAR
    E(f'ds_read_b128 {vr(bufs[n%NB],4)}, v{base+(ks&3)} offset:{(rt%4)*16384 + (ks>>2)*256}', 'lg', f'af{n}')
nread = 0; vis = 1
EARLY = opt('early', 8)
vXR = 240
for n, (rt, ks) in enumerate(seq):
    if n == 0:
        wait('a0'); R_('s_barrier')
        stamp('gemm start')
        if DBG:
            R_(f's_memtime {sp(sTM)}'); wait_all_lg(); R_(f'v_writelane_b32 v31, s{sTM}, 54')
        while nread < NB - 1: a1_read(nread, E0); nread += 1
        q_read(QL + 1, 16, mid)
        bg_on(opt('ig1', 64))
    if ks == 16 - EARLY and rt < 4:
        if rt == 0:
            wait('a1', 'qr15'); R_('s_barrier'); vis = 2
            w1_more(opt('w1x', 2))
            bg_delay(opt('hold', 600), opt('ig2', 128))
            w1_more(5)
            if opt('w2t', 1) == 1: w2_touch()
        if rt == 1:
            wait('a2'); R_('s_barrier'); vis = 3
        if rt == 2:
            wait('a3'); R_('s_barrier'); vis = 4
        if rt == 3:
            wait('a4'); R_('s_barrier'); vis = 6
            pass
    if n == opt('x1', 78):
        wait('stA'); R_('s_barrier'); flag(1, 'stA', hi)
        W1.afree = 65536; w1_more(5)
    if n == opt('x2', 84): poll_issue(1, hi)
    if n == 66:
        for r2 in range(4):
            lo(f's_add_u32 s{sT0}, s{sXO}, {r2*16384}')
            lo(f'buffer_load_dwordx2 {vr(vXR+2*r2,2)}, v{vXO}, {srd(SX)}, s{sT0} offen', 'vm', 'xr')
    if ks == 0 and rt > 0:
        stamp(f'p1rt{rt}', 2)
        if rt < 5: attn(rt-1, lo, lo_gap)
        else:
            lo_flush(); attn_a(4, lo, lo_gap, False)
    if rt == 0: wait(None, f'qr{ks}')
    if nread < min(n + NB, len(seq)) and seq[nread][0] < vis:
        a1_read(nread, hi); nread += 1
    assert nread > n + (1 - n % 2)
    if n % 2 == 0: wait(None, f'af{n+1}')
    g3 = 2 if n % 2 == 0 else 1
    f = vr(bufs[n%NB], 4)
    c = lambda r: '0' if ks == 0 else vr(r, 4)
    if rt == 5:
        mfma(f'v_mfma_f32_16x16x32_bf16 {vr(accV(4),4)}, {f}, {ar(128+4*ks,4)}, {c(accV(4))}', 3)
        continue
    mfma(f'v_mfma_f32_16x16x32_bf16 {vr(accK(rt),4)}, {ar(64+4*ks,4)}, {f}, {c(accK(rt))}', 2 + (opt('xs', 1) if rt in (2, 3) else 0))
    if rt < 4:
        mfma(f'v_mfma_f32_16x16x32_bf16 {vr(accV(rt),4)}, {f}, {ar(128+4*ks,4)}, {c(accV(rt))}', 2 if rt else g3)
    if rt > 0:
        mfma(f'v_mfma_f32_16x16x32_bf16 {vr(accQ(rt),4)}, {ar(4*ks,4)}, {f}, {c(accQ(rt))}', g3)
stamp('P1 gemm done')
bg_off()
lo_flush()
attn_b(4, A, lambda k: None, True)
stamp('attn done')
A(f's_add_u32 s{sQ}, s{sCB}, s{sW4}')
poll_check(1)
stamp('oA seen')
bg_front(lambda: (tile_enq(0, 'o'), tile_enq(1, 'o')))
bg_until('o0')
for tt in range(3): A(f'v_subrev_u32 v{vTR1B+tt}, {L_B - 8192}, v{vTR1+tt}')
W1.gate15 = True
xbar('m1', 1)
bg_on(opt('i1', 30))
w1_reads(A)
bg_until('o1')
vX1 = 112
wait('xr')
for r2 in range(4):
    unpack(vX1+4*r2, vXR+2*r2); unpack(vX1+4*r2+2, vXR+2*r2+1)
bg_off()
wait('stB'); xbar('m2', 2); flag(2, 'stB', E0, True)
stamp('oB published')
vAC2, vXP, vUF, vUP = 96, 144, 152, 160
sUS = [sLN+1, sLN+2]
A(f's_add_u32 s{sUS[0]}, s{sOST}, {C_U}')
A(f's_add_u32 s{sUS[1]}, s{sOST}, {C_U + 32768}')
def epi2(p, E, gap, pk):
    gap(5)
    for rt in (2*p, 2*p+1):
        x, a = vX1+4*rt, vAC2+4*rt
        xp, up, uf = vXP+2*rt, vUP+2*rt, vUF+4*(rt&1)
        if pk:
            for h in range(2): E(f'v_pk_fma_f32 {vr(x+2*h,2)}, {vr(vGA+2*h,2)}, {vr(a+2*h,2)}, {vr(x+2*h,2)}')
        else:
            for e in range(4): E(f'v_fmac_f32 v{x+e}, v{vGA+e}, v{a+e}')
        for h in range(2): E(f'v_cvt_pk_bf16_f32 v{xp+h}, v{x+2*h}, v{x+2*h+1}')
        for h in range(2): unpack(x+2*h, xp+h, E)
        if pk:
            for h in range(2): E(f'v_pk_mul_f32 {vr(uf+2*h,2)}, {vr(x+2*h,2)}, {vr(vGB+2*h,2)}')
        else:
            for e in range(4): E(f'v_mul_f32 v{uf+e}, v{x+e}, v{vGB+e}')
        for h in range(2): E(f'v_cvt_pk_bf16_f32 v{up+h}, v{uf+2*h}, v{uf+2*h+1}')
    o = vUP + 4*p
    gap(1)
    E(f'v_permlane16_swap_b32 v{o}, v{o+2}')
    E(f'v_permlane16_swap_b32 v{o+1}, v{o+3}')
    E(f'buffer_store_dwordx4 {vr(o,4)}, v{vPO}, {srd(SWS)}, s{sUS[p]} offen sc1', 'vm', 'stB' if p else 'stA')
seq = [(rt, ks) for rt in range(4) for ks in range(16)]
def f_read(n, E, tag):
    rt, ks = seq[n]
    E(f'ds_read_b128 {vr(bufs[n%NB],4)}, v{vOFF16} offset:{L_A1 + rt*16384 + ks*1024}', 'lg', f'{tag}{n}')
S = [[168+k for k in range(6)], [176+k for k in range(6)]]
def stat_dots(p):
    x, u = vXP + 4*p, vUP + 4*p
    A(f'v_permlane16_swap_b32 v{x}, v{x+2}')
    A(f'v_permlane16_swap_b32 v{x+1}, v{x+3}')
    for d in range(4):
        c = lambda r: '0' if d == 0 else f'v{r}'
        A(f'v_dot2_f32_bf16 v{S[p][2]}, v{u+d}, v{vONE}, {c(S[p][2])}')
        A(f'v_dot2_f32_bf16 v{S[p][3]}, v{u+d}, v{u+d}, {c(S[p][3])}')
        A(f'v_dot2_f32_bf16 v{S[p][4]}, v{u+d}, v{vGP+d}, {c(S[p][4])}')
        A(f'v_dot2_f32_bf16 v{S[p][5]}, v{u+d}, v{vSP+d}, {c(S[p][5])}')
        A(f'v_dot2_f32_bf16 v{S[p][0]}, v{x+d}, v{vONE}, {c(S[p][0])}')
        A(f'v_dot2_f32_bf16 v{S[p][1]}, v{x+d}, v{x+d}, {c(S[p][1])}')
vCO, vCB, vCS, vSTT, vAC3, vG1, vHP = 128, 140, 96, 144, 168, 216, 228
xdone = [0]
def extra_tile(upto, regs):
    upto = min(upto, W1.read, xdone[0] + len(regs))
    kss = W1ORD[xdone[0]:upto]
    for ks, r in zip(kss, regs): E0(f'ds_read_b128 {vr(r,4)}, v{vXA} offset:{ks*64}', 'lg', f'xf{ks}')
    for ks, r in zip(kss, regs):
        wait(None, f'wr{ks}'); wait(None, f'xf{ks}')
        for tt in range(3):
            acc = vr(vCO+4*tt, 4)
            mfma(f'v_mfma_f32_16x16x32_bf16 {acc}, {vr(r,4)}, {ar(64*tt+4*ks,4)}, {"0" if xdone[0] == 0 else acc}')
        xdone[0] += 1
XR1 = [184 + 4*k for k in range(8)]
sW2L, sSB2, sSTS = sLN+6, sLN+4, sLN+7
vTR2 = vAR
def late_consts(L_):
    L_(f's_mul_i32 s{sWOFF}, s{sWAVE}, {11*32*1024}')
    L_(f's_lshl_b32 s{sT0}, s{sJ}, 7')
    L_(f's_add_u32 s{sWOFF}, s{sWOFF}, s{sT0}')
    L_(f's_lshr_b32 s{sT0}, s{sWAVE}, 1')
    L_(f's_and_b32 s{sT0}, s{sT0}, s{sWAVE}')
    L_(f's_lshl_b32 s{sT0}, s{sT0}, 15')
    L_(f's_sub_u32 s{sW2L}, s{sWOFF}, s{sT0}')
    L_(f's_add_u32 s{sW2L}, s{sW2L}, {10*32*1024}')
    L_(f's_add_u32 s{sSB2}, s{sSB}, 3072')
    for c in range(4): L_(f'v_add_u32 v{vTRW+c}, s{sW4}, v{vTRW+c}')
    for c in range(4): L_(f'v_subrev_u32 v{vTR2+c}, {L_B - 16384}, v{vTRW+c}')
    L_(f's_mul_i32 s{sT0}, s{sWAVE}, 1536')
    L_(f's_add_u32 s{sT0}, s{sT0}, {L_ST1}')
    L_(f'v_add_u32 v{vT+4}, s{sT0}, v{vO8}')
    L_(f's_min_u32 s{sT0}, s{sWAVE}, 2')
    L_(f's_lshl_b32 s{sSTS}, s{sT0}, 10')
    L_(f's_lshl_b32 s{sT0}, s{sT0}, 9')
    L_(f's_add_u32 s{sT0}, s{sT0}, {L_ST1}')
    L_(f'v_add_u32 v{vT+5}, s{sT0}, v{vO8}')
    L_(f's_mul_i32 s{sT0}, s{sJ}, 3072')
    L_(f's_add_u32 s{sSTS}, s{sSTS}, s{sT0}')
    L_(f's_add_u32 s{sSTS}, s{sSTS}, s{sCB}')
    L_(f's_add_u32 s{sSTS}, s{sSTS}, {C_ST}')
def p2_half(p, hook):
    n0 = 32*p
    nread = n0; lim = n0 + 16
    wait(f'o{2*p}'); R_('s_barrier')
    while nread < n0 + NB - 1: f_read(nread, E0, 'of'); nread += 1
    BG.second = True
    for n in range(n0, n0 + 32):
        rt, ks = seq[n]
        hook(n - n0)
        if n - n0 == opt('obk', 8):
            wait(f'o{2*p+1}'); R_('s_barrier'); lim = n0 + 32
        if nread < min(lim, n + NB): f_read(nread, hi, 'of'); nread += 1
        if n % 2 == 0: wait(None, f'of{n+1}')
        acc = vr(vAC2+4*rt, 4)
        mfma(f'v_mfma_f32_16x16x32_bf16 {acc}, {ar(192+4*ks,4)}, {vr(bufs[n%NB],4)}, {"0" if ks==0 else acc}', 2 if n % 2 == 0 else 1)
    BG.second = False
bg_pop(opt('p1', 3))
bg_on(opt('ip2', 100))
late_consts(lo)
def hookA(k):
    if k == opt('pob', 24): bg_front(lambda: poll_issue(2, bg)); bg_until('poll')
p2_half(0, hookA)
bg_off()
stamp('P2A done')
epi2(0, A, lambda k: None, True)
lo_flush()
bg_until(f'w{W1ORD[4+NA]}')
xbar('m3', 2, 5 + NA)
w1_reads(A)
le = label('Lnoep')
if TWICE:
    R_(f'v_readlane_b32 s{sT0}, v31, 42'); R_('s_nop 3'); R_(f's_cmp_eq_u32 s{sT0}, 0'); R_(f's_cbranch_scc1 {le}')
R_(f's_cmp_lg_u32 s2, 0')
R_(f's_cbranch_scc1 {le}')
R_(f's_cmp_lg_u32 s{sWAVE}, 3')
R_(f's_cbranch_scc1 {le}')
R_(f's_mov_b32 s{sT0}, {WS_XCC}')
lp, ld = label('Lep'), label('Lepok')
R_(f'{lp}:')
R_(f'buffer_load_dwordx4 {vr(184,4)}, v{vOFF16}, {srd(SWS)}, s{sT0} offen sc1')
R_(f'buffer_load_dwordx4 {vr(188,4)}, v{vOFF16}, {srd(SWS)}, s{sT0} offen offset:1024 sc1')
R_('s_waitcnt vmcnt(0)')
tag_check([185, 187, 189, 191], vT)
R_(f's_cbranch_vccz {ld}')
spin_guard(lp, ld)
R_(f'v_mov_b32 v{vT+1}, s{sTAG}')
R_(f'v_mov_b32 v{vT+2}, 0')
R_('s_mov_b64 exec, 1')
R_(f'buffer_store_dword v{vT+1}, v{vT+2}, {srd(SWS)}, 0 offen sc1')
R_('s_mov_b64 exec, -1')
R_(f'{le}:')
poll_check(2)
stamp('oB seen')
xbar('m4', 2)
assert W1.done >= 5 + NA
bg_front(lambda: (tile_enq(2, 'o'), tile_enq(3, 'o')))
bg_until('o2')
bg_on(opt('i2', 40))
stat_dots(0)
w1_reads(A)
bg_until('o3')
extra_tile(opt('xa', 4), XR1)
bg_off()
wait('stA'); xbar('m5', 2); flag(3, 'stA', E0)
stamp('uA published')
bg_pop(opt('p2', 3))
bg_on(opt('ip2', 100))
def hookB(k):
    if k == opt('pua', 28): bg_front(lambda: poll_issue(3, bg)); bg_until('poll')
p2_half(1, hookB)
bg_off()
stamp('P2 gemm done')
epi2(1, A, lambda k: None, True)
A(f's_add_u32 s{sQ}, s{sQ}, {C_U}')
stat_dots(1)
for k in range(6): A(f'v_permlane32_swap_b32 v{S[0][k]}, v{S[1][k]}')
for k in range(6): A(f'v_add_f32 v{S[0][k]}, v{S[0][k]}, v{S[1][k]}')
for k in range(3): lg(f'ds_write_b64 v{vT+4}, {vr(S[0][2*k],2)} offset:{512*k}', 'sw')
poll_check(3)
stamp('uA seen')
bg_front(lambda: (tile_enq(0, 'u'), tile_enq(1, 'u')))
bg_until('u0')
wait(None, 'sw')
xbar('m6', 2)
bg_on(opt('i3', 30))
for w in range(4): lg(f'ds_read_b64 {vr(248+2*w,2)}, v{vT+5} offset:{1536*w}', 'sr')
w1_reads(A)
bg_until('u1')
wait(None, 'sr')
A(f'v_pk_add_f32 {vr(248,2)}, {vr(248,2)}, {vr(250,2)}')
A(f'v_pk_add_f32 {vr(252,2)}, {vr(252,2)}, {vr(254,2)}')
A(f'v_mov_b32 v251, s{sTAG}')
A(f'v_add_f32 v250, v249, v253')
A(f'v_add_f32 v248, v248, v252')
A(f'v_mov_b32 v249, s{sTAG}')
bg_off()
vm(f'buffer_store_dwordx4 {vr(248,4)}, v{vOFF16}, {srd(SWS)}, s{sSTS} offen sc1', 'sts')
wait('stB'); xbar('m7', 2); flag(4, 'stB', E0, True)
stamp('uB published')
bg_on(opt('i4', 64))
w1_reads(mid)
extra_tile(opt('xb', 10), XR1)
mid_flush()
wait('u1'); xbar('m8', 2)
stamp('u1 landed')

def stat_issue(E):
    for m in range(2):
        for k in range(3):
            E(f'buffer_load_dwordx4 {vr(vSTT+12*m+4*k,4)}, v{vSTA}, {srd(SWS)}, s{sSB2 if m else sSB} offen offset:{k*1024} sc1', 'vm', 'stt')
W2SLOT = {}; W2FREE = []; W2N = [0]
def w2_more():
    while W2FREE and W2N[0] < 11:
        kk = W2N[0]; W2N[0] += 1
        W2SLOT[kk] = W2FREE.pop(0)
        for j in range(4):
            bg_dma(f's_add_u32 m0, s{sW4}, {W2SLOT[kk]}',
                   f's_add_u32 s{sD0}, s{sWOFF}, {kk*32*1024}' if kk < 10 else f's_mov_b32 s{sD0}, s{sW2L}',
                   f'buffer_load_dwordx4 v{vDW+j}, {srd(SW2)}, s{sD0} offen offset:{j*1024} lds', f'z{kk}')
def w2_areg(kk): return 192 + 16*kk if kk < 4 else 16*(kk-4)
def w2_read(kk, E):
    o = W2SLOT[kk]
    for c in range(4):
        a = w2_areg(kk) + 4*c
        base, off = (vTRW+c, o - L_B) if o >= L_B else (vTR2+c, o - 16384)
        E(f'ds_read_b64_tr_b16 {ar(a,2)}, v{base} offset:{off}', 'lg', f'zr{kk}')
        E(f'ds_read_b64_tr_b16 {ar(a+2,2)}, v{base} offset:{off+512}', 'lg', f'zr{kk}')
def stats_fin(E, gap):
    b = vSTT
    X = [b+2*k for k in range(6)]
    for k in range(6): E(f'v_add_f32 v{X[k]}, v{X[k]}, v{b+12+2*k}')
    for op in ('v_permlane16_swap_b32', 'v_permlane32_swap_b32'):
        for k in range(6): E(f'v_mov_b32 v{X[k]+1}, v{X[k]}')
        for k in range(6): E(f'{op} v{X[k]}, v{X[k]+1}')
        for k in range(6): E(f'v_add_f32 v{X[k]}, v{X[k]}, v{X[k]+1}')
    X1, X2, X3, X4, X5, X6 = X
    a_, b_, c_, d_ = b+1, b+3, b+5, b+7
    co = [b+12, b+13, b+14, b+15]; cs = [b+16, b+17, b+18, b+19]
    for r in X: E(f'v_mul_f32 v{r}, {hx(f2u(1/512))}, v{r}')
    E(f'v_fma_f32 v{X2}, -v{X1}, v{X1}, v{X2}')
    E(f'v_max_f32 v{X2}, 0, v{X2}')
    E(f'v_add_f32 v{X2}, {hx(f2u(1e-5))}, v{X2}')
    E(f'v_rsq_f32 v{a_}, v{X2}')
    E(f'v_fma_f32 v{X3}, -v{X1}, s{sG}, v{X3}')
    E(f'v_mul_f32 v{co[1]}, v{X2}, v{a_}')
    E(f'v_fma_f32 v{b_}, v{X3}, v{a_}, s{sG+2}')
    E(f'v_mul_f32 v{c_}, s{sG+1}, v{X1}')
    E(f'v_fma_f32 v{c_}, -2.0, v{X5}, v{c_}')
    E(f'v_fma_f32 v{X4}, v{X1}, v{c_}, v{X4}')
    E(f'v_fma_f32 v{X6}, -v{X1}, s{sG+4}, v{X6}')
    E(f'v_add_f32 v{X6}, v{X6}, v{X6}')
    E(f'v_fma_f32 v{X4}, v{X4}, v{a_}, v{X6}')
    E(f'v_fma_f32 v{X4}, v{X4}, v{a_}, s{sG+3}')
    E(f'v_fma_f32 v{X4}, -v{b_}, v{b_}, v{X4}')
    E(f'v_max_f32 v{X4}, 0, v{X4}')
    E(f'v_add_f32 v{X4}, {hx(f2u(1e-5))}, v{X4}')
    E(f'v_rsq_f32 v{d_}, v{X4}')
    K0 = -2.0 * 0.7978845608028654 * LOG2E
    K1_ = K0 * 0.044715
    E(f'v_sub_f32 v{co[0]}, 0, v{X1}')
    E(f'v_mul_f32 v{X4}, v{X4}, v{d_}')
    E(f'v_mul_f32 v{co[2]}, -v{b_}, v{co[1]}')
    E(f'v_mul_f32 v{co[3]}, v{co[1]}, v{X4}')
    E(f'v_mul_f32 v{d_}, v{a_}, v{d_}')
    E(f'v_mul_f32 v{cs[0]}, {hx(f2u(K0))}, v{d_}')
    E(f'v_mul_f32 v{cs[1]}, v{d_}, v{d_}')
    E(f'v_mul_f32 v{cs[1]}, v{cs[1]}, v{d_}')
    E(f'v_mul_f32 v{cs[1]}, {hx(f2u(K1_))}, v{cs[1]}')
    E(f'v_mov_b32 v{cs[2]}, v{co[3]}')
    E(f'v_mov_b32 v{cs[3]}, 0')
    E(f's_lshl_b32 s{sT0}, s{sWAVE}, 9')
    E(f'v_lshlrev_b32 v{vT+2}, 5, v{vI}')
    E(f'v_add_u32 v{vT+2}, {L_ST2}, v{vT+2}')
    E(f'v_add_u32 v{vT+4}, s{sT0}, v{vT+2}')
    E(f'v_lshl_add_u32 v{vT+3}, v{vG}, 2, v{vT+2}')
    E(f'ds_write_b128 v{vT+4}, {vr(co[0],4)}', 'lg', 'sw2')
    E(f'ds_write_b128 v{vT+4}, {vr(cs[0],4)} offset:16', 'lg', 'sw2')
sHB2 = sLN+5
def gelu(rt, E, pk):
    a = vAC3 + 12*rt
    c0 = vCS + 4*rt
    if pk:
        P = range(0, 12, 2)
        for e in P: E(f'v_pk_mul_f32 {vr(vG1+e,2)}, {vr(a+e,2)}, {vr(a+e,2)}')
        for e in P: E(f'v_pk_fma_f32 {vr(vG1+e,2)}, {vr(vG1+e,2)}, {vr(c0,2)}, {vr(c0,2)} op_sel:[0,1,0] op_sel_hi:[1,1,0]')
        for e in P: E(f'v_pk_mul_f32 {vr(vG1+e,2)}, {vr(vG1+e,2)}, {vr(a+e,2)}')
        for e in range(12): E(f'v_exp_f32 v{vG1+e}, v{vG1+e}')
        for e in P: E(f'v_pk_fma_f32 {vr(vG1+e,2)}, {vr(vG1+e,2)}, {vr(c0+2,2)}, {vr(c0+2,2)} op_sel_hi:[1,0,0]')
        for e in range(12): E(f'v_rcp_f32 v{vG1+e}, v{vG1+e}')
        for e in P: E(f'v_pk_mul_f32 {vr(vG1+e,2)}, {vr(vG1+e,2)}, {vr(a+e,2)}')
    else:
        Ee = range(12)
        for e in Ee: E(f'v_mul_f32 v{vG1+e}, v{a+e}, v{a+e}')
        for e in Ee: E(f'v_fma_f32 v{vG1+e}, v{vG1+e}, v{c0+1}, v{c0}')
        for e in Ee: E(f'v_mul_f32 v{vG1+e}, v{vG1+e}, v{a+e}')
        for e in Ee: E(f'v_exp_f32 v{vG1+e}, v{vG1+e}')
        for e in Ee: E(f'v_fma_f32 v{vG1+e}, v{vG1+e}, v{c0+2}, v{c0+2}')
        for e in Ee: E(f'v_rcp_f32 v{vG1+e}, v{vG1+e}')
        for e in Ee: E(f'v_mul_f32 v{vG1+e}, v{vG1+e}, v{a+e}')
    p, hf = rt >> 1, rt & 1
    for tt in range(3):
        for h in range(2):
            E(f'v_cvt_pk_bf16_f32 v{vHP+12*p+4*tt+2*hf+h}, v{vG1+4*tt+2*h}, v{vG1+4*tt+2*h+1}')
    if hf:
        for tt in range(3):
            o = vHP+12*p+4*tt
            E(f'v_permlane16_swap_b32 v{o}, v{o+2}')
            E(f'v_permlane16_swap_b32 v{o+1}, v{o+3}')
        for tt in range(3):
            o = vHP+12*p+4*tt
            E(f'buffer_store_dwordx4 {vr(o,4)}, v{vPH}, {srd(SWS)}, s{sHB2 if p else sHB} offen offset:{tt*512} sc1', 'vm', 'stB' if p else 'stA')
def corr(rt):
    for tt in range(3):
        acc = vr(vAC3+12*rt+4*tt, 4)
        mfma(f'v_mfma_f32_16x16x4_f32 {acc}, v{vCO+4*tt}, v{vCB+rt}, {acc}', 4)
zread = set(); zenq = set()
NGH = opt('ngh', 1)
seq = [(rt, ks) for ks in W1ORD for rt in (0, 1)] + [(rt, ks) for rt in (2, 3) for ks in W1ORD]
nread = 0; vis = 2
w2go = [False, False]
def w2_start():
    if not w2go[1] and W1.enq == 16 and W1.done > 5 + NA:
        W2FREE.append(65536); w2_more(); w2go[1] = True
    if not w2go[0] and W1.done == 16:
        W2FREE.extend(L_B + 16384*k for k in range(4)); w2_more()
        w2go[0] = True
XR2 = [216 + 4*k for k in range(8)]
for n, (rt, ks) in enumerate(seq):
    if n == 0:
        while nread < NB - 1: f_read(nread, E0, 'uf'); nread += 1
        w1_more(16); w1_reads(mid)
        bg_on(opt('ip3a', 100))
        lo(f's_add_u32 s{sHB2}, s{sHB}, {2*HRT}')
        for tt in range(3): lo(f'v_lshlrev_b32 v{vBI+tt}, 16, v{vBI+tt}')
    if n % 16 == 0 and n: stamp(f'p3q{n//16}', 3)
    if n == opt('pin', 8):
        bg_front(lambda: (poll_issue(4, bg), stat_issue(bg))); bg_until('poll')
    if n in (opt('wb1', 6), opt('wb2', 16)) and W1.done < 16:
        xbar('m9', 2); w1_reads(mid); w2_start()
    if n < 32 and W1ORD.index(ks) + 2 > W1.read and W1.read < 16:
        xbar('m10', 1, min(16, W1ORD.index(ks) + 2)); w1_reads(mid); w2_start()
    if n == opt('pcn', 18):
        poll_check(4)
        bg_front(lambda: (tile_enq(2, 'u'), tile_enq(3, 'u'), bg_delay(0, opt('ip3b', 96))))
        BG.interval = 48
    if n == opt('stn', 20):
        checked('stt', stat_issue, [vSTT+1+2*k for k in range(12)])
        stats_fin(lo, lo_gap)
    if n == opt('ub2', 29):
        wait('u2'); w1_bar(0); vis = 3; w2_start()
    if n == 32:
        extra_tile(16, XR2); extra_tile(16, XR2); assert xdone[0] == 16
    if n == opt('sb', 33):
        lo_flush()
        wait(None, 'sw2'); w1_bar(0); w2_start()
        for r2 in range(4):
            mid(f'ds_read_b32 v{vCB+r2}, v{vT+3} offset:{r2*512}', 'lg', 'cb')
            mid(f'ds_read_b128 {vr(vCS+4*r2,4)}, v{vT+2} offset:{r2*512+16}', 'lg', 'cb')
        lo(f'v_cmp_eq_u32 vcc, 3, v{vG}'); lo_gap(1)
        for tt in range(3): lo(f'v_cndmask_b32 v{vCO+4*tt}, v{vCO+4*tt}, v{vBI+tt}, vcc')
    if n == opt('sb', 33) + 5:
        lo_flush(); wait(None, 'cb')
        corr(0); corr(1)
        gelu(0, lo, 0)
    if n == opt('ub3', 41):
        wait('u3'); R_('s_barrier'); vis = 4
    assert opt('g1n', 52) >= 49
    if n == opt('g1n', 52):
        lo_flush(); gelu(1, A, 1)
        stamp('h1A stored', 3)
        corr(2); lo_gap(3)
        if opt('g2h', 1): gelu(2, lo, 0)
    Z = [opt('za', 44), opt('zb', 52), opt('zc', 58), opt('zd', 99)]
    for kk in range(4):
        if n == Z[kk]:
            wait(f'z{kk}'); w2_read(kk, mid); zread.add(kk)
        if n == Z[kk] + 6:
            wait(None, f'zr{kk}'); W2FREE.append(W2SLOT[kk]); w2_more(); zenq.add(kk)
    for _ in range(2):
        if nread < min(n + NB, len(seq)) and seq[nread][0] < vis and len(HI) < 2:
            f_read(nread, hi, 'uf'); nread += 1
    assert nread > n + (1 - n % 2)
    wait(None, f'wr{ks}')
    if n % 2 == 0: wait(None, f'uf{n+1}')
    f = vr(bufs[n%NB], 4)
    for tt in range(3):
        acc = vr(vAC3+12*rt+4*tt, 4)
        mfma(f'v_mfma_f32_16x16x32_bf16 {acc}, {ar(64*tt+4*ks,4)}, {f}, {"0" if ks == W1ORD[0] else acc}', 2 if tt < 2 or n % 2 == 0 else 1)
assert w2go[0]
corr(3)
FA = opt('fa', 0)
if FA == 0: wait('stA')
R_('s_barrier')
if FA == 0: flag(5, 'stA', E0)
stamp('P3 gemm done')
mid_flush()
W2FREE.extend([16384, 32768, 49152]); w2_more()
BG.interval = opt('igelu', 70)
lo_flush()
stamp('lo flushed', 3)
def z_catch(kk, E=E0):
    if kk not in zread:
        wait(f'z{kk}'); w2_read(kk, E); zread.add(kk)
def z_refill():
    for kk in sorted(zread):
        if kk not in zenq and W2N[0] < 11:
            wait(None, f'zr{kk}'); W2FREE.append(W2SLOT[kk]); w2_more(); zenq.add(kk)
z_refill()
for kk in range(opt('zc0', 4)): z_catch(kk)
if not opt('g2h', 1): gelu(2, A, 1)
if FA == 1:
    bg_off(); wait('stA'); R_('s_barrier'); flag(5, 'stA', E0); BG.on = True
gelu(3, A, 1)
z_refill()
assert W2N[0] == 11
bg_off()
stamp('gelu done', 3)
poll_issue(5)
bg_flush()
vGG = 136
lg(f'ds_read_b64 {vr(vGG+2,2)}, v{vMC} offset:{5*1024}', 'c5')
A(f'v_lshlrev_b32 v{vT}, 3, v{vG}')
A(f's_lshl_b32 s{sT0}, s{sWAVE}, 5')
A(f's_add_u32 s{sT0}, s{sT0}, {L_B2}')
A(f'v_add_u32 v{vT}, s{sT0}, v{vT}')
lg(f'ds_read_b64 {vr(134,2)}, v{vT}', 'c5')
hs = [4, 5, 6, 7, 8, 9, 10, 11, 12, 13, sLN, sLN+1]
A(f's_mul_i32 s{hs[0]}, s{sWAVE}, {11*1024}')
A(f's_add_u32 s{hs[0]}, s{hs[0]}, s{sCB}')
for k in range(1, 6): A(f's_add_u32 s{hs[k]}, s{hs[0]}, {(k//3)*HRT + (k%3)*4096}')

poll_check(5)
stamp('h1A seen')
aAC = 112
NH = 16
hb = [144 + 4*k for k in range(NH)]
hseq = [(r, kk) for kk in range(11) for r in (0, 1)] + [(r, kk) for r in (2, 3) for kk in range(11)]
def h_load(n, E):
    r, kk = hseq[n]
    vo = vLAST if kk == 10 else vOFF16
    E(f'buffer_load_dwordx4 {vr(hb[n%NH],4)}, v{vo}, {srd(SWS)}, s{hs[3*r+(kk>>2)]} offen offset:{(kk&3)*1024} sc1', 'vm', f'h{n}')
LH = opt('lh', 10)
for n in range(opt('lh0', 6)): h_load(n, A)
nload = opt('lh0', 6)
for kk in range(opt('zc1', 8)): z_catch(kk)
wait('stB'); R_('s_barrier'); flag(6, 'stB', E0)
stamp('h1B published')
for k in range(6, 12): lo(f's_add_u32 s{hs[k]}, s{hs[0]}, {(k//3)*HRT + (k%3)*4096}')
vRA = vT + 2; vPX = vDQ
L_RED = L_B
for c in range(4):
    lo(f's_add_u32 s{sT0}, s{sWAVE}, {c}')
    lo(f's_and_b32 s{sT0}, s{sT0}, 3')
    lo(f's_mul_i32 s{sT0}, s{sT0}, 12288')
    lo(f's_add_u32 s{sT0}, s{sT0}, {L_RED + max(c-1, 0)*4096}')
    lo(f'v_add_u32 v{vRA + (c-1 if c else 3)}, s{sT0}, v{vOFF16}')
lo(f'v_and_b32 v{vT+1}, 1, v{vG}')
lo(f'v_lshlrev_b32 v{vPX}, 10, v{vI}')
lo(f'v_lshl_add_u32 v{vPX}, v{vT+1}, 14, v{vPX}')
lo(f'v_lshrrev_b32 v{vT+1}, 1, v{vG}')
lo(f'v_lshl_add_u32 v{vPX}, v{vT+1}, 4, v{vPX}')
sXO2 = sLN+2
lo(f's_add_u32 s{sXO2}, s{sXO}, 32768')
lo_wait(None, 'c5')
unpack(vGG, vGG+2, lo); unpack(vGG+2, vGG+3, lo); unpack(132, 134, lo); unpack(134, 135, lo)
for r2 in range(4):
    for e in range(4): lo(f'v_fmac_f32 v{vX1+4*r2+e}, v{vGG+e}, v{132+e}')
vR, vOW, vOUT = 64, 208, 224
def red_write(r, E):
    for c in range(1, 4):
        E(f'ds_write_b128 v{vRA+c-1}, {ar(aAC+16*r+4*c,4)} offset:{r*1024}', 'lg', f'rw{r}')
def red_read(r, E):
    for c in range(3):
        E(f'ds_read_b128 {vr(vR+12*r+4*c,4)}, v{vRA+3} offset:{c*4096 + r*1024}', 'lg', f'rr{r}')
def fin(r, E, pk):
    y = vR + 12*r
    for e in range(4): E(f'v_accvgpr_read_b32 v{vOW+4*r+e}, a{aAC+16*r+e}')
    if pk:
        for h in range(2): E(f'v_pk_add_f32 {vr(y+2*h,2)}, {vr(y+2*h,2)}, {vr(y+4+2*h,2)}')
        for h in range(2): E(f'v_pk_add_f32 {vr(y+8+2*h,2)}, {vr(y+8+2*h,2)}, {vr(vOW+4*r+2*h,2)}')
        for h in range(2): E(f'v_pk_add_f32 {vr(y+2*h,2)}, {vr(y+2*h,2)}, {vr(y+8+2*h,2)}')
        for h in range(2): E(f'v_pk_fma_f32 {vr(y+2*h,2)}, {vr(vGG+2*h,2)}, {vr(y+2*h,2)}, {vr(vX1+4*r+2*h,2)}')
    else:
        for e in range(4): E(f'v_add_f32 v{y+e}, v{y+e}, v{y+4+e}')
        for e in range(4): E(f'v_add_f32 v{y+8+e}, v{y+8+e}, v{vOW+4*r+e}')
        for e in range(4): E(f'v_add_f32 v{y+e}, v{y+e}, v{y+8+e}')
        for e in range(4): E(f'v_fma_f32 v{y+e}, v{vGG+e}, v{y+e}, v{vX1+4*r+e}')
    o = vOUT + 4*(r >> 1)
    for h in range(2): E(f'v_cvt_pk_bf16_f32 v{o+2*(r&1)+h}, v{y+2*h}, v{y+2*h+1}')
    if r & 1:
        E(f'v_permlane16_swap_b32 v{o}, v{o+2}')
        E(f'v_permlane16_swap_b32 v{o+1}, v{o+3}')
        E(f'buffer_store_dwordx4 {vr(o,4)}, v{vPX}, {srd(SOUT)}, s{sXO2 if r >> 1 else sXO} offen', 'vm', 'out')
okB = False
for n, (r, kk) in enumerate(hseq):
    if n == opt('pb4', 4): poll_issue(6, hi)
    if n == opt('pc4', 13):
        lo_flush(); poll_check(6); okB = True
        stamp('h1B seen', 3)
    for _ in range(2):
        if nload < min(n + LH, 44 if okB else 22) and len(HI) < 2:
            h_load(nload, hi); nload += 1
    if n < 22 and r == 0 and kk + 2 < 11: z_catch(kk + 2, mid)
    if n == 23:
        mid_flush(); wait_all_lg(); R_('s_barrier')
    if n == 24: red_write(0, mid); red_write(1, mid)
    if n == 35: red_write(2, mid)
    if n == opt('rb', 38):
        wait(None, 'rw2'); R_('s_barrier')
        for r2 in range(3): red_read(r2, mid)
        for r2 in range(3):
            lo_wait(None, f'rr{r2}'); fin(r2, lo, False)
    assert nload > n
    wait(f'h{n}', f'zr{kk}')
    cs_ = [1, 2, 3, 0]
    for ci, c in enumerate(cs_):
        acc = ar(aAC+16*r+4*c, 4)
        mfma(f'v_mfma_f32_16x16x32_bf16 {acc}, {ar(w2_areg(kk)+4*c,4)}, {vr(hb[n%NH],4)}, {"0" if kk==0 else acc}', 2 if ci < 3 else 1)
stamp('P4 gemm done')
mid_flush()
red_write(3, A)
lo_flush()
wait(None, 'rw3'); R_('s_barrier')
red_read(3, A)
wait(None, 'rr3')
fin(3, A, True)
if TWICE:
    R_('s_waitcnt vmcnt(0)')
    R_('s_barrier')
    R_(f'v_readlane_b32 s{sT0}, v31, 42'); R_('s_nop 3'); R_(f's_cmp_lg_u32 s{sT0}, 0'); R_('s_cbranch_scc1 L_fin')
    R_(f's_mov_b32 s{sT0}, 256'); R_(f'v_writelane_b32 v31, s{sT0}, 42')
    R_('v_readlane_b32 s0, v31, 40'); R_('v_readlane_b32 s1, v31, 41')
    R_(f's_lshl_b32 s{sT0}, s{sWAVE}, 6'); R_(f'v_or_b32 v0, s{sT0}, v0'); R_('s_nop 4')
    R_('s_branch L_again')
    R_('L_fin:')
if STAMP:
    R_('s_waitcnt vmcnt(0)')
    stamp('end')
    R_(f's_memrealtime {sp(sTM)}')
    R_('s_waitcnt lgkmcnt(0)')
    R_(f's_lshl_b32 s{sT0}, s2, 7')
    R_(f's_lshl_b32 s{sT1}, s{sWAVE}, 15')
    R_(f's_add_u32 s{sT0}, s{sT0}, s{sT1}')
    R_(f's_add_u32 s{sT0}, s{sT0}, {WS_STAMP}')
    R_(f'v_writelane_b32 v31, s{sTM}, 29')
    R_(f'v_writelane_b32 v31, s{sSPIN}, 30')
    R_(f'v_writelane_b32 v31, s{sLOCAL}, 31')
    R_(f'v_lshlrev_b32 v{vT}, 2, v{vLANE}')
    R_('s_mov_b64 exec, 0xffffffff')
    R_(f'buffer_store_dword v31, v{vT}, {srd(SWS)}, s{sT0} offen')
if DBG:
    l = label('Ldbg')
    R_('s_waitcnt vmcnt(0)')
    R_('s_cmp_ge_u32 s2, 8'); R_(f's_cbranch_scc1 {l}')
    R_(f's_cmp_lg_u32 s{sWAVE}, 0'); R_(f's_cbranch_scc1 {l}')
    R_(f's_memrealtime {sp(sTM)}'); R_('s_memtime s[4:5]'); R_('s_waitcnt lgkmcnt(0)')
    R_('v_readlane_b32 s6, v31, 52'); R_('v_readlane_b32 s7, v31, 53'); R_('v_readlane_b32 s8, v31, 54')
    R_('v_readlane_b32 s10, v31, 50'); R_('v_readlane_b32 s11, v31, 51'); R_('s_nop 4')
    R_(f's_sub_u32 s9, s{sTM}, s6'); R_('s_and_b32 s6, s6, 0xffff'); R_('s_mul_i32 s6, s6, 10000'); R_('s_add_u32 s9, s9, s6')
    R_('s_sub_u32 s4, s4, s7'); R_('s_sub_u32 s8, s8, s7'); R_('s_lshr_b32 s8, s8, 4'); R_('s_mul_i32 s8, s8, 1000000'); R_('s_add_u32 s4, s4, s8')
    R_('v_mov_b32 v10, s10'); R_('v_mov_b32 v11, s11'); R_('s_lshl_b32 s5, s2, 2'); R_('v_add_u32 v10, s5, v10')
    R_('v_mov_b32 v12, s9'); R_('v_mov_b32 v13, s4')
    R_('s_mov_b64 exec, 1')
    R_('global_store_dword v[10:11], v12, off'); R_('global_store_dword v[10:11], v13, off offset:32')
    R_(f'{l}:')
R_('s_endpgm')
R_('.fill 2048, 4, 0xbf800000')
assert not HI and not LO and not BG.q and not MID
print(f"""; Kernarg layout (104 bytes, ptrs only, base s[0:1]): A_x, A_wqkv, A_wo, B_x, B_w1, B_b1, B_w2, B_b2, c, w_mod, d_out, d_debug, d_ws
; @launch grid=(256,1,1) block=(256,1,1) lds={LDS_BYTES}
.amdgcn_target "amdgcn-amd-amdhsa--gfx950"
.text
.globl {NAME}_kernel
.p2align 8
.type {NAME}_kernel,@function
{NAME}_kernel:""")
sys.stdout.write(R_.render())
print(f""".section .rodata,"a"
.p2align 6
.amdhsa_kernel {NAME}_kernel
  .amdhsa_next_free_vgpr 512
  .amdhsa_next_free_sgpr 102
  .amdhsa_accum_offset 256
  .amdhsa_group_segment_fixed_size 0
  .amdhsa_kernarg_size 104
  .amdhsa_user_sgpr_count 2
  .amdhsa_user_sgpr_kernarg_segment_ptr 1
  .amdhsa_system_sgpr_workgroup_id_x 1
.end_amdhsa_kernel""")
sys.stderr.write(f'\nstamps={nstamp[0]} nops={R_.nnop} lines={len(R_.lines)}\n')
```

```python
from infra import *
NAME = 'adaLN_cond__sliding_local_dilated__mixer_channel_mlp__prompt'
FORCE_GLOBAL = '--global' in sys.argv
WS_XCC, WS_MOD, WS_STAMP, WS_CL = 0x1000, 0x2000, 0x20000, 0x100000
HRT = 43*1024
C_U = 4*HRT; C_A = C_U; C_ST = C_U + 65536; C_FLAG = C_ST + 24576
CLSZ = 0x48000
WS_SIZE = WS_CL + 32*CLSZ
L_A1, L_B, L_MISC = 0, 81920, 147456
L_MODT = L_MISC - 2048
L_ONES = L_MISC + 4096
L_ST1  = L_MISC + 5120
L_ST2  = L_MISC + 13312
L_P0S  = L_MISC + 15360
L_B2   = L_MISC + 15616
LDS_BYTES = 163840
sWAVE = 3
SX, SWQKV, SWO, SW1, SW2, SWS, SOUT, SWMOD = 32, 36, 40, 44, 48, 52, 56, 60
sB1, sB2, sC = 14, 18, 20
sCL, sJ, sTAG, sLOCAL, sR0 = 64, 65, 66, 67, 68
sT0, sT1, sT2 = 69, 70, 71
sLN = 72; sG = 80; sCB = 86
sSOFF, sSLDS, sWOFF, sWLDS, sD0 = 87, 88, 89, 90, 91
sIW, sWMB, sGW, sB1O = 92, 93, 94, 95
sXO, sSB, sHB, sMSK, sP, sCQ = 96, 97, 98, 99, 100, 101
sXCC, sWM, sS1OFF, sOST, sFL = 26, 27, 22, 16, 17
sGM, sGX, sW4 = 23, 24, 25
vLANE, vOFF16, vDQ, vTRQA, vTA, vTCH = 0, 1, 2, 3, 4, 5
vDW, vAR4, vAR, vTRQ, vTRW, vI, vG, vT = 6, 10, 14, 18, 19, 23, 24, 25
vDWO, vXO, vTR1, vPO, vPH, vFLO, vFLV, vZ, vMC, vO8 = 32, 33, 34, 37, 38, 39, 40, 41, 42, 43
vXA, vSTA, vLAST, vONE = 44, 45, 46, 47
vM, vD1, vBI, vWMO, vP0A, vS = 48, 52, 55, 58, 59, 60
LOG2E = 1.4426950408889634
def mk_srd(b, ptr, size):
    A(f's_mov_b32 s{b}, s{ptr}'); A(f's_mov_b32 s{b+1}, s{ptr+1}')
    A(f's_mov_b32 s{b+2}, {hx(size)}'); A(f's_mov_b32 s{b+3}, 0x00020000')

CLW = opt('clw', 8)
vXR0, vHS, vTQ, vTM = 64, 164, 90, 91
A('s_cmp_lt_u32 s2, 256')
A('s_cbranch_scc1 L_go')
A('s_endpgm')
A('L_go:')
TWICE = opt('twice', 0)
if TWICE:
    R_('v_writelane_b32 v31, s0, 40'); R_('v_writelane_b32 v31, s1, 41'); R_('v_mov_b32 v30, 0'); R_('s_mov_b32 s3, 0'); R_('v_writelane_b32 v31, s3, 42')
    R_('L_again:')
A('s_load_dwordx16 s[4:19], s[0:1], 0')
A('s_load_dwordx8 s[20:27], s[0:1], 64')
A('s_load_dwordx2 s[28:29], s[0:1], 96')
A(f's_getpc_b64 {sp(sTM)}')
A(f'v_lshrrev_b32 v{vT}, 6, v0')
A(f'v_and_b32 v{vLANE}, 63, v0')
A(f'v_readfirstlane_b32 s{sWAVE}, v{vT}')
A(f's_bfe_u32 s{sJ}, s2, 0x30003')
A(f's_lshl_b32 s{sT2}, s{sJ}, 2')
A(f's_add_u32 s{sT2}, s{sT2}, s{sWAVE}')
A(f's_mul_i32 s{sT0}, s{sT2}, {CLW*128}')
A(f'v_lshlrev_b32 v{vTA}, 7, v{vLANE}')
A(f'v_add_u32 v{vT}, s{sT0}, v{vTA}')
A(f's_mov_b64 exec, {hx((1<<CLW)-1)}')
vm(f'global_load_dword v{vTCH}, v{vT}, {sp(sTM)}', 'touch')
A('s_mov_b64 exec, -1')
A(f'v_lshlrev_b32 v{vOFF16}, 4, v{vLANE}')
A(f's_and_b32 s{sT0}, s2, 7')
A(f's_lshr_b32 s{sCQ}, s2, 6')
A(f's_lshl_b32 s{sCL}, s{sT0}, 2')
A(f's_add_u32 s{sCL}, s{sCL}, s{sCQ}')
A(f's_lshl_b32 s{sR0}, s{sCL}, 6')
A(f's_lshr_b32 s{sIW}, s2, 3')
A(f's_lshl_b32 s{sIW}, s{sIW}, 2')
A(f's_add_u32 s{sIW}, s{sIW}, s{sWAVE}')
A(f'v_lshrrev_b32 v{vT+2}, 2, v{vLANE}')
A(f'v_mul_u32_u24 v{vTM}, 6144, v{vT+2}')
A(f'v_and_b32 v{vT+2}, 3, v{vLANE}')
A(f'v_lshl_add_u32 v{vTM}, v{vT+2}, 7, v{vTM}')
A(f's_mul_i32 s{sLN+1}, s{sIW}, {4*6144}')
A(f's_lshl_b32 s{sT1}, s{sT0}, 9')
A(f's_add_u32 s{sWMB}, s{sLN+1}, s{sT1}')
A(f's_lshl_b32 s{sT1}, s{sT0}, 8')
A(f's_add_u32 s{sLN+1}, s{sLN+1}, s{sT1}')
sRL = [sG, sG+1, sG+2]; sRG = [sLN+4, sLN+5, sLN+6]
A(f's_mul_i32 s{sRL[0]}, s{sJ}, 10')
A(f's_add_u32 s{sRL[0]}, s{sRL[0]}, s{sWAVE}')
A(f's_add_u32 s{sRL[1]}, s{sRL[0]}, 4')
A(f's_add_u32 s{sRL[2]}, s{sRL[0]}, 8')
A(f's_min_u32 s{sRL[2]}, s{sRL[2]}, 79')
for k in range(3):
    A(f's_add_u32 s{sRG[k]}, s{sRL[k]}, s{sR0}')
    A(f's_sub_u32 s{sRG[k]}, s{sRG[k]}, 16')
    A(f's_max_i32 s{sRG[k]}, s{sRG[k]}, 0')
    A(f's_lshl_b32 s{sRG[k]}, s{sRG[k]}, 10')
A(f's_lshl_b32 s{sP}, s{sT0}, 3')
A(f's_min_u32 s{sT1}, s{sCQ}, 2')
A(f's_lshl_b32 s{sT1}, s{sT1}, 3')
A(f's_add_u32 s{sT1}, s{sT1}, 56')
A(f's_add_u32 s{sT1}, s{sT1}, s{sP}')
A(f's_cmp_eq_u32 s{sCQ}, 0')
A(f's_cselect_b32 s{sT1}, 0, s{sT1}')
A(f's_add_u32 s{sP}, s{sP}, s{sT1}')
A(f's_add_u32 s{sP}, s{sP}, s{sJ}')
A(f's_lshl_b32 s{sGW}, s2, 2')
A(f's_add_u32 s{sGW}, s{sGW}, s{sWAVE}')
A(f's_mul_i32 s{sT1}, s{sGW}, {12*128}')
A(f'v_add_u32 v{vTQ}, s{sT1}, v{vTA}')
A(f's_mul_i32 s{sT1}, s{sIW}, {12*1024}')
A(f's_add_u32 s{sT1}, s{sT1}, {hx(384 - 12*1024)}')
A(f'v_lshl_add_u32 v{vT+2}, v{vLANE}, 10, s{sT1}')
A(f'v_cmp_lt_u32 vcc, 11, v{vLANE}')
A(f'v_lshrrev_b32 v{vT+1}, 1, v{vLANE}')
A(f's_lshl_b32 s{sT0}, s{sWAVE}, 8')
A(f'v_cndmask_b32 v{vTQ}, v{vTQ}, v{vT+2}, vcc')
A(f'v_mul_u32_u24 v{vWMO}, {4*6144}, v{vT+1}')
A(f'v_lshl_add_u32 v{vT+1}, v{vT+1}, 3, s{sT0}')
A(f'v_mov_b32 v{vT+3}, 0')
A('s_waitcnt lgkmcnt(0)')
A(f's_mov_b64 s[0:1], {sp(sTM)}')
DBG = opt('dbg', 0)
if DBG:
    R_('v_writelane_b32 v31, s26, 50'); R_('v_writelane_b32 v31, s27, 51')
    R_(f's_memrealtime {sp(sTM)}'); R_('s_waitcnt lgkmcnt(0)'); R_(f'v_writelane_b32 v31, s{sTM}, 52')
    R_(f's_memtime {sp(sTM)}'); R_('s_waitcnt lgkmcnt(0)'); R_(f'v_writelane_b32 v31, s{sTM}, 53')
stamp('kernarg')
if STAMP:
    R_(f's_memrealtime {sp(sTM)}'); R_('s_waitcnt lgkmcnt(0)'); R_(f'v_writelane_b32 v31, s{sTM}, 28')
mk_srd(SWMOD, 22, 512*3072*2)
A('s_mov_b64 exec, 0x3333')
vm(f'buffer_load_dword v{vTCH}, v{vTM}, {srd(SWMOD)}, s{sLN+1} offen', 'touch')
A('s_mov_b64 exec, -1')
mk_srd(SWS, 28, WS_SIZE)
vE, vCV = vT+4, 62
vm(f'buffer_load_dword v{vE}, v{vT+3}, {srd(SWS)}, 0 offen sc1', 'E')
vm(f'global_load_dwordx2 {vr(vCV,2)}, v{vT+1}, {sp(sC)}', 'E')
mk_srd(SWQKV, 6, 512*1536*2)
A('s_mov_b64 exec, 0xffffff')
vm(f'buffer_load_dword v{vTCH}, v{vTQ}, {srd(SWQKV)}, 0 offen', 'touch')
A('s_mov_b64 exec, -1')
mk_srd(SWO, 8, 512*512*2)
A(f's_lshl_b32 s{sT0}, s{sGW}, 9')
A(f'v_add_u32 v{vTQ}, s{sT0}, v{vTA}')
A(f's_lshl_b32 s{sT0}, s{sIW}, 12')
A(f's_add_u32 s{sT0}, s{sT0}, {hx(384 - 4*1024)}')
A(f'v_lshl_add_u32 v{vT+2}, v{vLANE}, 10, s{sT0}')
A(f'v_cmp_lt_u32 vcc, 3, v{vLANE}')
A(f'v_cndmask_b32 v{vTQ}, v{vTQ}, v{vT+2}, vcc')
A('s_mov_b64 exec, 0xff')
vm(f'buffer_load_dword v{vTCH}, v{vTQ}, {srd(SWO)}, 0 offen', 'touch')
A('s_mov_b64 exec, -1')
if opt('tlb', 0):
    A(f's_mul_i32 s{sT0}, s{sCL}, {CLSZ}')
    A(f's_add_u32 s{sT0}, s{sT0}, {WS_CL + C_FLAG}')
    A('s_mov_b64 exec, 1')
    for pr in (4, 12, 16, 14, 18, 24): vm(f'global_load_dword v{vTCH}, v{vT+3}, {sp(pr)}', 'touch')
    vm(f'buffer_load_dword v{vTCH}, v{vT+3}, {srd(SWS)}, s{sT0} offen sc1', 'touch')
    A('s_mov_b64 exec, -1')
mk_srd(SX, 4, 2048*512*2)
mk_srd(SW1, 12, 512*1376*2)
mk_srd(SW2, 16, 1376*512*2)
mk_srd(SOUT, 24, 2048*512*2)
A(f's_mov_b32 s{sSPIN}, 0')
A(f's_mul_i32 s{sCB}, s{sCL}, {CLSZ}')
A(f's_add_u32 s{sCB}, s{sCB}, {WS_CL}')
A(f's_getreg_b32 s{sXCC}, hwreg(HW_REG_XCC_ID)')
A(f's_and_b32 s{sXCC}, s{sXCC}, 15')
A(f's_mul_i32 s{sWM}, s{sWAVE}, {128*6144}')
A(f's_lshl_b32 s{sT1}, s{sP}, 5')
A(f's_add_u32 s{sWM}, s{sWM}, s{sT1}')
t0, t1, t2, t3 = vT, vT+1, vT+2, vT+3
vRR, vC8, vFSW, vL8 = 92, 93, 94, 95
A(f'v_and_b32 v{t3}, 1, v{vLANE}')
A(f'v_lshl_add_u32 v{vWMO}, v{t3}, 4, v{vWMO}')
A(f'v_and_b32 v{vI}, 15, v{vLANE}')
A(f'v_lshrrev_b32 v{vG}, 4, v{vLANE}')
A(f'v_lshrrev_b32 v{t0}, 1, v{vG}')
A(f'v_and_b32 v{t1}, 1, v{vG}')
A(f'v_lshl_add_u32 v{t2}, v{t1}, 1, v{t0}')
A(f'v_lshl_add_u32 v{t2}, v{t3}, 3, v{t2}')
A(f's_lshl_b32 s{sT0}, s{sWAVE}, 6')
A(f's_add_u32 s{sT0}, s{sT0}, {L_P0S}')
A(f'v_lshl_add_u32 v{vP0A}, v{t2}, 2, s{sT0}')
A(f'v_and_b32 v{t3}, 7, v{vLANE}')
A(f'v_lshlrev_b32 v{vFLO}, 2, v{t3}')
A(f'v_lshlrev_b32 v{t3}, 4, v{t3}')
A(f'v_lshlrev_b32 v{t2}, 5, v{t1}')
A(f'v_xor_b32 v{t3}, v{t3}, v{t2}')
A(f'v_lshrrev_b32 v{vL8}, 3, v{vLANE}')
A(f's_and_b32 s{sT2}, s{sWAVE}, 1')
A(f's_lshl_b32 s{sT2}, s{sT2}, 6')
A(f'v_xor_b32 v{t1}, s{sT2}, v{t3}')
A(f'v_mul_u32_u24 v{vDQ}, 3072, v{vL8}')
A(f'v_add_u32 v{vDQ}, v{vDQ}, v{t1}')
A(f's_mul_i32 s{sSOFF}, s{sWAVE}, {8*3072}')
A(f's_lshl_b32 s{sT0}, s{sJ}, 7')
A(f's_add_u32 s{sSOFF}, s{sSOFF}, s{sT0}')
A(f's_mul_i32 s{sSLDS}, s{sWAVE}, 3072')
vWM = 96
def wmod_load_units(dst, tag, kind):
    U = []
    for n in range(4):
        U.append((f's_add_u32 s{sD0}, s{sWM}, {6144*n}', None, None))
        U.append((f'buffer_load_dwordx4 {vr(dst+4*n,4)}, v{vWMO}, {srd(SWMOD)}, s{sD0} offen', kind, tag))
    return U
l0 = label('Lnt')
R_(f's_sub_u32 s{sT1}, s{sCQ}, 1')
R_(f's_cmp_gt_u32 s{sT1}, 1')
R_(f's_cbranch_scc1 {l0}')
R_(f's_and_b32 s{sD0}, s{sP}, 3')
R_(f's_mul_i32 s{sD0}, s{sD0}, 6144')
R_(f's_add_u32 s{sD0}, s{sD0}, s{sWM}')
E0(f'buffer_load_dword v{vTCH}, v{vWMO}, {srd(SWMOD)}, s{sD0} offen', 'vm0', 'touch')
R_(f'{l0}:')
A(f'v_lshl_add_u32 v{vDW}, v{vL8}, 10, v{t3}')
A(f'v_xor_b32 v{vDW+1}, 64, v{vDW}')
A(f'v_add_u32 v{vDW+1}, 7168, v{vDW+1}')
A(f'v_add_u32 v{vDW+2}, {2*7168}, v{vDW}')
A(f'v_add_u32 v{vDW+3}, {2*7168}, v{vDW+1}')
A(f'v_lshl_add_u32 v{vDWO}, v{vL8}, 10, v{t1}')
A(f's_lshl_b32 s{sWOFF}, s{sWAVE}, 13')
A(f's_add_u32 s{sWOFF}, s{sWOFF}, s{sT0}')
A(f's_lshl_b32 s{sWLDS}, s{sWAVE}, 10')
A(f's_lshl_b32 s{sW4}, s{sWAVE}, 12')
A(f'v_mov_b32 v{vONE}, 0x3f803f80')
A(f'v_bfe_u32 v{vRR}, v{vLANE}, 2, 2')
A(f'v_lshrrev_b32 v{t1}, 1, v{vRR}')
A(f'v_and_b32 v{t2}, 1, v{vG}')
A(f'v_lshl_add_u32 v{vFSW}, v{t2}, 1, v{t1}')
A(f'v_and_b32 v{vC8}, 3, v{vLANE}')
A(f'v_lshlrev_b32 v{vC8}, 3, v{vC8}')
A(f'v_mul_u32_u24 v{t2}, 3072, v{vG}')
A(f'v_lshl_add_u32 v{t2}, v{vRR}, 7, v{t2}')
A(f'v_add_u32 v{t2}, v{t2}, v{vC8}')
A(f'v_xor_b32 v{t1}, s{sWAVE}, v{vFSW}')
A(f'v_lshl_add_u32 v{vTRQA}, v{t1}, 5, v{t2}')
A(f'v_add_u32 v{vTRQ}, {L_B}, v{vTRQA}')
A(f'v_lshl_add_u32 v{t3}, v{vG}, 3, v{vRR}')
A(f'v_lshl_add_u32 v{t2}, v{t3}, 7, v{vC8}')
A(f'v_add_u32 v{t2}, {L_B}, v{t2}')
for c in range(4):
    A(f's_add_u32 s{sT1}, s{sWAVE}, {c}')
    A(f's_and_b32 s{sT1}, s{sT1}, 3')
    A(f'v_xor_b32 v{t1}, s{sT1}, v{vFSW}')
    A(f'v_lshl_add_u32 v{vTRW+c}, v{t1}, 5, v{t2}')
A(f'v_mul_u32_u24 v{t0}, 384, v{t3}')
A(f'v_add_u32 v{t0}, v{t0}, v{vC8}')
A(f'v_add_u32 v{t0}, {L_B}, v{t0}')
A(f's_mul_i32 s{sT1}, s{sWAVE}, 3')
A(f's_mul_i32 s{sHB}, s{sJ}, 12')
A(f's_min_u32 s{sHB}, s{sHB}, 74')
A(f's_mul_i32 s{sS1OFF}, s{sWAVE}, {8*2752}')
A(f's_lshl_b32 s{sT0}, s{sHB}, 5')
A(f's_add_u32 s{sS1OFF}, s{sS1OFF}, s{sT0}')
A(f's_add_u32 s{sHB}, s{sHB}, s{sT1}')
A(f's_lshl_b32 s{sB1O}, s{sHB}, 5')
A(f's_lshl_b32 s{sHB}, s{sHB}, 9')
A(f's_add_u32 s{sHB}, s{sHB}, s{sCB}')
for tt in range(3):
    A(f'v_xor_b32 v{t1}, s{sT1}, v{vFSW}')
    A(f'v_lshl_add_u32 v{vTR1+tt}, v{t1}, 5, v{t0}')
    if tt < 2: A(f's_add_u32 s{sT1}, s{sT1}, 1')
for k in range(3):
    A(f's_and_b32 s{sT0}, s{sRL[k]}, 15')
    A(f's_lshl_b32 s{sT1}, s{sRL[k]}, 10')
    if k == 2:
        A(f's_cmp_lt_u32 s{sWAVE}, 2')
        A(f's_cselect_b32 s{sT1}, s{sT1}, 0x7ff00000')
    A(f'v_xor_b32 v{t0}, s{sT0}, v{vLANE}')
    A(f'v_lshl_add_u32 v{vHS+k}, v{t0}, 4, s{sT1}')
A(f'v_lshlrev_b32 v{t1}, 10, v{vI}')
A(f'v_lshl_add_u32 v{vXO}, v{vG}, 3, v{t1}')
for m in range(4):
    A(f'v_add_u32 v{t0}, {4*m}, v{vG}')
    A(f'v_xor_b32 v{t0}, v{t0}, v{vI}')
    A(f'v_lshl_add_u32 v{vAR+m}, v{t0}, 4, v{t1}')
    A(f'v_add_u32 v{vAR4+m}, 0x10000, v{vAR+m}')
for n in range(3):
    A(f'v_add_u32 v{t0}, {64*n}, v{vLANE}')
    A(f'v_mul_u32_u24 v{t1}, 2731, v{t0}')
    A(f'v_lshrrev_b32 v{t1}, 16, v{t1}')
    A(f'v_mul_u32_u24 v{t2}, 24, v{t1}')
    A(f'v_sub_u32 v{t2}, v{t0}, v{t2}')
    A(f'v_lshlrev_b32 v{t2}, 4, v{t2}')
    A(f'v_bfe_u32 v{t3}, v{t1}, 1, 1')
    A(f'v_lshlrev_b32 v{t3}, 5, v{t3}')
    A(f'v_xor_b32 v{t2}, v{t2}, v{t3}')
    A(f'v_xor_b32 v{t2}, s{sT2}, v{t2}')
    A(f'v_mul_u32_u24 v{t1}, 2752, v{t1}')
    A(f'v_add_u32 v{vD1+n}, v{t1}, v{t2}')
    if n: A(f'v_subrev_u32 v{vD1+n}, {n*1024}, v{vD1+n}')
A(f's_cmp_eq_u32 s{sWAVE}, 3')
A(f's_cselect_b32 s{sT0}, 0x7ffffff0, 0')
A(f'v_or_b32 v{vLAST}, s{sT0}, v{vOFF16}')
A(f's_mov_b32 s{sMSK}, 0x7f800000')
A(f's_cmp_eq_u32 s{sCL}, 0')
A(f's_cselect_b32 s{sMSK}, {hx(f2u(-4e9))}, s{sMSK}')
A(f'v_lshlrev_b32 v{t0}, 2, v{vG}')
for r in range(4):
    A(f'v_add_u32 v{t1}, {r}, v{t0}')
    A(f'v_cmp_le_u32 {sp(4+2*r)}, v{t1}, v{vI}')
A(f'v_and_b32 v{t1}, 1, v{vI}')
A(f'v_cmp_eq_u32 {sp(12)}, 1, v{t1}')
A(f'v_mov_b32 v{t2}, 0xffff')
A(f'v_mov_b32 v{t3}, 0xffff0000')
A(f'v_cndmask_b32 v{t2}, v{t2}, v{t3}, {sp(12)}')
A(f'v_add_u32 v{t1}, v{t1}, v{t0}')
for k in range(2):
    A(f'v_cmp_le_u32 vcc, v{t1}, v{vI}')
    A(f'v_cndmask_b32 v{vM+2+k}, 0, v{t2}, vcc')
    A(f'v_xor_b32 v{vM+k}, v{vM+2+k}, v{t2}')
    if k == 0: A(f'v_add_u32 v{t1}, 2, v{t1}')
A(f'v_lshrrev_b32 v{t0}, 1, v{vG}')
A(f'v_and_b32 v{t1}, 1, v{vG}')
A(f'v_lshlrev_b32 v{t0}, 8, v{t0}')
A(f'v_lshl_add_u32 v{t0}, v{vI}, 4, v{t0}')
A(f'v_lshl_add_u32 v{vPO}, v{t1}, 14, v{t0}')
A(f'v_mul_u32_u24 v{t1}, {HRT}, v{t1}')
A(f'v_add_u32 v{vPH}, v{t1}, v{t0}')
A(f's_lshl_b32 s{sOST}, s{sJ}, 11')
A(f's_lshl_b32 s{sT1}, s{sWAVE}, 9')
A(f's_add_u32 s{sOST}, s{sOST}, s{sT1}')
A(f's_add_u32 s{sOST}, s{sOST}, s{sCB}')
A(f's_add_u32 s{sFL}, s{sCB}, {C_FLAG}')
A(f's_lshl_b32 s{sT0}, s{sJ}, 2')
A(f'v_mov_b32 v{vZ}, s{sT0}')
A(f's_lshl_b32 s{sT0}, s{sJ}, 7')
A(f's_lshl_b32 s{sT1}, s{sWAVE}, 5')
A(f's_add_u32 s{sT0}, s{sT0}, s{sT1}')
A(f's_lshl_b32 s{sXO}, s{sR0}, 10')
A(f's_add_u32 s{sXO}, s{sXO}, s{sT0}')
A(f's_add_u32 s{sT0}, s{sT0}, {L_MODT}')
A(f'v_lshl_add_u32 v{vMC}, v{vG}, 3, s{sT0}')
A(f'v_lshlrev_b32 v{vO8}, 3, v{vLANE}')
A(f's_lshl_b32 s{sSB}, s{sWAVE}, 8')
A(f's_add_u32 s{sSB}, s{sSB}, s{sCB}')
A(f's_add_u32 s{sSB}, s{sSB}, {C_ST}')
A(f'v_mul_u32_u24 v{vSTA}, 6144, v{vG}')
A(f'v_lshl_add_u32 v{vSTA}, v{vI}, 4, v{vSTA}')
A(f'v_lshrrev_b32 v{t0}, 2, v{vI}')
A(f'v_mov_b32 v{vXA}, {L_ONES}')
A(f'v_mov_b32 v{t2}, {L_MODT+4*1024}')
A(f'v_cmp_eq_u32 vcc, 0, v{t0}')
A(f'v_cndmask_b32 v{vXA}, v{vXA}, v{t2}, vcc')
A(f'v_mov_b32 v{t2}, {L_MODT+3*1024}')
A(f'v_cmp_eq_u32 vcc, 1, v{t0}')
A(f'v_cndmask_b32 v{vXA}, v{vXA}, v{t2}, vcc')
A(f'v_lshl_add_u32 v{vXA}, v{vG}, 4, v{vXA}')
A(f's_lshl_b32 s{sGX}, s{sCL}, 6')
A(f's_add_u32 s{sGX}, s{sGX}, {WS_XCC}')
A(f's_lshl_b32 s{sGM}, s{sWAVE}, 11')
A(f's_add_u32 s{sGM}, s{sGM}, {WS_MOD + 4096}')
vTP, vTW2 = 252, 178
A(f'v_bfe_u32 v{t0}, v{vLANE}, 2, 2')
A(f'v_mul_u32_u24 v{t0}, 6144, v{t0}')
A(f'v_and_b32 v{t1}, 3, v{vLANE}')
A(f'v_lshl_add_u32 v{vTP}, v{t1}, 7, v{t0}')
A(f's_mul_i32 s{sT0}, s{sGW}, {11*128}')
A(f'v_min_u32 v{t0}, {10*128}, v{vTA}')
A(f'v_add_u32 v{vTP+1}, s{sT0}, v{t0}')
A(f'v_lshl_add_u32 v{vTP+2}, v{vI}, 1, s{sB1O}')
A(f's_lshl_b32 s{sT0}, s{sJ}, 7')
A(f'v_min_u32 v{t0}, 31, v{vLANE}')
A(f'v_lshl_add_u32 v{vTP+3}, v{t0}, 2, s{sT0}')
A(f's_mul_i32 s{sT0}, s{sIW}, {11*1024}')
A(f's_add_u32 s{sT0}, s{sT0}, {hx(384 - 11*1024)}')
A(f'v_min_u32 v{t0}, 21, v{vLANE}')
A(f'v_lshl_add_u32 v{t0}, v{t0}, 10, s{sT0}')
A(f'v_cmp_lt_u32 vcc, 10, v{vLANE}')
A(f'v_cndmask_b32 v{vTW2}, v{vTP+1}, v{t0}, vcc')
vON = 180
for r in range(4): A(f'v_mov_b32 v{vON+r}, 0x3f803f80')
A(f'v_add_u32 v{t1}, {L_ONES}, v{vOFF16}')
lg(f'ds_write_b128 v{t1}, {vr(vON,4)}', 'ones')
stamp('setup', 1)
l0 = label('Lnw')
R_(f's_cmp_eq_u32 s{sCQ}, 3')
R_(f's_cbranch_scc1 {l0}')
for u in wmod_load_units(vWM, 'wmodA', 'vm0'): emit(u)
R_(f'{l0}:')

def q_lds(n):
    if n == 0: return 65536
    if n <= 5: return L_B + (n-1)*12288
    if n <= 11: return L_A1 + (n-6)*12288
    return L_B + (n-12)*12288
def q_enq(n):
    for p in range(3):
        bg_dma(f's_add_u32 m0, s{sSLDS}, {q_lds(n)}', f's_add_u32 s{sD0}, s{sSOFF}, {n*32*3072}',
               f'buffer_load_dwordx4 v{vDQ}, {srd(SWQKV)}, s{sD0} offen offset:{p*1024} lds', f'q{n}')
def q_read(lo_, hi_, E):
    for n in range(lo_, hi_):
        for p in range(3):
            a = 64*p + 4*n
            base, off = (vTRQA, q_lds(n) - L_A1) if q_lds(n) < L_B else (vTRQ, q_lds(n) - L_B)
            if n == 0: base, off = vT+2, 0
            off += p*1024
            E(f'ds_read_b64_tr_b16 {ar(a,2)}, v{base} offset:{off}', 'lg', f'qr{n}')
            E(f'ds_read_b64_tr_b16 {ar(a+2,2)}, v{base} offset:{off+512}', 'lg', f'qr{n}')
def wo_enq(kk):
    bg_dma(f's_add_u32 m0, s{sWLDS}, {L_A1 + kk*4096}', f's_add_u32 s{sD0}, s{sWOFF}, {kk*32*1024}',
           f'buffer_load_dwordx4 v{vDWO}, {srd(SWO)}, s{sD0} offen lds', 'wo')

for kk in range(opt('xat', 4)): wo_enq(kk)
for k in range(3):
    bg(f'buffer_load_dwordx4 {vr(vXR0+8*k+4,4)}, v{vOFF16}, {srd(SX)}, s{sRG[k]} offen', 'vm', 'x')
for kk in range(opt('xat', 4), 16): wo_enq(kk)
for n in range(6): q_enq(n)
bg_pop(opt('pre0', 2))
wait('E')
stamp('E', 1)
A(f'v_readfirstlane_b32 s{sTAG}, v{vE}')
A(f's_mul_i32 s{sTAG}, s{sTAG}, 1664525')
A(f's_add_u32 s{sTAG}, s{sTAG}, 1013904223')
if TWICE:
    R_(f'v_readlane_b32 s{sT0}, v31, 42'); R_('s_nop 3'); R_(f's_add_u32 s{sTAG}, s{sTAG}, s{sT0}')
unpack(vS, vCV); unpack(vS+2, vCV+1)
for n in range(4): A(f'v_mul_f32 v{88+n}, {hx(f2u(-LOG2E))}, v{vS+n}')
for n in range(4): A(f'v_exp_f32 v{88+n}, v{88+n}')
for n in range(4): A(f'v_add_f32 v{88+n}, 1.0, v{88+n}')
for n in range(4): A(f'v_rcp_f32 v{88+n}, v{88+n}')
for n in range(4): A(f'v_mul_f32 v{vS+n}, v{vS+n}, v{88+n}')
A(f'v_cvt_pk_bf16_f32 v88, v{vS}, v{vS+1}')
A(f'v_cvt_pk_bf16_f32 v89, v{vS+2}, v{vS+3}')
unpack(vS, 88); unpack(vS+2, 89)
def p0_body(E, wm, ac, tp, pk=True):
    for n in range(4):
        for d in range(4): unpack(tp+2*d, wm+4*n+d, E)
        for d in range(4):
            if not pk:
                for h in range(2):
                    E(f'{"v_mul_f32" if n == 0 else "v_fmac_f32"} v{ac+2*d+h}, v{tp+2*d+h}, v{vS+n}')
            elif n == 0: E(f'v_pk_mul_f32 {vr(ac+2*d,2)}, {vr(tp+2*d,2)}, {vr(vS,2)} op_sel_hi:[1,0]')
            else:
                b = vS + (n & 2); o = n & 1
                E(f'v_pk_fma_f32 {vr(ac+2*d,2)}, {vr(tp+2*d,2)}, {vr(b,2)}, {vr(ac+2*d,2)} op_sel:[0,{o},0] op_sel_hi:[1,{o},1]')
    for e in (0, 2, 4, 6): E(f'v_permlane32_swap_b32 v{ac+e}, v{ac+e+1}')
    for e in (0, 2, 4, 6): E(f'v_add_f32 v{ac+e}, v{ac+e}, v{ac+e+1}')
    for e in (0, 4): E(f'v_permlane16_swap_b32 v{ac+e}, v{ac+e+2}')
    for e in (0, 4): E(f'v_add_f32 v{ac+e}, v{ac+e}, v{ac+e+2}')
    for n in (8, 4, 2):
        ror_add(ac, n, E); ror_add(ac+4, n, E)
    E(f'ds_write_b32 v{vP0A}, v{ac}', 'lg', 'p0w')
    E(f'ds_write_b32 v{vP0A}, v{ac+4} offset:16', 'lg', 'p0w')
def p0_publish(tb):
    R_(f'v_lshlrev_b32 v{tb+8}, 1, v{vFLO}')
    R_(f'v_add_u32 v{tb+9}, {L_P0S}, v{tb+8}')
    R_(f's_lshl_b32 s{sT0}, s{sP}, 6')
    for w in range(4): R_(f'ds_read_b64 {vr(tb+2*w,2)}, v{tb+9} offset:{64*w}')
    R_(f's_add_u32 s{sT0}, s{sT0}, {WS_MOD}')
    R_('s_waitcnt lgkmcnt(0)')
    R_(f'v_pk_add_f32 {vr(tb,2)}, {vr(tb,2)}, {vr(tb+2,2)}')
    R_(f'v_pk_add_f32 {vr(tb+4,2)}, {vr(tb+4,2)}, {vr(tb+6,2)}')
    R_(f'v_pk_add_f32 {vr(tb,2)}, {vr(tb,2)}, {vr(tb+4,2)}')
    R_(f'v_cvt_pk_bf16_f32 v{tb}, v{tb}, v{tb+1}')
    R_(f'v_mov_b32 v{tb+1}, s{sTAG}')
    R_(f's_mov_b64 exec, 0xff')
    R_(f'buffer_store_dwordx2 {vr(tb,2)}, v{tb+8}, {srd(SWS)}, s{sT0} offen sc1')
    R_(f's_mov_b64 exec, -1')
l0 = label('Lp0e')
R_(f's_cmp_eq_u32 s{sCQ}, 3')
R_(f's_cbranch_scc1 {l0}')
saveV, saveL, saveB = list(VM.q), list(LG.q), list(BG.q)
wait('wmodA')
bg_on(opt('ip0', 60))
p0_body(A, vWM, 112, 120)
bg_off()
npop = len(saveB) - len(BG.q)
l3 = label('Lp0j')
R_(f's_branch {l3}')
R_(f'{l0}:')
VM.q, LG.q = saveV, saveL
for u in saveB[:npop]: emit(u)
R_(f'{l3}:')
wait_all_lg()
R_('s_barrier')
l0, l1 = label('Lpub0'), label('Lpub0')
R_(f's_cmp_lg_u32 s{sWAVE}, 0')
R_(f's_cbranch_scc1 {l0}')
R_(f's_cmp_eq_u32 s{sCQ}, 3')
R_(f's_cbranch_scc1 {l1}')
p0_publish(vWM)
R_(f'{l1}:')
R_(f'v_mov_b32 v{vT+2}, s{sTAG}')
R_(f'v_mov_b32 v{vT+1}, s{sXCC}')
R_(f'v_lshlrev_b32 v{vT}, 1, v{vZ}')
R_('s_mov_b64 exec, 1')
R_(f'buffer_store_dwordx2 {vr(vT+1,2)}, v{vT}, {srd(SWS)}, s{sGX} offen sc1')
R_('s_mov_b64 exec, -1')
R_(f'{l0}:')
stamp('p0 early done')
bg_pop(opt('qpre', 12))
bg_on(opt('iln', 60))
wait('x')
sa = [88, 89, 90, 91]; sq = [92, 93, 94, 95]
for d in range(4):
    for q in range(3):
        A(f'v_dot2_f32_bf16 v{sa[q]}, v{vXR0+8*q+4+d}, v{vONE}, {"0" if d==0 else "v%d"%sa[q]}')
    for q in range(3):
        A(f'v_dot2_f32_bf16 v{sq[q]}, v{vXR0+8*q+4+d}, v{vXR0+8*q+4+d}, {"0" if d==0 else "v%d"%sq[q]}')
A(f'v_mov_b32 v{sa[3]}, 0'); A(f'v_mov_b32 v{sq[3]}, 0')
U = []
for q in range(3):
    for d in range(4): unpack(vXR0+8*q+2*d, vXR0+8*q+4+d, U.append)
C = []
red32(sa[0], sa[2], C.append); red32(sa[1], sa[3], C.append); red32(sq[0], sq[2], C.append); red32(sq[1], sq[3], C.append)
red16(sa[0], sa[1], C.append); red16(sq[0], sq[1], C.append)
for n in (8, 4, 2, 1):
    ror_add(sa[0], n, C.append); ror_add(sq[0], n, C.append)
C.append(f'v_mul_f32 v{sa[0]}, {hx(f2u(1/512))}, v{sa[0]}')
C.append(f'v_mul_f32 v{sq[0]}, {hx(f2u(1/512))}, v{sq[0]}')
C.append(f'v_fma_f32 v{sq[0]}, -v{sa[0]}, v{sa[0]}, v{sq[0]}')
C.append(f'v_max_f32 v{sq[0]}, 0, v{sq[0]}')
C.append(f'v_add_f32 v{sq[0]}, {hx(f2u(1e-5))}, v{sq[0]}')
C.append(f'v_rsq_f32 v{sq[0]}, v{sq[0]}')
C.append(f'v_mul_f32 v{sa[0]}, -v{sa[0]}, v{sq[0]}')
for q in range(3):
    C.append(f'v_readlane_b32 s{sLN+2*q}, v{sq[0]}, {16*q}')
    C.append(f'v_readlane_b32 s{sLN+2*q+1}, v{sa[0]}, {16*q}')
while C:
    if U: A(U.pop(0))
    A(C.pop(0))
for q in range(3):
    b = vXR0 + 8*q
    for d in range(4):
        A(f'v_pk_fma_f32 {vr(b+2*d,2)}, {vr(b+2*d,2)}, {sp(sLN+2*q)}, {sp(sLN+2*q)} op_sel:[0,0,1] op_sel_hi:[1,0,1]')
bg_off()
stamp('ln done', 1)
vG1R, vXC, vGS = 128, 144, 148
A(f'v_lshlrev_b32 v{vT+5}, 5, v{vLANE}')
A(f'v_lshlrev_b32 v{vT+4}, 1, v{vFLO}')
A(f's_mov_b32 s{sT2}, {WS_MOD}')
def gather1_issue(E):
    for n in range(4):
        E(f'buffer_load_dwordx4 {vr(vG1R+4*n,4)}, v{vT+5}, {srd(SWS)}, s{sT2} offen offset:{(n>>1)*2048 + (n&1)*16} sc1', 'vm', 'g1')
    E(f'buffer_load_dwordx2 {vr(vXC,2)}, v{vT+4}, {srd(SWS)}, s{sGX} offen sc1', 'vm', 'g1')
A(f'v_add_u32 v{vT+2}, 0x10000, v{vTRQA}')
A(f'v_subrev_u32 v{vT+3}, {L_B}, v{vTRW}')
NG = opt('ng', 4)
k_ = max(i_ for i_, u in enumerate(BG.q) if u[2] == f'q{NG}') + 1
rest = list(BG.q)[k_:]
for _ in rest: BG.q.pop()
gather1_issue(bg)
bg(f'buffer_load_dword v{vTCH}, v{vFLO}, {srd(SWS)}, s{sFL} offen sc1', 'vm', 'touch')
bg(f'buffer_load_dword v{vTCH}, v{vFLO}, {srd(SWS)}, s{sFL} offen offset:128 sc1', 'vm', 'touch')
BG.q.extend(rest)
IR = opt('ird', 44)
QS = dict(read=0, enq=6)
def q_pred(m): return 0 if m <= 11 else m - 11
def q_pre(until, landed):
    bg_until(f'q{min(until, QS["enq"]-1)}')
    wait(f'q{landed}', f'qr{QS["read"]-1}')
def q_post(landed, pace=True):
    while QS['enq'] < 16 and q_pred(QS['enq']) < QS['read']:
        q_enq(QS['enq']); QS['enq'] += 1
    if pace: bg_pop(opt('qpp', 2)); bg_on(IR)
    if QS['read'] == 0:
        for k2 in range(16):
            lg(f'ds_read_b64_tr_b16 {ar(192+4*k2,2)}, v{vT+3} offset:{k2*4096}', 'wor')
            lg(f'ds_read_b64_tr_b16 {ar(194+4*k2,2)}, v{vT+3} offset:{k2*4096+512}', 'wor')
    q_read(QS['read'], landed + 1, A)
    QS['read'] = max(QS['read'], landed + 1)
    bg_off()
def qbar(name, until, landed):
    until, landed = opt(name + 'u', until), opt(name + 'l', landed)
    q_pre(until, landed); R_('s_barrier'); stamp(name, 1); q_post(landed)
qbar('B1', 3, 0)
qbar('B2', 5, 1)
bg_until(f'q{opt("gq_", 9)}')
def tag_check(regs, t):
    R_(f'v_xor_b32 v{t}, s{sTAG}, v{regs[0]}')
    for r in regs[1:]:
        R_(f'v_xor_b32 v{t+1}, s{sTAG}, v{r}')
        R_(f'v_or_b32 v{t}, v{t}, v{t+1}')
    R_(f'v_cmp_ne_u32 vcc, 0, v{t}')
def checked(tag, issue, regs):
    wait(tag)
    lp, ld = label('Lg'), label('Lgok')
    tag_check(regs, vT)
    R_(f's_cbranch_vccz {ld}')
    R_(f'{lp}:')
    issue(lambda t, k, g: R_(t))
    R_('s_waitcnt vmcnt(0)')
    tag_check(regs, vT)
    R_(f's_cbranch_vccz {ld}')
    spin_guard(lp, ld)
checked('g1', gather1_issue, [vG1R+1+2*k for k in range(9)])
stamp('mod arrived')
for d in range(4): unpack(vGS+2*d, vG1R+8+2*d)
for d in range(4): A(f'v_pk_add_f32 {vr(vGS+2*d,2)}, {vr(vGS+2*d,2)}, 1.0 op_sel_hi:[1,0]')
for d in range(4):
    A(f'v_cvt_pk_bf16_f32 v{vG1R+8+2*d}, v{vGS+2*d}, v{vGS+2*d+1}')
    unpack(vGS+8+2*d, vG1R+2*d)
for d in range(4): unpack(vGS+2*d, vG1R+8+2*d)
A(f's_add_u32 s{sT2}, s{sCB}, {C_A}')
for q in range(3):
    b = vXR0 + 8*q
    for d in range(4): A(f'v_pk_fma_f32 {vr(b+2*d,2)}, {vr(b+2*d,2)}, {vr(vGS+2*d,2)}, {vr(vGS+8+2*d,2)}')
    for d in range(4): A(f'v_cvt_pk_bf16_f32 v{b+d}, v{b+2*d}, v{b+2*d+1}')
    vm(f'buffer_store_dwordx4 {vr(b,4)}, v{vHS+q}, {srd(SWS)}, s{sT2} offen sc1', 'st')
R_(f'v_cmp_ne_u32 vcc, s{sXCC}, v{vXC}')
R_(f's_cmp_eq_u64 vcc, 0')
R_(f's_cselect_b32 s{sLOCAL}, {0 if FORCE_GLOBAL else 1}, 0')
vG2 = 96
def gather2_issue(E):
    for n in range(2):
        E(f'buffer_load_dwordx4 {vr(vG2+4*n,4)}, v{vOFF16}, {srd(SWS)}, s{sGM} offen offset:{n*1024} sc1', 'vm', 'g2')
gather2_issue(E0)
qbar('B3', 11, 5)
checked('g2', gather2_issue, [vG2+1, vG2+3, vG2+5, vG2+7])
R_(f's_cmp_eq_u32 s{sWAVE}, 2')
R_(f's_cselect_b32 s{sT1}, 1.0, 0')
for k in range(4):
    unpack(vT+2, vG2+2*k)
    A(f'v_add_f32 v{vT+2}, s{sT1}, v{vT+2}')
    A(f'v_add_f32 v{vT+3}, s{sT1}, v{vT+3}')
    A(f'v_cvt_pk_bf16_f32 v{vG2+8+k}, v{vT+2}, v{vT+3}')
A(f's_add_u32 s{sT0}, s{sWLDS}, {L_MODT + 2048}')
A(f'v_add_u32 v{vT+4}, s{sT0}, v{vO8}')
for n in range(2): lg(f'ds_write_b64 v{vT+4}, {vr(vG2+8+2*n,2)} offset:{n*512}', 'modw')
wait(None, 'modw')
q_pre(opt('B4u', 10), opt('B4l', 7))

def code_touch(E):
    E(f's_and_b32 s{sT0}, s{sIW}, 31')
    E(f's_mul_i32 s{sT0}, s{sT0}, {CLW*128}')
    E(f'v_min_u32 v{vT+1}, {(CLW-1)*128}, v{vTA}')
    E(f'v_add_u32 v{vT+1}, s{sT0}, v{vT+1}')
    E(f'global_load_dword v{vTCH}, v{vT+1}, s[0:1]', 'vm', 'touch')
def flag(h, tag, E=E0, ct=False):
    l, l2 = label('Lpub'), label('Lpub')
    R_(f's_cmp_lg_u32 s{sWAVE}, 0')
    R_(f's_cbranch_scc1 {l}')
    R_(f's_add_u32 s{sT1}, s{sTAG}, {h+1}')
    R_(f'v_mov_b32 v{vT}, s{sT1}')
    R_('s_mov_b64 exec, 1')
    R_(f's_cmp_eq_u32 s{sLOCAL}, 1')
    R_(f's_cbranch_scc1 {l2}')
    R_(f'buffer_store_dword v{vT}, v{vZ}, {srd(SWS)}, s{sFL} offen offset:{32*h} sc1')
    R_(f's_mov_b64 exec, -1')
    R_(f's_branch {l}')
    R_(f'{l2}:')
    R_(f'buffer_store_dword v{vT}, v{vZ}, {srd(SWS)}, s{sFL} offen offset:{32*h}')
    R_('s_mov_b64 exec, -1')
    R_(f'{l}:')
    R_(f'; pub {h}')
    if opt('pt', 0):
        for t in STORES[tag]: E(t, 'vm', 'touch')
    STORES[tag] = []
    if ct and opt('ct', 1): code_touch(E0)
def publish(h, tag='st', ltag=None, ct=True):
    wait(tag, ltag)
    R_('s_barrier')
    flag(h, tag, E0, ct)
def poll_issue(h, E=E0):
    E(f'buffer_load_dword v{vFLV}, v{vFLO}, {srd(SWS)}, s{sFL} offen offset:{32*h} sc1', 'vm', 'poll')
def poll_check(h):
    R_(f's_add_u32 s{sT1}, s{sTAG}, {h+1}')
    wait('poll')
    lp, ld = label('Lw'), label('Lwok')
    R_(f'v_cmp_ne_u32 vcc, s{sT1}, v{vFLV}')
    R_(f's_cbranch_vccz {ld}')
    R_(f'{lp}:')
    R_(f'buffer_load_dword v{vFLV}, v{vFLO}, {srd(SWS)}, s{sFL} offen offset:{32*h} sc1')
    R_('s_waitcnt vmcnt(0)')
    R_(f'v_cmp_ne_u32 vcc, s{sT1}, v{vFLV}')
    R_(f's_cbranch_vccz {ld}')
    spin_guard(lp, ld)
def await_(h):
    poll_issue(h); poll_check(h)
sQ = sLN
def tile_enq(rt, tag):
    for j in range(4):
        bg_dma(f's_add_u32 m0, s{sW4}, {L_A1 + rt*16384}', f's_add_u32 s{sD0}, s{sQ}, {rt*16384}',
               f'buffer_load_dwordx4 v{vOFF16}, {srd(SWS)}, s{sD0} offen offset:{j*1024} sc1 lds', f'{tag}{rt}')
A(f's_add_u32 s{sQ}, s{sT2}, s{sW4}')
publish(0)
stamp('h published')
q_post(opt('B4l', 7))
bg_until(f'q{opt("pq", 14)}')
poll_issue(0)
qbar('B5', 14, 11)
bg_flush()
vGA, vGB, vGP, vSP, vGG = 224, 228, 232, 236, 240
A(f'v_and_b32 v{vT+5}, {hx(~8)}, v{vMC}')
A(f'v_add_u32 v{vT+1}, {L_MODT}, v{vOFF16}')
lg(f'ds_read_b128 {vr(144,4)}, v{vT+1} offset:{4*1024}', 'c')
lg(f'ds_read_b128 {vr(148,4)}, v{vT+1} offset:{3*1024}', 'c')
lg(f'ds_read_b64 {vr(vGA+2,2)}, v{vMC} offset:{2*1024}', 'c')
lg(f'ds_read_b64 {vr(vGB+2,2)}, v{vMC} offset:{4*1024}', 'c')
lg(f'ds_read_b128 {vr(vGP,4)}, v{vT+5} offset:{4*1024}', 'c')
lg(f'ds_read_b128 {vr(vSP,4)}, v{vT+5} offset:{3*1024}', 'c')
wait(None, 'c')
q5 = [244, 245, 246, 247, 248]
for d in range(4):
    c = lambda r: '0' if d == 0 else f'v{r}'
    A(f'v_dot2_f32_bf16 v{q5[0]}, v{144+d}, v{vONE}, {c(q5[0])}')
    A(f'v_dot2_f32_bf16 v{q5[1]}, v{144+d}, v{144+d}, {c(q5[1])}')
    A(f'v_dot2_f32_bf16 v{q5[2]}, v{148+d}, v{vONE}, {c(q5[2])}')
    A(f'v_dot2_f32_bf16 v{q5[3]}, v{148+d}, v{148+d}, {c(q5[3])}')
    A(f'v_dot2_f32_bf16 v{q5[4]}, v{144+d}, v{148+d}, {c(q5[4])}')
L_ = lo
for b in (vGA, vGB):
    unpack(b, b+2, lo); unpack(b+2, b+3, lo)
red32(q5[0], q5[2], L_); red32(q5[1], q5[3], L_)
L_(f'v_mov_b32 v{q5[4]+1}, v{q5[4]}'); lo_gap(1)
red16(q5[0], q5[1], L_); red32(q5[4], q5[4]+1, L_)
L_(f'v_mov_b32 v{q5[4]+1}, v{q5[4]}'); lo_gap(1); red16(q5[4], q5[4]+1, L_)
for n in (8, 4, 2, 1):
    lo_gap(1); ror_add(q5[0], n, L_); ror_add(q5[4], n, L_)
L_(f'v_mul_f32 v{q5[0]}, {hx(f2u(1/512))}, v{q5[0]}')
L_(f'v_mul_f32 v{q5[4]}, {hx(f2u(1/512))}, v{q5[4]}')
for k in range(4): L_(f'v_readlane_b32 s{sG+k}, v{q5[0]}, {16*k}')
L_(f'v_readlane_b32 s{sG+4}, v{q5[4]}, 0')

poll_check(0)
stamp('hop h seen')
QL = opt('B6l', 13)
q_pre(15, QL); R_('s_barrier')
assert QS['read'] >= 12 and QS['enq'] == 16
vWB, vLA = 224, 240
def touch_batch():
    bg(f'buffer_load_dword v{vTCH}, v{vTP+1}, {srd(SW1)}, 0 offen', 'vm', 'touch')
    for tt in range(3): bg(f'global_load_ushort v{vBI+tt}, v{vTP+2}, {sp(sB1)} offset:{32*tt}', 'vm', 'b1')
    bg(f's_mov_b32 m0, {L_B2}')
    bg(f'global_load_lds_dword v{vTP+3}, {sp(sB2)}', 'vm', 'b2')
    bg(f'buffer_load_dword v{vTCH}, v{vZ}, {srd(SOUT)}, s{sXO} offen', 'vm', 'touch')
    BG.m0 = None
def w2_touch():
    bg(f'buffer_load_dword v{vTCH}, v{vTW2}, {srd(SW2)}, 0 offen', 'vm', 'touch')
TPOS = opt('tpos', 3)
for rt in range(TPOS): tile_enq(rt, 'a')
touch_batch()
if opt('w2t', 1) == 0: w2_touch()
for rt in range(TPOS, 5): tile_enq(rt, 'a')
bg_pop(opt('hpre', 14))
q_read(QS['read'], QL + 1, A)

NA = min(2, opt('na', 2))
def w1_lds(n):
    if n == 15: return 65536
    if 5 <= n < 5 + NA: return 32768 + (n - 5)*12288
    return L_B + ((n if n < 5 else n - NA) % 5)*12288
def w1_enq(*ns):
    for n in ns:
        for p in range(3):
            bg_dma(f's_add_u32 m0, s{sSLDS}, {w1_lds(n)}', f's_add_u32 s{sD0}, s{sS1OFF}, {n*32*2752}',
                   f'buffer_load_dwordx4 v{vD1+p}, {srd(SW1)}, s{sD0} offen offset:{p*1024} lds', f'w{n}')
vTR1B = vAR4; vTR1C = vAR
W1ORD = list(range(5 + NA)) + [15] + list(range(5 + NA, 15))
class W1:
    enq = 0; landed = 0; read = 0; done = 0; gate15 = False; afree = 0
def w1_can():
    if W1.enq >= 16: return False
    n = W1ORD[W1.enq]
    if n == 15: return W1.gate15
    if n < 5: return True
    if n < 5 + NA: return w1_lds(n) + 12288 <= W1.afree
    prev = n - NA - 5 if n - NA - 5 < 5 else n - 5
    return W1ORD.index(prev) < W1.done
def w1_more(k):
    for _ in range(k):
        if not w1_can(): return
        w1_enq(W1ORD[W1.enq]); W1.enq += 1
def w1_pre(back):
    tgt = max(W1.landed, W1.enq - back)
    if tgt > W1.landed: wait(f'w{W1ORD[tgt-1]}')
    if W1.read > W1.done: wait(None, f'wr{W1ORD[W1.read-1]}')
    W1.nl, W1.nd = tgt, W1.read
def w1_post():
    W1.landed, W1.done = W1.nl, W1.nd
def w1_bar(back):
    w1_pre(back); R_('s_barrier'); w1_post()
def w1_issued():
    return W1.enq - (len([u for u in BG.q if u[1] and u[2][0] == 'w']) + 2) // 3
def w1_auto(margin, least=0):
    w1_pre(W1.enq - max(W1.landed, w1_issued() - margin, least))
def xbar(name, margin, least=0, more=16):
    w1_auto(opt(name, margin), least); R_('s_barrier'); w1_post(); w1_more(more)
def w1_reads(E):
    R_(f'; w1 reads {W1ORD[W1.read:W1.landed]}')
    for n in W1ORD[W1.read:W1.landed]:
        for tt in range(3):
            a = 64*tt + 4*n
            base, off = (vTR1+tt, w1_lds(n) - L_B) if w1_lds(n) >= L_B else (vTR1B+tt, w1_lds(n) - 8192)
            if off < 0: base, off = vTR1C+tt, w1_lds(n)
            E(f'ds_read_b64_tr_b16 {ar(a,2)}, v{base} offset:{off}', 'lg', f'wr{n}')
            E(f'ds_read_b64_tr_b16 {ar(a+2,2)}, v{base} offset:{off+1536}', 'lg', f'wr{n}')
    W1.read = W1.landed

def accK(rt): return 96 + 12*rt
def accV(rt): return 96 + 12*rt + 4
def accQ(rt): return 96 + 12*rt + 8
vKF, vVF, vQF, vOP = 156, 166, 176, 216
def tmp(t, k): return 184 + 16*(t & 1) + k
CS = 0.25 * LOG2E
sCS = sLN+1
A(f's_mov_b32 s{sCS}, {hx(f2u(CS))}')
sOS2 = sLN+2
A(f's_add_u32 s{sOS2}, s{sOST}, 32768')
def attn(t, E, gap):
    attn_a(t, E, gap, True)
    if t: attn_b(t, E, gap, False)
def attn_a(t, E, gap, withv):
    gap(3)
    for h in range(2): E(f'v_cvt_pk_bf16_f32 v{vKF+2*t+h}, v{accK(t)+2*h}, v{accK(t)+2*h+1}')
    if t:
        for h in range(2): E(f'v_cvt_pk_bf16_f32 v{vQF+h}, v{accQ(t)+2*h}, v{accQ(t)+2*h+1}')
    if withv:
        for h in range(2): E(f'v_cvt_pk_bf16_f32 v{vVF+2*t+h}, v{accV(t)+2*h}, v{accV(t)+2*h+1}')
    else: gap(1)
    if not t: return
    E(f'v_mfma_f32_16x16x16_bf16 {vr(tmp(t,0),4)}, {vr(vKF+2*(t-1),2)}, {vr(vQF,2)}, 0')
    E(f'v_mfma_f32_16x16x16_bf16 {vr(tmp(t,4),4)}, {vr(vKF+2*t,2)}, {vr(vQF,2)}, 0')
    gap(4)
    if t == 1:
        for r in range(4): E(f'v_min_f32 v{tmp(t,r)}, s{sMSK}, v{tmp(t,r)}')
    for r in range(4): E(f'v_cndmask_b32 v{tmp(t,r)}, v{tmp(t,r)}, v{tmp(t,4+r)}, {sp(4+2*r)}')
    E(f'v_cndmask_b32 v{tmp(t,0)}, v{tmp(t,0)}, v{tmp(t,1)}, {sp(12)}')
    E(f'v_cndmask_b32 v{tmp(t,1)}, v{tmp(t,2)}, v{tmp(t,3)}, {sp(12)}')
    E(f'v_max_f32 v{tmp(t,2)}, v{tmp(t,0)}, v{tmp(t,1)}')
    for op in ('v_permlane16_swap_b32', 'v_permlane32_swap_b32'):
        E(f'v_mov_b32 v{tmp(t,3)}, v{tmp(t,2)}')
        gap(1)
        E(f'{op} v{tmp(t,2)}, v{tmp(t,3)}')
        E(f'v_max_f32 v{tmp(t,2)}, v{tmp(t,2)}, v{tmp(t,3)}')
    E(f'v_mul_f32 v{tmp(t,2)}, {hx(f2u(-CS))}, v{tmp(t,2)}')
    E(f'v_fma_f32 v{tmp(t,0)}, v{tmp(t,0)}, s{sCS}, v{tmp(t,2)}')
    E(f'v_fma_f32 v{tmp(t,1)}, v{tmp(t,1)}, s{sCS}, v{tmp(t,2)}')
    E(f'v_exp_f32 v{tmp(t,0)}, v{tmp(t,0)}')
    E(f'v_exp_f32 v{tmp(t,1)}, v{tmp(t,1)}')
    E(f'v_cvt_pk_bf16_f32 v{tmp(t,0)}, v{tmp(t,0)}, v{tmp(t,0)}')
    E(f'v_cvt_pk_bf16_f32 v{tmp(t,1)}, v{tmp(t,1)}, v{tmp(t,1)}')
    E(f'v_and_b32 v{tmp(t,4)}, v{tmp(t,0)}, v{vM}')
    E(f'v_and_b32 v{tmp(t,5)}, v{tmp(t,1)}, v{vM+1}')
    E(f'v_and_b32 v{tmp(t,6)}, v{tmp(t,0)}, v{vM+2}')
    E(f'v_and_b32 v{tmp(t,7)}, v{tmp(t,1)}, v{vM+3}')
    gap(1)
    E(f'v_mfma_f32_16x16x32_bf16 {vr(tmp(t,12),4)}, {vr(vON,4)}, {vr(tmp(t,4),4)}, 0')
def attn_b(t, E, gap, withv):
    if withv:
        for h in range(2): E(f'v_cvt_pk_bf16_f32 v{vVF+2*t+h}, v{accV(t)+2*h}, v{accV(t)+2*h+1}')
    E(f'v_mfma_f32_16x16x32_bf16 {vr(tmp(t,8),4)}, {vr(vVF+2*(t-1),4)}, {vr(tmp(t,4),4)}, 0')
    gap(4)
    E(f'v_rcp_f32 v{tmp(t,12)}, v{tmp(t,12)}')
    for r in range(4): E(f'v_mul_f32 v{tmp(t,8+r)}, v{tmp(t,8+r)}, v{tmp(t,12)}')
    p, hf = (t-1) >> 1, (t-1) & 1
    o = vOP + 4*p
    for h in range(2): E(f'v_cvt_pk_bf16_f32 v{o+2*hf+h}, v{tmp(t,8+2*h)}, v{tmp(t,9+2*h)}')
    if hf:
        gap(1)
        E(f'v_permlane16_swap_b32 v{o}, v{o+2}')
        E(f'v_permlane16_swap_b32 v{o+1}, v{o+3}')
        E(f'buffer_store_dwordx4 {vr(o,4)}, v{vPO}, {srd(SWS)}, s{sOS2 if p else sOST} offen sc1', 'vm', 'stB' if p else 'stA')
bufs = [64 + 4*k for k in range(8)]
NB = 8
seq = [(rt, ks) for rt in range(6) for ks in range(16)]
def a1_read(n, E):
    rt, ks = seq[n]
    rt = min(rt, 4)
    base = vAR4 if rt == 4 else vAR
    E(f'ds_read_b128 {vr(bufs[n%NB],4)}, v{base+(ks&3)} offset:{(rt%4)*16384 + (ks>>2)*256}', 'lg', f'af{n}')
nread = 0; vis = 1
EARLY = opt('early', 8)
vXR = 240
for n, (rt, ks) in enumerate(seq):
    if n == 0:
        wait('a0'); R_('s_barrier')
        stamp('gemm start')
        if DBG:
            R_(f's_memtime {sp(sTM)}'); wait_all_lg(); R_(f'v_writelane_b32 v31, s{sTM}, 54')
        while nread < NB - 1: a1_read(nread, E0); nread += 1
        q_read(QL + 1, 16, mid)
        bg_on(opt('ig1', 64))
    if ks == 16 - EARLY and rt < 4:
        if rt == 0:
            wait('a1', 'qr15'); R_('s_barrier'); vis = 2
            w1_more(opt('w1x', 2))
            bg_delay(opt('hold', 600), opt('ig2', 128))
            w1_more(5)
            if opt('w2t', 1) == 1: w2_touch()
        if rt == 1:
            wait('a2'); R_('s_barrier'); vis = 3
        if rt == 2:
            wait('a3'); R_('s_barrier'); vis = 4
        if rt == 3:
            wait('a4'); R_('s_barrier'); vis = 6
            pass
    if n == opt('x1', 78):
        wait('stA'); R_('s_barrier'); flag(1, 'stA', hi)
        W1.afree = 65536; w1_more(5)
    if n == opt('x2', 84): poll_issue(1, hi)
    if n == 66:
        for r2 in range(4):
            lo(f's_add_u32 s{sT0}, s{sXO}, {r2*16384}')
            lo(f'buffer_load_dwordx2 {vr(vXR+2*r2,2)}, v{vXO}, {srd(SX)}, s{sT0} offen', 'vm', 'xr')
    if ks == 0 and rt > 0:
        stamp(f'p1rt{rt}', 2)
        if rt < 5: attn(rt-1, lo, lo_gap)
        else:
            lo_flush(); attn_a(4, lo, lo_gap, False)
    if rt == 0: wait(None, f'qr{ks}')
    if nread < min(n + NB, len(seq)) and seq[nread][0] < vis:
        a1_read(nread, hi); nread += 1
    assert nread > n + (1 - n % 2)
    if n % 2 == 0: wait(None, f'af{n+1}')
    g3 = 2 if n % 2 == 0 else 1
    f = vr(bufs[n%NB], 4)
    c = lambda r: '0' if ks == 0 else vr(r, 4)
    if rt == 5:
        mfma(f'v_mfma_f32_16x16x32_bf16 {vr(accV(4),4)}, {f}, {ar(128+4*ks,4)}, {c(accV(4))}', 3)
        continue
    mfma(f'v_mfma_f32_16x16x32_bf16 {vr(accK(rt),4)}, {ar(64+4*ks,4)}, {f}, {c(accK(rt))}', 2 + (opt('xs', 1) if rt in (2, 3) else 0))
    if rt < 4:
        mfma(f'v_mfma_f32_16x16x32_bf16 {vr(accV(rt),4)}, {f}, {ar(128+4*ks,4)}, {c(accV(rt))}', 2 if rt else g3)
    if rt > 0:
        mfma(f'v_mfma_f32_16x16x32_bf16 {vr(accQ(rt),4)}, {ar(4*ks,4)}, {f}, {c(accQ(rt))}', g3)
stamp('P1 gemm done')
bg_off()
lo_flush()
attn_b(4, A, lambda k: None, True)
stamp('attn done')
A(f's_add_u32 s{sQ}, s{sCB}, s{sW4}')
poll_check(1)
stamp('oA seen')
bg_front(lambda: (tile_enq(0, 'o'), tile_enq(1, 'o')))
bg_until('o0')
for tt in range(3): A(f'v_subrev_u32 v{vTR1B+tt}, {L_B - 8192}, v{vTR1+tt}')
W1.gate15 = True
xbar('m1', 1)
bg_on(opt('i1', 30))
w1_reads(A)
bg_until('o1')
vX1 = 112
wait('xr')
for r2 in range(4):
    unpack(vX1+4*r2, vXR+2*r2); unpack(vX1+4*r2+2, vXR+2*r2+1)
bg_off()
wait('stB'); xbar('m2', 2); flag(2, 'stB', E0, True)
stamp('oB published')
vAC2, vXP, vUF, vUP = 96, 144, 152, 160
sUS = [sLN+1, sLN+2]
A(f's_add_u32 s{sUS[0]}, s{sOST}, {C_U}')
A(f's_add_u32 s{sUS[1]}, s{sOST}, {C_U + 32768}')
def epi2(p, E, gap, pk):
    gap(5)
    for rt in (2*p, 2*p+1):
        x, a = vX1+4*rt, vAC2+4*rt
        xp, up, uf = vXP+2*rt, vUP+2*rt, vUF+4*(rt&1)
        if pk:
            for h in range(2): E(f'v_pk_fma_f32 {vr(x+2*h,2)}, {vr(vGA+2*h,2)}, {vr(a+2*h,2)}, {vr(x+2*h,2)}')
        else:
            for e in range(4): E(f'v_fmac_f32 v{x+e}, v{vGA+e}, v{a+e}')
        for h in range(2): E(f'v_cvt_pk_bf16_f32 v{xp+h}, v{x+2*h}, v{x+2*h+1}')
        for h in range(2): unpack(x+2*h, xp+h, E)
        if pk:
            for h in range(2): E(f'v_pk_mul_f32 {vr(uf+2*h,2)}, {vr(x+2*h,2)}, {vr(vGB+2*h,2)}')
        else:
            for e in range(4): E(f'v_mul_f32 v{uf+e}, v{x+e}, v{vGB+e}')
        for h in range(2): E(f'v_cvt_pk_bf16_f32 v{up+h}, v{uf+2*h}, v{uf+2*h+1}')
    o = vUP + 4*p
    gap(1)
    E(f'v_permlane16_swap_b32 v{o}, v{o+2}')
    E(f'v_permlane16_swap_b32 v{o+1}, v{o+3}')
    E(f'buffer_store_dwordx4 {vr(o,4)}, v{vPO}, {srd(SWS)}, s{sUS[p]} offen sc1', 'vm', 'stB' if p else 'stA')
seq = [(rt, ks) for rt in range(4) for ks in range(16)]
def f_read(n, E, tag):
    rt, ks = seq[n]
    E(f'ds_read_b128 {vr(bufs[n%NB],4)}, v{vOFF16} offset:{L_A1 + rt*16384 + ks*1024}', 'lg', f'{tag}{n}')
S = [[168+k for k in range(6)], [176+k for k in range(6)]]
def stat_dots(p):
    x, u = vXP + 4*p, vUP + 4*p
    A(f'v_permlane16_swap_b32 v{x}, v{x+2}')
    A(f'v_permlane16_swap_b32 v{x+1}, v{x+3}')
    for d in range(4):
        c = lambda r: '0' if d == 0 else f'v{r}'
        A(f'v_dot2_f32_bf16 v{S[p][2]}, v{u+d}, v{vONE}, {c(S[p][2])}')
        A(f'v_dot2_f32_bf16 v{S[p][3]}, v{u+d}, v{u+d}, {c(S[p][3])}')
        A(f'v_dot2_f32_bf16 v{S[p][4]}, v{u+d}, v{vGP+d}, {c(S[p][4])}')
        A(f'v_dot2_f32_bf16 v{S[p][5]}, v{u+d}, v{vSP+d}, {c(S[p][5])}')
        A(f'v_dot2_f32_bf16 v{S[p][0]}, v{x+d}, v{vONE}, {c(S[p][0])}')
        A(f'v_dot2_f32_bf16 v{S[p][1]}, v{x+d}, v{x+d}, {c(S[p][1])}')
vCO, vCB, vCS, vSTT, vAC3, vG1, vHP = 128, 140, 96, 144, 168, 216, 228
xdone = [0]
def extra_tile(upto, regs):
    upto = min(upto, W1.read, xdone[0] + len(regs))
    kss = W1ORD[xdone[0]:upto]
    for ks, r in zip(kss, regs): E0(f'ds_read_b128 {vr(r,4)}, v{vXA} offset:{ks*64}', 'lg', f'xf{ks}')
    for ks, r in zip(kss, regs):
        wait(None, f'wr{ks}'); wait(None, f'xf{ks}')
        for tt in range(3):
            acc = vr(vCO+4*tt, 4)
            mfma(f'v_mfma_f32_16x16x32_bf16 {acc}, {vr(r,4)}, {ar(64*tt+4*ks,4)}, {"0" if xdone[0] == 0 else acc}')
        xdone[0] += 1
XR1 = [184 + 4*k for k in range(8)]
sW2L, sSB2, sSTS = sLN+6, sLN+4, sLN+7
vTR2 = vAR
def late_consts(L_):
    L_(f's_mul_i32 s{sWOFF}, s{sWAVE}, {11*32*1024}')
    L_(f's_lshl_b32 s{sT0}, s{sJ}, 7')
    L_(f's_add_u32 s{sWOFF}, s{sWOFF}, s{sT0}')
    L_(f's_lshr_b32 s{sT0}, s{sWAVE}, 1')
    L_(f's_and_b32 s{sT0}, s{sT0}, s{sWAVE}')
    L_(f's_lshl_b32 s{sT0}, s{sT0}, 15')
    L_(f's_sub_u32 s{sW2L}, s{sWOFF}, s{sT0}')
    L_(f's_add_u32 s{sW2L}, s{sW2L}, {10*32*1024}')
    L_(f's_add_u32 s{sSB2}, s{sSB}, 3072')
    for c in range(4): L_(f'v_add_u32 v{vTRW+c}, s{sW4}, v{vTRW+c}')
    for c in range(4): L_(f'v_subrev_u32 v{vTR2+c}, {L_B - 16384}, v{vTRW+c}')
    L_(f's_mul_i32 s{sT0}, s{sWAVE}, 1536')
    L_(f's_add_u32 s{sT0}, s{sT0}, {L_ST1}')
    L_(f'v_add_u32 v{vT+4}, s{sT0}, v{vO8}')
    L_(f's_min_u32 s{sT0}, s{sWAVE}, 2')
    L_(f's_lshl_b32 s{sSTS}, s{sT0}, 10')
    L_(f's_lshl_b32 s{sT0}, s{sT0}, 9')
    L_(f's_add_u32 s{sT0}, s{sT0}, {L_ST1}')
    L_(f'v_add_u32 v{vT+5}, s{sT0}, v{vO8}')
    L_(f's_mul_i32 s{sT0}, s{sJ}, 3072')
    L_(f's_add_u32 s{sSTS}, s{sSTS}, s{sT0}')
    L_(f's_add_u32 s{sSTS}, s{sSTS}, s{sCB}')
    L_(f's_add_u32 s{sSTS}, s{sSTS}, {C_ST}')
def p2_half(p, hook):
    n0 = 32*p
    nread = n0; lim = n0 + 16
    wait(f'o{2*p}'); R_('s_barrier')
    while nread < n0 + NB - 1: f_read(nread, E0, 'of'); nread += 1
    BG.second = True
    for n in range(n0, n0 + 32):
        rt, ks = seq[n]
        hook(n - n0)
        if n - n0 == opt('obk', 8):
            wait(f'o{2*p+1}'); R_('s_barrier'); lim = n0 + 32
        if nread < min(lim, n + NB): f_read(nread, hi, 'of'); nread += 1
        if n % 2 == 0: wait(None, f'of{n+1}')
        acc = vr(vAC2+4*rt, 4)
        mfma(f'v_mfma_f32_16x16x32_bf16 {acc}, {ar(192+4*ks,4)}, {vr(bufs[n%NB],4)}, {"0" if ks==0 else acc}', 2 if n % 2 == 0 else 1)
    BG.second = False
bg_pop(opt('p1', 3))
bg_on(opt('ip2', 100))
late_consts(lo)
def hookA(k):
    if k == opt('pob', 24): bg_front(lambda: poll_issue(2, bg)); bg_until('poll')
p2_half(0, hookA)
bg_off()
stamp('P2A done')
epi2(0, A, lambda k: None, True)
lo_flush()
bg_until(f'w{W1ORD[4+NA]}')
xbar('m3', 2, 5 + NA)
w1_reads(A)
le = label('Lnoep')
if TWICE:
    R_(f'v_readlane_b32 s{sT0}, v31, 42'); R_('s_nop 3'); R_(f's_cmp_eq_u32 s{sT0}, 0'); R_(f's_cbranch_scc1 {le}')
R_(f's_cmp_lg_u32 s2, 0')
R_(f's_cbranch_scc1 {le}')
R_(f's_cmp_lg_u32 s{sWAVE}, 3')
R_(f's_cbranch_scc1 {le}')
R_(f's_mov_b32 s{sT0}, {WS_XCC}')
lp, ld = label('Lep'), label('Lepok')
R_(f'{lp}:')
R_(f'buffer_load_dwordx4 {vr(184,4)}, v{vOFF16}, {srd(SWS)}, s{sT0} offen sc1')
R_(f'buffer_load_dwordx4 {vr(188,4)}, v{vOFF16}, {srd(SWS)}, s{sT0} offen offset:1024 sc1')
R_('s_waitcnt vmcnt(0)')
tag_check([185, 187, 189, 191], vT)
R_(f's_cbranch_vccz {ld}')
spin_guard(lp, ld)
R_(f'v_mov_b32 v{vT+1}, s{sTAG}')
R_(f'v_mov_b32 v{vT+2}, 0')
R_('s_mov_b64 exec, 1')
R_(f'buffer_store_dword v{vT+1}, v{vT+2}, {srd(SWS)}, 0 offen sc1')
R_('s_mov_b64 exec, -1')
R_(f'{le}:')
poll_check(2)
stamp('oB seen')
xbar('m4', 2)
assert W1.done >= 5 + NA
bg_front(lambda: (tile_enq(2, 'o'), tile_enq(3, 'o')))
bg_until('o2')
bg_on(opt('i2', 40))
stat_dots(0)
w1_reads(A)
bg_until('o3')
extra_tile(opt('xa', 4), XR1)
bg_off()
wait('stA'); xbar('m5', 2); flag(3, 'stA', E0)
stamp('uA published')
bg_pop(opt('p2', 3))
bg_on(opt('ip2', 100))
def hookB(k):
    if k == opt('pua', 28): bg_front(lambda: poll_issue(3, bg)); bg_until('poll')
p2_half(1, hookB)
bg_off()
stamp('P2 gemm done')
epi2(1, A, lambda k: None, True)
A(f's_add_u32 s{sQ}, s{sQ}, {C_U}')
stat_dots(1)
for k in range(6): A(f'v_permlane32_swap_b32 v{S[0][k]}, v{S[1][k]}')
for k in range(6): A(f'v_add_f32 v{S[0][k]}, v{S[0][k]}, v{S[1][k]}')
for k in range(3): lg(f'ds_write_b64 v{vT+4}, {vr(S[0][2*k],2)} offset:{512*k}', 'sw')
poll_check(3)
stamp('uA seen')
bg_front(lambda: (tile_enq(0, 'u'), tile_enq(1, 'u')))
bg_until('u0')
wait(None, 'sw')
xbar('m6', 2)
bg_on(opt('i3', 30))
for w in range(4): lg(f'ds_read_b64 {vr(248+2*w,2)}, v{vT+5} offset:{1536*w}', 'sr')
w1_reads(A)
bg_until('u1')
wait(None, 'sr')
A(f'v_pk_add_f32 {vr(248,2)}, {vr(248,2)}, {vr(250,2)}')
A(f'v_pk_add_f32 {vr(252,2)}, {vr(252,2)}, {vr(254,2)}')
A(f'v_mov_b32 v251, s{sTAG}')
A(f'v_add_f32 v250, v249, v253')
A(f'v_add_f32 v248, v248, v252')
A(f'v_mov_b32 v249, s{sTAG}')
bg_off()
vm(f'buffer_store_dwordx4 {vr(248,4)}, v{vOFF16}, {srd(SWS)}, s{sSTS} offen sc1', 'sts')
wait('stB'); xbar('m7', 2); flag(4, 'stB', E0, True)
stamp('uB published')
bg_on(opt('i4', 64))
w1_reads(mid)
extra_tile(opt('xb', 10), XR1)
mid_flush()
wait('u1'); xbar('m8', 2)
stamp('u1 landed')

def stat_issue(E):
    for m in range(2):
        for k in range(3):
            E(f'buffer_load_dwordx4 {vr(vSTT+12*m+4*k,4)}, v{vSTA}, {srd(SWS)}, s{sSB2 if m else sSB} offen offset:{k*1024} sc1', 'vm', 'stt')
W2SLOT = {}; W2FREE = []; W2N = [0]
def w2_more():
    while W2FREE and W2N[0] < 11:
        kk = W2N[0]; W2N[0] += 1
        W2SLOT[kk] = W2FREE.pop(0)
        for j in range(4):
            bg_dma(f's_add_u32 m0, s{sW4}, {W2SLOT[kk]}',
                   f's_add_u32 s{sD0}, s{sWOFF}, {kk*32*1024}' if kk < 10 else f's_mov_b32 s{sD0}, s{sW2L}',
                   f'buffer_load_dwordx4 v{vDW+j}, {srd(SW2)}, s{sD0} offen offset:{j*1024} lds', f'z{kk}')
def w2_areg(kk): return 192 + 16*kk if kk < 4 else 16*(kk-4)
def w2_read(kk, E):
    o = W2SLOT[kk]
    for c in range(4):
        a = w2_areg(kk) + 4*c
        base, off = (vTRW+c, o - L_B) if o >= L_B else (vTR2+c, o - 16384)
        E(f'ds_read_b64_tr_b16 {ar(a,2)}, v{base} offset:{off}', 'lg', f'zr{kk}')
        E(f'ds_read_b64_tr_b16 {ar(a+2,2)}, v{base} offset:{off+512}', 'lg', f'zr{kk}')
def stats_fin(E, gap):
    b = vSTT
    X = [b+2*k for k in range(6)]
    for k in range(6): E(f'v_add_f32 v{X[k]}, v{X[k]}, v{b+12+2*k}')
    for op in ('v_permlane16_swap_b32', 'v_permlane32_swap_b32'):
        for k in range(6): E(f'v_mov_b32 v{X[k]+1}, v{X[k]}')
        for k in range(6): E(f'{op} v{X[k]}, v{X[k]+1}')
        for k in range(6): E(f'v_add_f32 v{X[k]}, v{X[k]}, v{X[k]+1}')
    X1, X2, X3, X4, X5, X6 = X
    a_, b_, c_, d_ = b+1, b+3, b+5, b+7
    co = [b+12, b+13, b+14, b+15]; cs = [b+16, b+17, b+18, b+19]
    for r in X: E(f'v_mul_f32 v{r}, {hx(f2u(1/512))}, v{r}')
    E(f'v_fma_f32 v{X2}, -v{X1}, v{X1}, v{X2}')
    E(f'v_max_f32 v{X2}, 0, v{X2}')
    E(f'v_add_f32 v{X2}, {hx(f2u(1e-5))}, v{X2}')
    E(f'v_rsq_f32 v{a_}, v{X2}')
    E(f'v_fma_f32 v{X3}, -v{X1}, s{sG}, v{X3}')
    E(f'v_mul_f32 v{co[1]}, v{X2}, v{a_}')
    E(f'v_fma_f32 v{b_}, v{X3}, v{a_}, s{sG+2}')
    E(f'v_mul_f32 v{c_}, s{sG+1}, v{X1}')
    E(f'v_fma_f32 v{c_}, -2.0, v{X5}, v{c_}')
    E(f'v_fma_f32 v{X4}, v{X1}, v{c_}, v{X4}')
    E(f'v_fma_f32 v{X6}, -v{X1}, s{sG+4}, v{X6}')
    E(f'v_add_f32 v{X6}, v{X6}, v{X6}')
    E(f'v_fma_f32 v{X4}, v{X4}, v{a_}, v{X6}')
    E(f'v_fma_f32 v{X4}, v{X4}, v{a_}, s{sG+3}')
    E(f'v_fma_f32 v{X4}, -v{b_}, v{b_}, v{X4}')
    E(f'v_max_f32 v{X4}, 0, v{X4}')
    E(f'v_add_f32 v{X4}, {hx(f2u(1e-5))}, v{X4}')
    E(f'v_rsq_f32 v{d_}, v{X4}')
    K0 = -2.0 * 0.7978845608028654 * LOG2E
    K1_ = K0 * 0.044715
    E(f'v_sub_f32 v{co[0]}, 0, v{X1}')
    E(f'v_mul_f32 v{X4}, v{X4}, v{d_}')
    E(f'v_mul_f32 v{co[2]}, -v{b_}, v{co[1]}')
    E(f'v_mul_f32 v{co[3]}, v{co[1]}, v{X4}')
    E(f'v_mul_f32 v{d_}, v{a_}, v{d_}')
    E(f'v_mul_f32 v{cs[0]}, {hx(f2u(K0))}, v{d_}')
    E(f'v_mul_f32 v{cs[1]}, v{d_}, v{d_}')
    E(f'v_mul_f32 v{cs[1]}, v{cs[1]}, v{d_}')
    E(f'v_mul_f32 v{cs[1]}, {hx(f2u(K1_))}, v{cs[1]}')
    E(f'v_mov_b32 v{cs[2]}, v{co[3]}')
    E(f'v_mov_b32 v{cs[3]}, 0')
    E(f's_lshl_b32 s{sT0}, s{sWAVE}, 9')
    E(f'v_lshlrev_b32 v{vT+2}, 5, v{vI}')
    E(f'v_add_u32 v{vT+2}, {L_ST2}, v{vT+2}')
    E(f'v_add_u32 v{vT+4}, s{sT0}, v{vT+2}')
    E(f'v_lshl_add_u32 v{vT+3}, v{vG}, 2, v{vT+2}')
    E(f'ds_write_b128 v{vT+4}, {vr(co[0],4)}', 'lg', 'sw2')
    E(f'ds_write_b128 v{vT+4}, {vr(cs[0],4)} offset:16', 'lg', 'sw2')
sHB2 = sLN+5
def gelu(rt, E, pk):
    a = vAC3 + 12*rt
    c0 = vCS + 4*rt
    if pk:
        P = range(0, 12, 2)
        for e in P: E(f'v_pk_mul_f32 {vr(vG1+e,2)}, {vr(a+e,2)}, {vr(a+e,2)}')
        for e in P: E(f'v_pk_fma_f32 {vr(vG1+e,2)}, {vr(vG1+e,2)}, {vr(c0,2)}, {vr(c0,2)} op_sel:[0,1,0] op_sel_hi:[1,1,0]')
        for e in P: E(f'v_pk_mul_f32 {vr(vG1+e,2)}, {vr(vG1+e,2)}, {vr(a+e,2)}')
        for e in range(12): E(f'v_exp_f32 v{vG1+e}, v{vG1+e}')
        for e in P: E(f'v_pk_fma_f32 {vr(vG1+e,2)}, {vr(vG1+e,2)}, {vr(c0+2,2)}, {vr(c0+2,2)} op_sel_hi:[1,0,0]')
        for e in range(12): E(f'v_rcp_f32 v{vG1+e}, v{vG1+e}')
        for e in P: E(f'v_pk_mul_f32 {vr(vG1+e,2)}, {vr(vG1+e,2)}, {vr(a+e,2)}')
    else:
        Ee = range(12)
        for e in Ee: E(f'v_mul_f32 v{vG1+e}, v{a+e}, v{a+e}')
        for e in Ee: E(f'v_fma_f32 v{vG1+e}, v{vG1+e}, v{c0+1}, v{c0}')
        for e in Ee: E(f'v_mul_f32 v{vG1+e}, v{vG1+e}, v{a+e}')
        for e in Ee: E(f'v_exp_f32 v{vG1+e}, v{vG1+e}')
        for e in Ee: E(f'v_fma_f32 v{vG1+e}, v{vG1+e}, v{c0+2}, v{c0+2}')
        for e in Ee: E(f'v_rcp_f32 v{vG1+e}, v{vG1+e}')
        for e in Ee: E(f'v_mul_f32 v{vG1+e}, v{vG1+e}, v{a+e}')
    p, hf = rt >> 1, rt & 1
    for tt in range(3):
        for h in range(2):
            E(f'v_cvt_pk_bf16_f32 v{vHP+12*p+4*tt+2*hf+h}, v{vG1+4*tt+2*h}, v{vG1+4*tt+2*h+1}')
    if hf:
        for tt in range(3):
            o = vHP+12*p+4*tt
            E(f'v_permlane16_swap_b32 v{o}, v{o+2}')
            E(f'v_permlane16_swap_b32 v{o+1}, v{o+3}')
        for tt in range(3):
            o = vHP+12*p+4*tt
            E(f'buffer_store_dwordx4 {vr(o,4)}, v{vPH}, {srd(SWS)}, s{sHB2 if p else sHB} offen offset:{tt*512} sc1', 'vm', 'stB' if p else 'stA')
def corr(rt):
    for tt in range(3):
        acc = vr(vAC3+12*rt+4*tt, 4)
        mfma(f'v_mfma_f32_16x16x4_f32 {acc}, v{vCO+4*tt}, v{vCB+rt}, {acc}', 4)
zread = set(); zenq = set()
NGH = opt('ngh', 1)
seq = [(rt, ks) for ks in W1ORD for rt in (0, 1)] + [(rt, ks) for rt in (2, 3) for ks in W1ORD]
nread = 0; vis = 2
w2go = [False, False]
def w2_start():
    if not w2go[1] and W1.enq == 16 and W1.done > 5 + NA:
        W2FREE.append(65536); w2_more(); w2go[1] = True
    if not w2go[0] and W1.done == 16:
        W2FREE.extend(L_B + 16384*k for k in range(4)); w2_more()
        w2go[0] = True
XR2 = [216 + 4*k for k in range(8)]
for n, (rt, ks) in enumerate(seq):
    if n == 0:
        while nread < NB - 1: f_read(nread, E0, 'uf'); nread += 1
        w1_more(16); w1_reads(mid)
        bg_on(opt('ip3a', 100))
        lo(f's_add_u32 s{sHB2}, s{sHB}, {2*HRT}')
        for tt in range(3): lo(f'v_lshlrev_b32 v{vBI+tt}, 16, v{vBI+tt}')
    if n % 16 == 0 and n: stamp(f'p3q{n//16}', 3)
    if n == opt('pin', 8):
        bg_front(lambda: (poll_issue(4, bg), stat_issue(bg))); bg_until('poll')
    if n in (opt('wb1', 6), opt('wb2', 16)) and W1.done < 16:
        xbar('m9', 2); w1_reads(mid); w2_start()
    if n < 32 and W1ORD.index(ks) + 2 > W1.read and W1.read < 16:
        xbar('m10', 1, min(16, W1ORD.index(ks) + 2)); w1_reads(mid); w2_start()
    if n == opt('pcn', 18):
        poll_check(4)
        bg_front(lambda: (tile_enq(2, 'u'), tile_enq(3, 'u'), bg_delay(0, opt('ip3b', 96))))
        BG.interval = 48
    if n == opt('stn', 20):
        checked('stt', stat_issue, [vSTT+1+2*k for k in range(12)])
        stats_fin(lo, lo_gap)
    if n == opt('ub2', 29):
        wait('u2'); w1_bar(0); vis = 3; w2_start()
    if n == 32:
        extra_tile(16, XR2); extra_tile(16, XR2); assert xdone[0] == 16
    if n == opt('sb', 33):
        lo_flush()
        wait(None, 'sw2'); w1_bar(0); w2_start()
        for r2 in range(4):
            mid(f'ds_read_b32 v{vCB+r2}, v{vT+3} offset:{r2*512}', 'lg', 'cb')
            mid(f'ds_read_b128 {vr(vCS+4*r2,4)}, v{vT+2} offset:{r2*512+16}', 'lg', 'cb')
        lo(f'v_cmp_eq_u32 vcc, 3, v{vG}'); lo_gap(1)
        for tt in range(3): lo(f'v_cndmask_b32 v{vCO+4*tt}, v{vCO+4*tt}, v{vBI+tt}, vcc')
    if n == opt('sb', 33) + 5:
        lo_flush(); wait(None, 'cb')
        corr(0); corr(1)
        gelu(0, lo, 0)
    if n == opt('ub3', 41):
        wait('u3'); R_('s_barrier'); vis = 4
    assert opt('g1n', 52) >= 49
    if n == opt('g1n', 52):
        lo_flush(); gelu(1, A, 1)
        stamp('h1A stored', 3)
        corr(2); lo_gap(3)
        if opt('g2h', 1): gelu(2, lo, 0)
    Z = [opt('za', 44), opt('zb', 52), opt('zc', 58), opt('zd', 99)]
    for kk in range(4):
        if n == Z[kk]:
            wait(f'z{kk}'); w2_read(kk, mid); zread.add(kk)
        if n == Z[kk] + 6:
            wait(None, f'zr{kk}'); W2FREE.append(W2SLOT[kk]); w2_more(); zenq.add(kk)
    for _ in range(2):
        if nread < min(n + NB, len(seq)) and seq[nread][0] < vis and len(HI) < 2:
            f_read(nread, hi, 'uf'); nread += 1
    assert nread > n + (1 - n % 2)
    wait(None, f'wr{ks}')
    if n % 2 == 0: wait(None, f'uf{n+1}')
    f = vr(bufs[n%NB], 4)
    for tt in range(3):
        acc = vr(vAC3+12*rt+4*tt, 4)
        mfma(f'v_mfma_f32_16x16x32_bf16 {acc}, {ar(64*tt+4*ks,4)}, {f}, {"0" if ks == W1ORD[0] else acc}', 2 if tt < 2 or n % 2 == 0 else 1)
assert w2go[0]
corr(3)
FA = opt('fa', 0)
if FA == 0: wait('stA')
R_('s_barrier')
if FA == 0: flag(5, 'stA', E0)
stamp('P3 gemm done')
mid_flush()
W2FREE.extend([16384, 32768, 49152]); w2_more()
BG.interval = opt('igelu', 70)
lo_flush()
stamp('lo flushed', 3)
def z_catch(kk, E=E0):
    if kk not in zread:
        wait(f'z{kk}'); w2_read(kk, E); zread.add(kk)
def z_refill():
    for kk in sorted(zread):
        if kk not in zenq and W2N[0] < 11:
            wait(None, f'zr{kk}'); W2FREE.append(W2SLOT[kk]); w2_more(); zenq.add(kk)
z_refill()
for kk in range(opt('zc0', 4)): z_catch(kk)
if not opt('g2h', 1): gelu(2, A, 1)
if FA == 1:
    bg_off(); wait('stA'); R_('s_barrier'); flag(5, 'stA', E0); BG.on = True
gelu(3, A, 1)
z_refill()
assert W2N[0] == 11
bg_off()
stamp('gelu done', 3)
poll_issue(5)
bg_flush()
vGG = 136
lg(f'ds_read_b64 {vr(vGG+2,2)}, v{vMC} offset:{5*1024}', 'c5')
A(f'v_lshlrev_b32 v{vT}, 3, v{vG}')
A(f's_lshl_b32 s{sT0}, s{sWAVE}, 5')
A(f's_add_u32 s{sT0}, s{sT0}, {L_B2}')
A(f'v_add_u32 v{vT}, s{sT0}, v{vT}')
lg(f'ds_read_b64 {vr(134,2)}, v{vT}', 'c5')
hs = [4, 5, 6, 7, 8, 9, 10, 11, 12, 13, sLN, sLN+1]
A(f's_mul_i32 s{hs[0]}, s{sWAVE}, {11*1024}')
A(f's_add_u32 s{hs[0]}, s{hs[0]}, s{sCB}')
for k in range(1, 6): A(f's_add_u32 s{hs[k]}, s{hs[0]}, {(k//3)*HRT + (k%3)*4096}')

poll_check(5)
stamp('h1A seen')
aAC = 112
NH = 16
hb = [144 + 4*k for k in range(NH)]
hseq = [(r, kk) for kk in range(11) for r in (0, 1)] + [(r, kk) for r in (2, 3) for kk in range(11)]
def h_load(n, E):
    r, kk = hseq[n]
    vo = vLAST if kk == 10 else vOFF16
    E(f'buffer_load_dwordx4 {vr(hb[n%NH],4)}, v{vo}, {srd(SWS)}, s{hs[3*r+(kk>>2)]} offen offset:{(kk&3)*1024} sc1', 'vm', f'h{n}')
LH = opt('lh', 10)
for n in range(opt('lh0', 6)): h_load(n, A)
nload = opt('lh0', 6)
for kk in range(opt('zc1', 8)): z_catch(kk)
wait('stB'); R_('s_barrier'); flag(6, 'stB', E0)
stamp('h1B published')
for k in range(6, 12): lo(f's_add_u32 s{hs[k]}, s{hs[0]}, {(k//3)*HRT + (k%3)*4096}')
vRA = vT + 2; vPX = vDQ
L_RED = L_B
for c in range(4):
    lo(f's_add_u32 s{sT0}, s{sWAVE}, {c}')
    lo(f's_and_b32 s{sT0}, s{sT0}, 3')
    lo(f's_mul_i32 s{sT0}, s{sT0}, 12288')
    lo(f's_add_u32 s{sT0}, s{sT0}, {L_RED + max(c-1, 0)*4096}')
    lo(f'v_add_u32 v{vRA + (c-1 if c else 3)}, s{sT0}, v{vOFF16}')
lo(f'v_and_b32 v{vT+1}, 1, v{vG}')
lo(f'v_lshlrev_b32 v{vPX}, 10, v{vI}')
lo(f'v_lshl_add_u32 v{vPX}, v{vT+1}, 14, v{vPX}')
lo(f'v_lshrrev_b32 v{vT+1}, 1, v{vG}')
lo(f'v_lshl_add_u32 v{vPX}, v{vT+1}, 4, v{vPX}')
sXO2 = sLN+2
lo(f's_add_u32 s{sXO2}, s{sXO}, 32768')
lo_wait(None, 'c5')
unpack(vGG, vGG+2, lo); unpack(vGG+2, vGG+3, lo); unpack(132, 134, lo); unpack(134, 135, lo)
for r2 in range(4):
    for e in range(4): lo(f'v_fmac_f32 v{vX1+4*r2+e}, v{vGG+e}, v{132+e}')
vR, vOW, vOUT = 64, 208, 224
def red_write(r, E):
    for c in range(1, 4):
        E(f'ds_write_b128 v{vRA+c-1}, {ar(aAC+16*r+4*c,4)} offset:{r*1024}', 'lg', f'rw{r}')
def red_read(r, E):
    for c in range(3):
        E(f'ds_read_b128 {vr(vR+12*r+4*c,4)}, v{vRA+3} offset:{c*4096 + r*1024}', 'lg', f'rr{r}')
def fin(r, E, pk):
    y = vR + 12*r
    for e in range(4): E(f'v_accvgpr_read_b32 v{vOW+4*r+e}, a{aAC+16*r+e}')
    if pk:
        for h in range(2): E(f'v_pk_add_f32 {vr(y+2*h,2)}, {vr(y+2*h,2)}, {vr(y+4+2*h,2)}')
        for h in range(2): E(f'v_pk_add_f32 {vr(y+8+2*h,2)}, {vr(y+8+2*h,2)}, {vr(vOW+4*r+2*h,2)}')
        for h in range(2): E(f'v_pk_add_f32 {vr(y+2*h,2)}, {vr(y+2*h,2)}, {vr(y+8+2*h,2)}')
        for h in range(2): E(f'v_pk_fma_f32 {vr(y+2*h,2)}, {vr(vGG+2*h,2)}, {vr(y+2*h,2)}, {vr(vX1+4*r+2*h,2)}')
    else:
        for e in range(4): E(f'v_add_f32 v{y+e}, v{y+e}, v{y+4+e}')
        for e in range(4): E(f'v_add_f32 v{y+8+e}, v{y+8+e}, v{vOW+4*r+e}')
        for e in range(4): E(f'v_add_f32 v{y+e}, v{y+e}, v{y+8+e}')
        for e in range(4): E(f'v_fma_f32 v{y+e}, v{vGG+e}, v{y+e}, v{vX1+4*r+e}')
    o = vOUT + 4*(r >> 1)
    for h in range(2): E(f'v_cvt_pk_bf16_f32 v{o+2*(r&1)+h}, v{y+2*h}, v{y+2*h+1}')
    if r & 1:
        E(f'v_permlane16_swap_b32 v{o}, v{o+2}')
        E(f'v_permlane16_swap_b32 v{o+1}, v{o+3}')
        E(f'buffer_store_dwordx4 {vr(o,4)}, v{vPX}, {srd(SOUT)}, s{sXO2 if r >> 1 else sXO} offen', 'vm', 'out')
okB = False
for n, (r, kk) in enumerate(hseq):
    if n == opt('pb4', 4): poll_issue(6, hi)
    if n == opt('pc4', 13):
        lo_flush(); poll_check(6); okB = True
        stamp('h1B seen', 3)
    for _ in range(2):
        if nload < min(n + LH, 44 if okB else 22) and len(HI) < 2:
            h_load(nload, hi); nload += 1
    if n < 22 and r == 0 and kk + 2 < 11: z_catch(kk + 2, mid)
    if n == 23:
        mid_flush(); wait_all_lg(); R_('s_barrier')
    if n == 24: red_write(0, mid); red_write(1, mid)
    if n == 35: red_write(2, mid)
    if n == opt('rb', 38):
        wait(None, 'rw2'); R_('s_barrier')
        for r2 in range(3): red_read(r2, mid)
        for r2 in range(3):
            lo_wait(None, f'rr{r2}'); fin(r2, lo, False)
    assert nload > n
    wait(f'h{n}', f'zr{kk}')
    cs_ = [1, 2, 3, 0]
    for ci, c in enumerate(cs_):
        acc = ar(aAC+16*r+4*c, 4)
        mfma(f'v_mfma_f32_16x16x32_bf16 {acc}, {ar(w2_areg(kk)+4*c,4)}, {vr(hb[n%NH],4)}, {"0" if kk==0 else acc}', 2 if ci < 3 else 1)
stamp('P4 gemm done')
mid_flush()
red_write(3, A)
lo_flush()
wait(None, 'rw3'); R_('s_barrier')
red_read(3, A)
wait(None, 'rr3')
fin(3, A, True)
if TWICE:
    R_('s_waitcnt vmcnt(0)')
    R_('s_barrier')
    R_(f'v_readlane_b32 s{sT0}, v31, 42'); R_('s_nop 3'); R_(f's_cmp_lg_u32 s{sT0}, 0'); R_('s_cbranch_scc1 L_fin')
    R_(f's_mov_b32 s{sT0}, 256'); R_(f'v_writelane_b32 v31, s{sT0}, 42')
    R_('v_readlane_b32 s0, v31, 40'); R_('v_readlane_b32 s1, v31, 41')
    R_(f's_lshl_b32 s{sT0}, s{sWAVE}, 6'); R_(f'v_or_b32 v0, s{sT0}, v0'); R_('s_nop 4')
    R_('s_branch L_again')
    R_('L_fin:')
if STAMP:
    R_('s_waitcnt vmcnt(0)')
    stamp('end')
    R_(f's_memrealtime {sp(sTM)}')
    R_('s_waitcnt lgkmcnt(0)')
    R_(f's_lshl_b32 s{sT0}, s2, 7')
    R_(f's_lshl_b32 s{sT1}, s{sWAVE}, 15')
    R_(f's_add_u32 s{sT0}, s{sT0}, s{sT1}')
    R_(f's_add_u32 s{sT0}, s{sT0}, {WS_STAMP}')
    R_(f'v_writelane_b32 v31, s{sTM}, 29')
    R_(f'v_writelane_b32 v31, s{sSPIN}, 30')
    R_(f'v_writelane_b32 v31, s{sLOCAL}, 31')
    R_(f'v_lshlrev_b32 v{vT}, 2, v{vLANE}')
    R_('s_mov_b64 exec, 0xffffffff')
    R_(f'buffer_store_dword v31, v{vT}, {srd(SWS)}, s{sT0} offen')
if DBG:
    l = label('Ldbg')
    R_('s_waitcnt vmcnt(0)')
    R_('s_cmp_ge_u32 s2, 8'); R_(f's_cbranch_scc1 {l}')
    R_(f's_cmp_lg_u32 s{sWAVE}, 0'); R_(f's_cbranch_scc1 {l}')
    R_(f's_memrealtime {sp(sTM)}'); R_('s_memtime s[4:5]'); R_('s_waitcnt lgkmcnt(0)')
    R_('v_readlane_b32 s6, v31, 52'); R_('v_readlane_b32 s7, v31, 53'); R_('v_readlane_b32 s8, v31, 54')
    R_('v_readlane_b32 s10, v31, 50'); R_('v_readlane_b32 s11, v31, 51'); R_('s_nop 4')
    R_(f's_sub_u32 s9, s{sTM}, s6'); R_('s_and_b32 s6, s6, 0xffff'); R_('s_mul_i32 s6, s6, 10000'); R_('s_add_u32 s9, s9, s6')
    R_('s_sub_u32 s4, s4, s7'); R_('s_sub_u32 s8, s8, s7'); R_('s_lshr_b32 s8, s8, 4'); R_('s_mul_i32 s8, s8, 1000000'); R_('s_add_u32 s4, s4, s8')
    R_('v_mov_b32 v10, s10'); R_('v_mov_b32 v11, s11'); R_('s_lshl_b32 s5, s2, 2'); R_('v_add_u32 v10, s5, v10')
    R_('v_mov_b32 v12, s9'); R_('v_mov_b32 v13, s4')
    R_('s_mov_b64 exec, 1')
    R_('global_store_dword v[10:11], v12, off'); R_('global_store_dword v[10:11], v13, off offset:32')
    R_(f'{l}:')
R_('s_endpgm')
R_('.fill 2048, 4, 0xbf800000')
assert not HI and not LO and not BG.q and not MID
print(f"""; Kernarg layout (104 bytes, ptrs only, base s[0:1]): A_x, A_wqkv, A_wo, B_x, B_w1, B_b1, B_w2, B_b2, c, w_mod, d_out, d_debug, d_ws
; @launch grid=(256,1,1) block=(256,1,1) lds={LDS_BYTES}
.amdgcn_target "amdgcn-amd-amdhsa--gfx950"
.text
.globl {NAME}_kernel
.p2align 8
.type {NAME}_kernel,@function
{NAME}_kernel:""")
sys.stdout.write(R_.render())
print(f""".section .rodata,"a"
.p2align 6
.amdhsa_kernel {NAME}_kernel
  .amdhsa_next_free_vgpr 512
  .amdhsa_next_free_sgpr 102
  .amdhsa_accum_offset 256
  .amdhsa_group_segment_fixed_size 0
  .amdhsa_kernarg_size 104
  .amdhsa_user_sgpr_count 2
  .amdhsa_user_sgpr_kernarg_segment_ptr 1
  .amdhsa_system_sgpr_workgroup_id_x 1
.end_amdhsa_kernel""")
sys.stderr.write(f'\nstamps={nstamp[0]} nops={R_.nnop} lines={len(R_.lines)}\n')
```

```python
import sys, struct
from collections import deque
from asmlib import Asm

STAMP = '--stamp' in sys.argv
def opt(name, default):
    for a in sys.argv:
        if a.startswith('--' + name + '='): return int(a.split('=')[1])
    return default
def f2u(x): return struct.unpack('<I', struct.pack('<f', x))[0]
def hx(x): return '0x%08x' % (x & 0xffffffff)
def srd(b): return f's[{b}:{b+3}]'
def vr(b, n=1): return f'v{b}' if n == 1 else f'v[{b}:{b+n-1}]'
def ar(b, n=1): return f'a{b}' if n == 1 else f'a[{b}:{b+n-1}]'
def sp(b): return f's[{b}:{b+1}]'

import json, os
from model import Model
ASM = Asm()
label = ASM.label
M = Model(lat=dict(mall=opt('lmall', 800), hbm=opt('lhbm', 1600), st=opt('lst', 900)), skew=opt('skew', 900))
if opt('payhit', 0): M.pay = 'hit'
if opt('trace', 0): M.trace = lambda x: sys.stderr.write(x + '\n')
def R_(text, tag=None):
    ASM(text); M.step(text, tag)
MARKF = 'marks.json'
PREV = json.load(open(MARKF)) if os.path.exists(MARKF) and not opt('fresh', 0) else {}
MARKS = {}
def mark(name):
    MARKS[name] = M.t
def prev(name, default=1e9): return PREV.get(name, default)
def landed(tag, margin=None):
    if margin is None: margin = opt('lmarg', 100)
    if any(u[2] == tag for u in BG.q): return False
    return tag in M.done and M.done[tag] + margin <= M.t
class Ctr:
    def __init__(self, mx): self.q = []; self.mx = mx
    def issue(self, tag, w=1): self.q.append((tag, w))
    def need(self, tag):
        idx = [i for i, (t, _) in enumerate(self.q) if t == tag]
        if not idx: return None
        rest = self.q[idx[-1]+1:]
        n = sum(w for _, w in rest)
        if n > self.mx:
            n = self.mx
            while sum(w for _, w in rest) > n: rest = rest[1:]
        self.q = rest
        return n
    def clear(self): self.q = []
VM = Ctr(63); LG = Ctr(15)
STORES = {}
def emit(u):
    text, kind, tag = u
    if tag in ('st', 'stA', 'stB'):
        STORES.setdefault(tag, []).append('buffer_load_dword v5, ' + text.split(', ', 1)[1])
    if ' m0,' in text[:16]: BG.em0 = text
    if text.startswith('s_') and ' s91,' in text[:18]: BG.ed0 = text
    if kind == 'vm': VM.issue(tag)
    elif kind == 'vm0': VM.issue(tag, 0)
    elif kind == 'lg': LG.issue(tag)
    R_(text, tag if kind else None)
def E0(text, kind=None, tag=None): emit((text, kind, tag))
def ucost(text):
    op = text.split()[0]
    if op.startswith(';'): return 0
    if op.startswith(('v_exp', 'v_rcp', 'v_rsq', 'v_permlane', 'ds_write_b128', 'v_mfma')): return 2
    return 1
class BG:
    q = deque(); on = False; acc = 0; interval = 100; m0 = None; d0 = None; second = False; auto = False; deadline = 1e9; dl0 = 1e9; em0 = None; ed0 = None
HI = deque(); MID = deque(); LO = deque()
def bg_delay(c, ival=None): BG.q.append(('@delay', None, (c, ival)))
def do_delay(u):
    BG.acc = -u[2][0]
    if u[2][1]: BG.interval = u[2][1]
def bg_emit_item():
    while BG.q:
        u = BG.q.popleft()
        if u[0] == '@delay':
            if BG.on: do_delay(u); return None
            continue
        emit(u)
        if u[1] is not None: return u
def bg_pop(n):
    for _ in range(n): bg_emit_item()
def bg_one():
    u = BG.q.popleft()
    if u[0] != '@delay': emit(u)
def bg_flush():
    while BG.q: bg_one()
def bg_until(tag):
    while any(u[2] == tag for u in BG.q): bg_one()
def bg_on(i): BG.on = True; BG.interval = i; BG.acc = 0; BG.auto = False
def bg_auto(deadline=1e9): BG.on = True; BG.auto = True; BG.deadline = deadline
def bg_head():
    for u in BG.q:
        if u[1] is not None: return u
def bg_due():
    if not BG.auto: return BG.acc >= BG.interval
    u = bg_head()
    if u is None: return True
    t, a, ret = M.predict(u[0])
    crit = u[2][0] in 'aouh' or u[2] in ('poll', 'stt', 'g1', 'g2')
    return t <= M.t + 1 and a <= M.t + opt('ahead', 200) and (crit or ret <= BG.deadline + opt('dls', 100000))
def bg_fill():
    while BG.q and BG.auto:
        u = bg_head()
        if u is not None:
            t, a, ret = M.predict(u[0])
            if t > M.t + 1 or ret > BG.deadline + opt('dls', 100000): break
        bg_emit_item()
def bg_off(): BG.on = False
def bg(text, kind=None, tag=None): BG.q.append((text, kind, tag))
def bg_dma(m0, d0, text, tag):
    if m0 != BG.m0: bg(m0); BG.m0 = m0
    if d0 is not None and d0 != BG.d0: bg(d0); BG.d0 = d0
    bg(text, 'vm', tag)
def bg_front(fn):
    old = list(BG.q); BG.q.clear()
    m0, d0 = BG.m0, BG.d0
    BG.m0 = BG.d0 = None
    fn()
    if old:
        if BG.em0: bg(BG.em0)
        if BG.ed0: bg(BG.ed0)
        BG.q.extend(old); BG.m0, BG.d0 = m0, d0
def charge(u):
    BG.acc = 0 if 'x4' in u[0] else BG.interval*3//4
    if u[2] == 'wmodB': BG.acc = -BG.interval//3
def A(text, kind=None, tag=None):
    emit((text, kind, tag))
    if BG.on and not text.endswith(':'):
        BG.acc += 4*ucost(text)
        if BG.q and bg_due():
            u = bg_emit_item()
            if u: charge(u)
def vm(text, tag): A(text, 'vm', tag)
def lg(text, tag): A(text, 'lg', tag)
def q_until(Q, tag):
    while any(u[2] == tag and u[0] != '@wait' for u in Q):
        u = Q.popleft()
        if u[0] == '@wait': wait(u[1], u[2])
        elif u[0] == '@gap': pass
        else: emit(u)
def wait(vtag=None, ltag=None):
    parts = []
    if vtag is not None:
        q_until(HI, vtag); q_until(LO, vtag); bg_until(vtag)
    if ltag is not None:
        q_until(HI, ltag); q_until(MID, ltag); q_until(LO, ltag)
    if vtag is not None:
        n = VM.need(vtag)
        if n is not None: parts.append(f'vmcnt({n})')
    if ltag is not None:
        n = LG.need(ltag)
        if n is not None: parts.append(f'lgkmcnt({n})')
    if parts: R_('s_waitcnt ' + ' '.join(parts))
def wait_all_vm(): R_('s_waitcnt vmcnt(0)'); VM.clear()
def wait_all_lg(): R_('s_waitcnt lgkmcnt(0)'); LG.clear()
def ismem(u): return u[0].startswith(('ds_', 'buffer_', 'global_'))
def mfma(text, slots=2):
    R_(text)
    BG.acc += 16
    first = True; lastmem = False
    while slots > 0:
        if BG.on and BG.q and BG.q[0][0] == '@delay':
            do_delay(BG.q.popleft())
        bg_ok = BG.on and BG.q and (BG.q[0][1] is None or bg_due())
        cands = [HI] + ([BG.q] if bg_ok else []) + [MID, LO]
        pick = None
        if not first and BG.second and lastmem and bg_ok and ismem(BG.q[0]): pick = BG.q
        if first and pick is None:
            for Q in cands:
                if Q and ismem(Q[0]): pick = Q; break
        if pick is None:
            for Q in cands:
                if Q and not ismem(Q[0]) and (Q[0][0].startswith(('@', 'v_mfma')) or ucost(Q[0][0]) <= slots): pick = Q; break
        if pick is None: break
        first = False
        u = pick.popleft()
        lastmem = ismem(u)
        if u[0] == '@wait':
            wait(u[1], u[2]); slots -= 1; continue
        if u[0] == '@gap':
            if u[1] > 1: pick.appendleft(('@gap', u[1]-1, None))
            break
        if pick is BG.q and u[1] is not None: charge(u)
        emit(u); slots -= ucost(u[0])
        if u[0].startswith('v_mfma'): BG.acc += 16; slots = 2; first = True
def hi(text, kind=None, tag=None): HI.append((text, kind, tag))
def mid(text, kind=None, tag=None): MID.append((text, kind, tag))
def lo(text, kind=None, tag=None): LO.append((text, kind, tag))
def lo_wait(vt=None, lt=None): LO.append(('@wait', vt, lt))
def lo_gap(n): LO.append(('@gap', n, None))
def lo_flush():
    while LO:
        u = LO.popleft()
        if u[0] == '@wait': wait(u[1], u[2])
        elif u[0] == '@gap': pass
        else: A(*u)
def mid_flush():
    while MID: emit(MID.popleft())
def hi_flush():
    while HI: emit(HI.popleft())
sTM, sSPIN = 30, 85
nstamp = [0]
def stamp(name, level=0):
    M.step(f'; mark {name}'); mark(name)
    if not STAMP or (level and level != opt('sl', 0)): return
    k = nstamp[0]; nstamp[0] += 1
    assert k < 28
    ASM(f'; stamp {k} {name}')
    sys.stderr.write(f'{k}:{name} ')
    ASM(f's_memtime {sp(sTM)}')
    ASM('s_waitcnt lgkmcnt(0)')
    ASM(f'v_writelane_b32 v31, s{sTM}, {k}')
SPIN_MAX = 400000
def spin_guard(loop_label, done_label):
    R_(f's_add_u32 s{sSPIN}, s{sSPIN}, 1')
    R_(f's_cmp_lt_u32 s{sSPIN}, {SPIN_MAX}')
    R_(f's_cbranch_scc1 {loop_label}')
    R_(f'{done_label}:')
def red32(a, b, E=None):
    E = E or A
    E(f'v_permlane32_swap_b32 v{a}, v{b}'); E(f'v_add_f32 v{a}, v{a}, v{b}')
def red16(a, b, E=None):
    E = E or A
    E(f'v_permlane16_swap_b32 v{a}, v{b}'); E(f'v_add_f32 v{a}, v{a}, v{b}')
def ror_add(a, n, E=None):
    (E or A)(f'v_add_f32_dpp v{a}, v{a}, v{a} row_ror:{n} row_mask:0xf bank_mask:0xf')
def unpack(dst, src, E=None):
    E = E or A
    E(f'v_lshlrev_b32 v{dst}, 16, v{src}'); E(f'v_and_b32 v{dst+1}, 0xffff0000, v{src}')

def finish():
    json.dump(MARKS, open(MARKF, 'w'))
    if opt('rep', 0): M.report(lambda x: sys.stderr.write(x + '\n'), opt('rep', 0) - 1)
```

```python
import re
from collections import deque
class Model:
    def __init__(self, cold=True, skew=900, lat=None):
        self.LAT = dict(hit=520, mall=800, hbm=1600 if cold else 800, st=900)
        if lat: self.LAT.update(lat)
        self.CAP = 256; self.TAQ = 3; self.SKEW = skew
        self.t = 0.0; self.mf = 0.0; self.lv = False
        self.vm = deque(); self.lg = deque(); self.lds = 0.0
        self.ta = 0.0; self.ret = 0.0; self.infl = deque(); self.acc = deque()
        self.skip = None; self.pubs = {}; self.pollfail = 0; self.done = {}
        self.cat = {}; self.stall = {}; self.segs = []; self.n = 0; self.trace = None; self.labels = set()
        self.pay = 'mall'
    def add(self, k, d):
        if d > 0:
            self.stall[(k, self.n)] = self.stall.get((k, self.n), 0) + d
            self.cat[k] = self.cat.get(k, 0) + d
    def classify(self, l):
        op = l.split()[0]
        SRDK = {'s[36:39]': 'mall', 's[40:43]': 'mall', 's[44:47]': 'mall', 's[48:51]': 'mall', 's[52:55]': self.pay, 's[32:35]': 'hbm', 's[60:63]': 'hit', 's[56:59]': 'hbm'}
        kind = 'hit'
        for k, v in SRDK.items():
            if k in l: kind = v
        if op.startswith('global'): kind = 'hbm'
        dw = op.endswith('dword') or 'ushort' in op
        L = 8 if 'x4' in op else 4
        r = 2.0
        if 's[60:63]' in l and 'x4' in op: L, r = 32, 1.0
        if 's[44:47]' in l and 'x4' in op: L = 9.3
        if dw:
            L, r = 12, 1.0
            if 's[52:55]' in l: L = 8; kind = 'mall'
            elif kind != 'hit' or 's[60:63]' in l: kind = 'hbm'
        if 'ushort' in op or '_lds_dword' in op: L = 1
        if 's[0:1]' in l: L = 8; kind = 'hit'
        if 'v33, s[32:35]' in l: L = 16; r = 1.0; kind = 'mall'
        if 'v39,' in l or 'v41,' in l: L = 1; kind = 'hit' if 's[52:55]' in l else kind
        m = re.search(r';k=(\w+),([\d.]+)', l)
        if m: kind, L = m.group(1), float(m.group(2))
        return op, kind, 4*L, r
    def predict(self, l):
        op, kind, L4, r = self.classify(l)
        t = self.t
        acc = list(self.acc)
        while len(acc) >= self.TAQ: t = max(t, acc.pop(0))
        a = max(t, self.ta)
        infl = list(self.infl); s = sum(x[1] for x in infl)
        while infl and s + L4 > self.CAP:
            x = infl.pop(0); a = max(a, x[0]); s -= x[1]
        return t, a, max(a + self.LAT[kind], self.ret + L4*r)
    def step(self, l, tag=None):
        self.n += 1
        l = l.strip()
        if not l or l.startswith('.'): return
        if l.endswith(':'):
            self.labels.add(l[:-1])
            if self.skip == l[:-1]: self.skip = None
            return
        if self.skip: return
        if l.startswith('; mark'):
            self.segs.append((l.split(None, 2)[2], self.t, dict(self.cat), self.n)); self.cat.clear(); return
        if l.startswith('; pub'): self.pubs[int(l.split()[2])] = self.t
        if l.startswith('; pay'): self.pay = l.split()[2]
        if l.startswith(';'): return
        op = l.split()[0]
        if op == 's_endpgm': return
        if op in ('s_cbranch_scc1', 's_cbranch_vccz', 's_branch'):
            tgt = l.split()[1]
            if tgt.startswith('Lwok') and self.pollfail:
                t0 = self.t
                while True:
                    a = max(self.t, self.ta); c = max(a + self.LAT['hit'], self.ret); self.t = c + 30
                    if a + 260 >= self.pollfail: break
                self.add('poll', self.t - t0); self.vm.clear(); self.pollfail = 0
            if tgt not in self.labels and not tgt.startswith('Lkeep'): self.skip = tgt
            self.t += 8; return
        if op.startswith('v_mfma'):
            dur = 32 if 'x4_f32' in op else 16
            s = max(self.t, self.mf); self.cat['M'] = self.cat.get('M', 0) + dur
            self.t = s + 8; self.mf = s + dur; self.lv = False; return
        if op.startswith(('v_pk_', 'v_dot2')):
            self.t = max(self.t, self.mf) + 5; self.lv = True; return
        if op.startswith('v_'):
            self.t += 8.5 if op.startswith(('v_exp', 'v_rcp', 'v_rsq', 'v_permlane')) else 4.2
            self.lv = True; return
        if op == 's_nop': self.t += 4*(int(l.split()[1]) + 1); return
        if op == 's_barrier':
            if self.trace: self.trace(f'{self.n:5d} t={int(self.t):6d} barrier')
            self.t += 50; self.cat['bar'] = self.cat.get('bar', 0) + 50; return
        if op == 's_waitcnt':
            for name, q, k in (('vmcnt', self.vm, 'vm'), ('lgkmcnt', self.lg, 'lg')):
                m = re.search(name + r'\((\d+)\)', l)
                if m:
                    while len(q) > int(m.group(1)):
                        c = q.popleft()
                        if c > self.t: self.add(k, c - self.t); self.t = c
            self.t += 4; self.lv = False; return
        if op.startswith('ds_'):
            if self.lv: self.t += 8
            cyc = {'ds_read_b128': 16, 'ds_write_b128': 52, 'ds_write_b64': 24, 'ds_write_b32': 16}.get(op, 8)
            s = max(self.t, self.lds - 4*cyc)
            self.add('ldsq', s - self.t); self.t = s + 4
            self.lds = max(self.lds, self.t) + cyc
            self.lg.append(self.lds + 90); self.lv = False
            if tag: self.done[tag] = self.lds + 90
            return
        if op.startswith(('buffer_', 'global_')):
            if self.lv: self.t += 8
            op, kind, L4, r = self.classify(l)
            store = 'store' in op
            while len(self.acc) >= self.TAQ:
                a = self.acc.popleft()
                if a > self.t: self.add('issue', a - self.t); self.t = a
            a = max(self.t, self.ta)
            if not store:
                while self.infl and sum(x[1] for x in self.infl) + L4 > self.CAP:
                    a = max(a, self.infl.popleft()[0])
            self.ta = a + (64 if 'x4' in op else max(16, L4))
            self.acc.append(a)
            if store: c = a + self.LAT['st']
            else:
                c = max(a + self.LAT[kind], self.ret + L4*r)
                if 'v40, v39' in l:
                    pub = self.pubs[int(re.search(r'offset:(\d+)', l).group(1)) // 32]
                    if a + 260 < pub + self.SKEW: self.pollfail = pub + self.SKEW
                self.cat['F'] = self.cat.get('F', 0) + min(c - self.ret, c - a)
                self.ret = c; self.infl.append((c, L4))
                if (' lds' in l or '_lds_' in op) and self.lds > self.t: self.lds += 32
            if self.trace: self.trace(f'{self.n:5d} t={int(self.t):6d} acc={int(a):6d} ret={int(c):6d} {tag or ""} {l[:60]}')
            if self.vm: c = max(c, self.vm[-1])
            self.vm.append(c); self.t += 8; self.lv = False
            if tag: self.done[tag] = c
            return
        self.t += 4; self.lv = False
    def report(self, out, top=0):
        p = 0
        for n, x, c, ln in self.segs:
            out(f'{n:16s} t={int(x):6d} +{int(x-p):5d}  #{ln:5d}  ' + ' '.join(f'{k}={int(v)}' for k, v in sorted(c.items())))
            p = x
        out(f'end {int(self.t)}')
        for (k, site), d in sorted(self.stall.items(), key=lambda z: -z[1])[:top]: out(f'{k:6s} #{site}: {int(d)}')
```

```python
from infra import *
NAME = 'adaLN_cond__sliding_local_dilated__mixer_channel_mlp__prompt'
FORCE_GLOBAL = '--global' in sys.argv
WS_XCC, WS_MOD, WS_STAMP, WS_CL = 0x1000, 0x2000, 0x20000, 0x100000
HRT = 43*1024
C_U = 4*HRT; C_A = C_U; C_ST = C_U + 65536; C_FLAG = C_ST + 24576
CLSZ = 0x48000
WS_SIZE = WS_CL + 32*CLSZ
L_A1, L_B, L_MISC = 0, 81920, 147456
L_MODT = L_MISC - 2048
L_ONES = L_MISC + 4096
L_ST1  = L_MISC + 5120
L_ST2  = L_MISC + 13312
L_P0S  = L_MISC + 15360
L_B2   = L_MISC + 15616
LDS_BYTES = 163840
sWAVE = 3
SX, SWQKV, SWO, SW1, SW2, SWS, SOUT, SWMOD = 32, 36, 40, 44, 48, 52, 56, 60
sB1, sB2, sC = 14, 18, 20
sCL, sJ, sTAG, sLOCAL, sR0 = 64, 65, 66, 67, 68
sT0, sT1, sT2 = 69, 70, 71
sLN = 72; sG = 80; sCB = 86
sSOFF, sSLDS, sWOFF, sWLDS, sD0 = 87, 88, 89, 90, 91
sIW, sWMB, sGW, sB1O = 92, 93, 94, 95
sXO, sSB, sHB, sMSK, sP, sCQ = 96, 97, 98, 99, 100, 101
sXCC, sWM, sS1OFF, sOST, sFL = 26, 27, 22, 16, 17
sGM, sGX, sW4 = 23, 24, 25
vLANE, vOFF16, vDQ, vTRQA, vTA, vTCH = 0, 1, 2, 3, 4, 5
vDW, vAR4, vAR, vTRQ, vTRW, vI, vG, vT = 6, 10, 14, 18, 19, 23, 24, 25
vDWO, vXO, vTR1, vPO, vPH, vFLO, vFLV, vZ, vMC, vO8 = 32, 33, 34, 37, 38, 39, 40, 41, 42, 43
vXA, vSTA, vLAST, vONE = 44, 45, 46, 47
vM, vD1, vBI, vWMO, vP0A, vS = 48, 52, 55, 58, 59, 60
LOG2E = 1.4426950408889634
def mk_srd(b, ptr, size):
    A(f's_mov_b32 s{b}, s{ptr}'); A(f's_mov_b32 s{b+1}, s{ptr+1}')
    A(f's_mov_b32 s{b+2}, {hx(size)}'); A(f's_mov_b32 s{b+3}, 0x00020000')

CLW = opt('clw', 8)
vXR0, vHS, vTQ, vTM = 64, 164, 90, 91
A('s_cmp_lt_u32 s2, 256')
A('s_cbranch_scc1 L_go')
A('s_endpgm')
A('L_go:')
TWICE = opt('twice', 0)
if TWICE:
    R_('v_writelane_b32 v31, s0, 40'); R_('v_writelane_b32 v31, s1, 41'); R_('v_mov_b32 v30, 0'); R_('s_mov_b32 s3, 0'); R_('v_writelane_b32 v31, s3, 42')
    R_('L_again:')
A('s_load_dwordx16 s[4:19], s[0:1], 0')
A('s_load_dwordx8 s[20:27], s[0:1], 64')
A('s_load_dwordx2 s[28:29], s[0:1], 96')
A(f's_getpc_b64 {sp(sTM)}')
A(f'v_lshrrev_b32 v{vT}, 6, v0')
A(f'v_and_b32 v{vLANE}, 63, v0')
A(f'v_readfirstlane_b32 s{sWAVE}, v{vT}')
A(f's_bfe_u32 s{sJ}, s2, 0x30003')
A(f's_lshl_b32 s{sT2}, s{sJ}, 2')
A(f's_add_u32 s{sT2}, s{sT2}, s{sWAVE}')
A(f's_mul_i32 s{sT0}, s{sT2}, {CLW*128}')
A(f'v_lshlrev_b32 v{vTA}, 7, v{vLANE}')
A(f'v_add_u32 v{vT}, s{sT0}, v{vTA}')
A(f's_mov_b64 exec, {hx((1<<CLW)-1)}')
vm(f'global_load_dword v{vTCH}, v{vT}, {sp(sTM)}', 'touch')
A('s_mov_b64 exec, -1')
A(f'v_lshlrev_b32 v{vOFF16}, 4, v{vLANE}')
A(f's_and_b32 s{sT0}, s2, 7')
A(f's_lshr_b32 s{sCQ}, s2, 6')
A(f's_lshl_b32 s{sCL}, s{sT0}, 2')
A(f's_add_u32 s{sCL}, s{sCL}, s{sCQ}')
A(f's_lshl_b32 s{sR0}, s{sCL}, 6')
A(f's_lshr_b32 s{sIW}, s2, 3')
A(f's_lshl_b32 s{sIW}, s{sIW}, 2')
A(f's_add_u32 s{sIW}, s{sIW}, s{sWAVE}')
A(f'v_lshrrev_b32 v{vT+2}, 2, v{vLANE}')
A(f'v_mul_u32_u24 v{vTM}, 6144, v{vT+2}')
A(f'v_and_b32 v{vT+2}, 3, v{vLANE}')
A(f'v_lshl_add_u32 v{vTM}, v{vT+2}, 7, v{vTM}')
A(f's_mul_i32 s{sLN+1}, s{sIW}, {4*6144}')
A(f's_lshl_b32 s{sT1}, s{sT0}, 9')
A(f's_add_u32 s{sWMB}, s{sLN+1}, s{sT1}')
A(f's_lshl_b32 s{sT1}, s{sT0}, 8')
A(f's_add_u32 s{sLN+1}, s{sLN+1}, s{sT1}')
sRL = [sG, sG+1, sG+2]; sRG = [sLN+4, sLN+5, sLN+6]
A(f's_mul_i32 s{sRL[0]}, s{sJ}, 10')
A(f's_add_u32 s{sRL[0]}, s{sRL[0]}, s{sWAVE}')
A(f's_add_u32 s{sRL[1]}, s{sRL[0]}, 4')
A(f's_add_u32 s{sRL[2]}, s{sRL[0]}, 8')
A(f's_min_u32 s{sRL[2]}, s{sRL[2]}, 79')
for k in range(3):
    A(f's_add_u32 s{sRG[k]}, s{sRL[k]}, s{sR0}')
    A(f's_sub_u32 s{sRG[k]}, s{sRG[k]}, 16')
    A(f's_max_i32 s{sRG[k]}, s{sRG[k]}, 0')
    A(f's_lshl_b32 s{sRG[k]}, s{sRG[k]}, 10')
A(f's_lshl_b32 s{sP}, s{sT0}, 3')
A(f's_min_u32 s{sT1}, s{sCQ}, 2')
A(f's_lshl_b32 s{sT1}, s{sT1}, 3')
A(f's_add_u32 s{sT1}, s{sT1}, 56')
A(f's_add_u32 s{sT1}, s{sT1}, s{sP}')
A(f's_cmp_eq_u32 s{sCQ}, 0')
A(f's_cselect_b32 s{sT1}, 0, s{sT1}')
A(f's_add_u32 s{sP}, s{sP}, s{sT1}')
A(f's_add_u32 s{sP}, s{sP}, s{sJ}')
A(f's_lshl_b32 s{sGW}, s2, 2')
A(f's_add_u32 s{sGW}, s{sGW}, s{sWAVE}')
A(f's_mul_i32 s{sT1}, s{sGW}, {12*128}')
A(f'v_add_u32 v{vTQ}, s{sT1}, v{vTA}')
A(f's_mul_i32 s{sT1}, s{sIW}, {12*1024}')
A(f's_add_u32 s{sT1}, s{sT1}, {hx(384 - 12*1024)}')
A(f'v_lshl_add_u32 v{vT+2}, v{vLANE}, 10, s{sT1}')
A(f'v_cmp_lt_u32 vcc, 11, v{vLANE}')
A(f'v_lshrrev_b32 v{vT+1}, 1, v{vLANE}')
A(f's_lshl_b32 s{sT0}, s{sWAVE}, 8')
A(f'v_cndmask_b32 v{vTQ}, v{vTQ}, v{vT+2}, vcc')
A(f'v_mul_u32_u24 v{vWMO}, {4*6144}, v{vT+1}')
A(f'v_lshl_add_u32 v{vT+1}, v{vT+1}, 3, s{sT0}')
A(f'v_mov_b32 v{vT+3}, 0')
A('s_waitcnt lgkmcnt(0)')
A(f's_mov_b64 s[0:1], {sp(sTM)}')
DBG = opt('dbg', 0)
if DBG:
    R_('v_writelane_b32 v31, s26, 50'); R_('v_writelane_b32 v31, s27, 51')
    R_(f's_memrealtime {sp(sTM)}'); R_('s_waitcnt lgkmcnt(0)'); R_(f'v_writelane_b32 v31, s{sTM}, 52')
    R_(f's_memtime {sp(sTM)}'); R_('s_waitcnt lgkmcnt(0)'); R_(f'v_writelane_b32 v31, s{sTM}, 53')
stamp('kernarg')
if STAMP:
    R_(f's_memrealtime {sp(sTM)}'); R_('s_waitcnt lgkmcnt(0)'); R_(f'v_writelane_b32 v31, s{sTM}, 28')
mk_srd(SWMOD, 22, 512*3072*2)
A('s_mov_b64 exec, 0x3333')
vm(f'buffer_load_dword v{vTCH}, v{vTM}, {srd(SWMOD)}, s{sLN+1} offen', 'touch')
A('s_mov_b64 exec, -1')
mk_srd(SWS, 28, WS_SIZE)
vE, vCV = vT+4, 62
vm(f'buffer_load_dword v{vE}, v{vT+3}, {srd(SWS)}, 0 offen sc1', 'E')
vm(f'global_load_dwordx2 {vr(vCV,2)}, v{vT+1}, {sp(sC)}', 'E')
mk_srd(SWQKV, 6, 512*1536*2)
A('s_mov_b64 exec, 0xffffff')
vm(f'buffer_load_dword v{vTCH}, v{vTQ}, {srd(SWQKV)}, 0 offen', 'touch')
A('s_mov_b64 exec, -1')
mk_srd(SWO, 8, 512*512*2)
A(f's_lshl_b32 s{sT0}, s{sGW}, 9')
A(f'v_add_u32 v{vTQ}, s{sT0}, v{vTA}')
A(f's_lshl_b32 s{sT0}, s{sIW}, 12')
A(f's_add_u32 s{sT0}, s{sT0}, {hx(384 - 4*1024)}')
A(f'v_lshl_add_u32 v{vT+2}, v{vLANE}, 10, s{sT0}')
A(f'v_cmp_lt_u32 vcc, 3, v{vLANE}')
A(f'v_cndmask_b32 v{vTQ}, v{vTQ}, v{vT+2}, vcc')
A('s_mov_b64 exec, 0xff')
vm(f'buffer_load_dword v{vTCH}, v{vTQ}, {srd(SWO)}, 0 offen', 'touch')
A('s_mov_b64 exec, -1')
if opt('tlb', 0):
    A(f's_mul_i32 s{sT0}, s{sCL}, {CLSZ}')
    A(f's_add_u32 s{sT0}, s{sT0}, {WS_CL + C_FLAG}')
    A('s_mov_b64 exec, 1')
    for pr in (4, 12, 16, 14, 18, 24): vm(f'global_load_dword v{vTCH}, v{vT+3}, {sp(pr)}', 'touch')
    vm(f'buffer_load_dword v{vTCH}, v{vT+3}, {srd(SWS)}, s{sT0} offen sc1', 'touch')
    A('s_mov_b64 exec, -1')
mk_srd(SX, 4, 2048*512*2)
mk_srd(SW1, 12, 512*1376*2)
mk_srd(SW2, 16, 1376*512*2)
mk_srd(SOUT, 24, 2048*512*2)
A(f's_mov_b32 s{sSPIN}, 0')
A(f's_mul_i32 s{sCB}, s{sCL}, {CLSZ}')
A(f's_add_u32 s{sCB}, s{sCB}, {WS_CL}')
A(f's_getreg_b32 s{sXCC}, hwreg(HW_REG_XCC_ID)')
A(f's_and_b32 s{sXCC}, s{sXCC}, 15')
A(f's_mul_i32 s{sWM}, s{sWAVE}, {128*6144}')
A(f's_lshl_b32 s{sT1}, s{sP}, 5')
A(f's_add_u32 s{sWM}, s{sWM}, s{sT1}')
t0, t1, t2, t3 = vT, vT+1, vT+2, vT+3
vRR, vC8, vFSW, vL8 = 92, 93, 94, 95
A(f'v_and_b32 v{t3}, 1, v{vLANE}')
A(f'v_lshl_add_u32 v{vWMO}, v{t3}, 4, v{vWMO}')
A(f'v_and_b32 v{vI}, 15, v{vLANE}')
A(f'v_lshrrev_b32 v{vG}, 4, v{vLANE}')
A(f'v_lshrrev_b32 v{t0}, 1, v{vG}')
A(f'v_and_b32 v{t1}, 1, v{vG}')
A(f'v_lshl_add_u32 v{t2}, v{t1}, 1, v{t0}')
A(f'v_lshl_add_u32 v{t2}, v{t3}, 3, v{t2}')
A(f's_lshl_b32 s{sT0}, s{sWAVE}, 6')
A(f's_add_u32 s{sT0}, s{sT0}, {L_P0S}')
A(f'v_lshl_add_u32 v{vP0A}, v{t2}, 2, s{sT0}')
A(f'v_and_b32 v{t3}, 7, v{vLANE}')
A(f'v_lshlrev_b32 v{vFLO}, 2, v{t3}')
A(f'v_lshlrev_b32 v{t3}, 4, v{t3}')
A(f'v_lshlrev_b32 v{t2}, 5, v{t1}')
A(f'v_xor_b32 v{t3}, v{t3}, v{t2}')
A(f'v_lshrrev_b32 v{vL8}, 3, v{vLANE}')
A(f's_and_b32 s{sT2}, s{sWAVE}, 1')
A(f's_lshl_b32 s{sT2}, s{sT2}, 6')
A(f'v_xor_b32 v{t1}, s{sT2}, v{t3}')
A(f'v_mul_u32_u24 v{vDQ}, 3072, v{vL8}')
A(f'v_add_u32 v{vDQ}, v{vDQ}, v{t1}')
A(f's_mul_i32 s{sSOFF}, s{sWAVE}, {8*3072}')
A(f's_lshl_b32 s{sT0}, s{sJ}, 7')
A(f's_add_u32 s{sSOFF}, s{sSOFF}, s{sT0}')
A(f's_mul_i32 s{sSLDS}, s{sWAVE}, 3072')
vWM = 96
def wmod_load_units(dst, tag, kind):
    U = []
    for n in range(4):
        U.append((f's_add_u32 s{sD0}, s{sWM}, {6144*n}', None, None))
        U.append((f'buffer_load_dwordx4 {vr(dst+4*n,4)}, v{vWMO}, {srd(SWMOD)}, s{sD0} offen', kind, tag))
    return U
l0 = label('Lnt')
R_(f's_sub_u32 s{sT1}, s{sCQ}, 1')
R_(f's_cmp_gt_u32 s{sT1}, 1')
R_(f's_cbranch_scc1 {l0}')
R_(f's_and_b32 s{sD0}, s{sP}, 3')
R_(f's_mul_i32 s{sD0}, s{sD0}, 6144')
R_(f's_add_u32 s{sD0}, s{sD0}, s{sWM}')
E0(f'buffer_load_dword v{vTCH}, v{vWMO}, {srd(SWMOD)}, s{sD0} offen', 'vm0', 'touch')
R_(f'{l0}:')
A(f'v_lshl_add_u32 v{vDW}, v{vL8}, 10, v{t3}')
A(f'v_xor_b32 v{vDW+1}, 64, v{vDW}')
A(f'v_add_u32 v{vDW+1}, 7168, v{vDW+1}')
A(f'v_add_u32 v{vDW+2}, {2*7168}, v{vDW}')
A(f'v_add_u32 v{vDW+3}, {2*7168}, v{vDW+1}')
A(f'v_lshl_add_u32 v{vDWO}, v{vL8}, 10, v{t1}')
A(f's_lshl_b32 s{sWOFF}, s{sWAVE}, 13')
A(f's_add_u32 s{sWOFF}, s{sWOFF}, s{sT0}')
A(f's_lshl_b32 s{sWLDS}, s{sWAVE}, 10')
A(f's_lshl_b32 s{sW4}, s{sWAVE}, 12')
A(f'v_mov_b32 v{vONE}, 0x3f803f80')
A(f'v_bfe_u32 v{vRR}, v{vLANE}, 2, 2')
A(f'v_lshrrev_b32 v{t1}, 1, v{vRR}')
A(f'v_and_b32 v{t2}, 1, v{vG}')
A(f'v_lshl_add_u32 v{vFSW}, v{t2}, 1, v{t1}')
A(f'v_and_b32 v{vC8}, 3, v{vLANE}')
A(f'v_lshlrev_b32 v{vC8}, 3, v{vC8}')
A(f'v_mul_u32_u24 v{t2}, 3072, v{vG}')
A(f'v_lshl_add_u32 v{t2}, v{vRR}, 7, v{t2}')
A(f'v_add_u32 v{t2}, v{t2}, v{vC8}')
A(f'v_xor_b32 v{t1}, s{sWAVE}, v{vFSW}')
A(f'v_lshl_add_u32 v{vTRQA}, v{t1}, 5, v{t2}')
A(f'v_add_u32 v{vTRQ}, {L_B}, v{vTRQA}')
A(f'v_lshl_add_u32 v{t3}, v{vG}, 3, v{vRR}')
A(f'v_lshl_add_u32 v{t2}, v{t3}, 7, v{vC8}')
A(f'v_add_u32 v{t2}, {L_B}, v{t2}')
for c in range(4):
    A(f's_add_u32 s{sT1}, s{sWAVE}, {c}')
    A(f's_and_b32 s{sT1}, s{sT1}, 3')
    A(f'v_xor_b32 v{t1}, s{sT1}, v{vFSW}')
    A(f'v_lshl_add_u32 v{vTRW+c}, v{t1}, 5, v{t2}')
A(f'v_mul_u32_u24 v{t0}, 384, v{t3}')
A(f'v_add_u32 v{t0}, v{t0}, v{vC8}')
A(f'v_add_u32 v{t0}, {L_B}, v{t0}')
A(f's_mul_i32 s{sT1}, s{sWAVE}, 3')
A(f's_mul_i32 s{sHB}, s{sJ}, 12')
A(f's_min_u32 s{sHB}, s{sHB}, 74')
A(f's_mul_i32 s{sS1OFF}, s{sWAVE}, {8*2752}')
A(f's_lshl_b32 s{sT0}, s{sHB}, 5')
A(f's_add_u32 s{sS1OFF}, s{sS1OFF}, s{sT0}')
A(f's_add_u32 s{sHB}, s{sHB}, s{sT1}')
A(f's_lshl_b32 s{sB1O}, s{sHB}, 5')
A(f's_lshl_b32 s{sHB}, s{sHB}, 9')
A(f's_add_u32 s{sHB}, s{sHB}, s{sCB}')
for tt in range(3):
    A(f'v_xor_b32 v{t1}, s{sT1}, v{vFSW}')
    A(f'v_lshl_add_u32 v{vTR1+tt}, v{t1}, 5, v{t0}')
    if tt < 2: A(f's_add_u32 s{sT1}, s{sT1}, 1')
for k in range(3):
    A(f's_and_b32 s{sT0}, s{sRL[k]}, 15')
    A(f's_lshl_b32 s{sT1}, s{sRL[k]}, 10')
    if k == 2:
        A(f's_cmp_lt_u32 s{sWAVE}, 2')
        A(f's_cselect_b32 s{sT1}, s{sT1}, 0x7ff00000')
    A(f'v_xor_b32 v{t0}, s{sT0}, v{vLANE}')
    A(f'v_lshl_add_u32 v{vHS+k}, v{t0}, 4, s{sT1}')
A(f'v_lshlrev_b32 v{t1}, 10, v{vI}')
for m in range(4):
    A(f'v_add_u32 v{t0}, {4*m}, v{vG}')
    A(f'v_xor_b32 v{t0}, v{t0}, v{vI}')
    A(f'v_lshl_add_u32 v{vAR+m}, v{t0}, 4, v{t1}')
    A(f'v_add_u32 v{vAR4+m}, 0x10000, v{vAR+m}')
for n in range(3):
    A(f'v_add_u32 v{t0}, {64*n}, v{vLANE}')
    A(f'v_mul_u32_u24 v{t1}, 2731, v{t0}')
    A(f'v_lshrrev_b32 v{t1}, 16, v{t1}')
    A(f'v_mul_u32_u24 v{t2}, 24, v{t1}')
    A(f'v_sub_u32 v{t2}, v{t0}, v{t2}')
    A(f'v_lshlrev_b32 v{t2}, 4, v{t2}')
    A(f'v_bfe_u32 v{t3}, v{t1}, 1, 1')
    A(f'v_lshlrev_b32 v{t3}, 5, v{t3}')
    A(f'v_xor_b32 v{t2}, v{t2}, v{t3}')
    A(f'v_xor_b32 v{t2}, s{sT2}, v{t2}')
    A(f'v_mul_u32_u24 v{t1}, 2752, v{t1}')
    A(f'v_add_u32 v{vD1+n}, v{t1}, v{t2}')
    if n: A(f'v_subrev_u32 v{vD1+n}, {n*1024}, v{vD1+n}')
A(f's_cmp_eq_u32 s{sWAVE}, 3')
A(f's_cselect_b32 s{sT0}, 0x7ffffff0, 0')
A(f'v_or_b32 v{vLAST}, s{sT0}, v{vOFF16}')
A(f's_mov_b32 s{sMSK}, 0x7f800000')
A(f's_cmp_eq_u32 s{sCL}, 0')
A(f's_cselect_b32 s{sMSK}, {hx(f2u(-4e9))}, s{sMSK}')
A(f'v_lshlrev_b32 v{t0}, 2, v{vG}')
for r in range(4):
    A(f'v_add_u32 v{t1}, {r}, v{t0}')
    A(f'v_cmp_le_u32 {sp(4+2*r)}, v{t1}, v{vI}')
A(f'v_and_b32 v{t1}, 1, v{vI}')
A(f'v_cmp_eq_u32 {sp(12)}, 1, v{t1}')
A(f'v_mov_b32 v{t2}, 0xffff')
A(f'v_mov_b32 v{t3}, 0xffff0000')
A(f'v_cndmask_b32 v{t2}, v{t2}, v{t3}, {sp(12)}')
A(f'v_add_u32 v{t1}, v{t1}, v{t0}')
for k in range(2):
    A(f'v_cmp_le_u32 vcc, v{t1}, v{vI}')
    A(f'v_cndmask_b32 v{vM+2+k}, 0, v{t2}, vcc')
    A(f'v_xor_b32 v{vM+k}, v{vM+2+k}, v{t2}')
    if k == 0: A(f'v_add_u32 v{t1}, 2, v{t1}')
A(f'v_lshrrev_b32 v{t0}, 1, v{vG}')
A(f'v_and_b32 v{t1}, 1, v{vG}')
A(f'v_lshlrev_b32 v{t0}, 8, v{t0}')
A(f'v_lshl_add_u32 v{t0}, v{vI}, 4, v{t0}')
A(f'v_lshl_add_u32 v{vPO}, v{t1}, 14, v{t0}')
A(f'v_mul_u32_u24 v{t1}, {HRT}, v{t1}')
A(f'v_add_u32 v{vPH}, v{t1}, v{t0}')
A(f's_lshl_b32 s{sOST}, s{sJ}, 11')
A(f's_lshl_b32 s{sT1}, s{sWAVE}, 9')
A(f's_add_u32 s{sOST}, s{sOST}, s{sT1}')
A(f's_add_u32 s{sOST}, s{sOST}, s{sCB}')
A(f's_add_u32 s{sFL}, s{sCB}, {C_FLAG}')
A(f's_lshl_b32 s{sT0}, s{sJ}, 2')
A(f'v_mov_b32 v{vZ}, s{sT0}')
A(f's_lshl_b32 s{sT0}, s{sJ}, 7')
A(f's_lshl_b32 s{sT1}, s{sWAVE}, 5')
A(f's_add_u32 s{sT0}, s{sT0}, s{sT1}')
A(f's_lshl_b32 s{sXO}, s{sR0}, 10')
A(f's_add_u32 s{sXO}, s{sXO}, s{sT0}')
A(f's_add_u32 s{sT0}, s{sT0}, {L_MODT}')
A(f'v_lshl_add_u32 v{vMC}, v{vG}, 3, s{sT0}')
A(f'v_lshlrev_b32 v{vO8}, 3, v{vLANE}')
A(f's_lshl_b32 s{sSB}, s{sWAVE}, 8')
A(f's_add_u32 s{sSB}, s{sSB}, s{sCB}')
A(f's_add_u32 s{sSB}, s{sSB}, {C_ST}')
A(f'v_mul_u32_u24 v{vSTA}, 6144, v{vG}')
A(f'v_lshl_add_u32 v{vSTA}, v{vI}, 4, v{vSTA}')
A(f'v_lshrrev_b32 v{t0}, 2, v{vI}')
A(f'v_mov_b32 v{vXA}, {L_ONES}')
A(f'v_mov_b32 v{t2}, {L_MODT+4*1024}')
A(f'v_cmp_eq_u32 vcc, 0, v{t0}')
A(f'v_cndmask_b32 v{vXA}, v{vXA}, v{t2}, vcc')
A(f'v_mov_b32 v{t2}, {L_MODT+3*1024}')
A(f'v_cmp_eq_u32 vcc, 1, v{t0}')
A(f'v_cndmask_b32 v{vXA}, v{vXA}, v{t2}, vcc')
A(f'v_lshl_add_u32 v{vXA}, v{vG}, 4, v{vXA}')
A(f's_lshl_b32 s{sGX}, s{sCL}, 6')
A(f's_add_u32 s{sGX}, s{sGX}, {WS_XCC}')
A(f's_lshl_b32 s{sGM}, s{sWAVE}, 11')
A(f's_add_u32 s{sGM}, s{sGM}, {WS_MOD + 4096}')
vTP, vTW2 = 250, 178
sXT = sWMB
A(f'v_and_b32 v{t0}, 7, v{vLANE}')
A(f'v_lshlrev_b32 v{t0}, 4, v{t0}')
A(f'v_lshl_add_u32 v{vTP}, v{vL8}, 10, v{t0}')
A(f'v_add_u32 v{vTP+4}, 8192, v{vTP}')
A(f's_lshl_b32 s{sXT}, s{sWAVE}, 4')
A(f's_add_u32 s{sXT}, s{sXT}, s{sR0}')
A(f's_lshl_b32 s{sXT}, s{sXT}, 10')
A(f's_lshl_b32 s{sT0}, s{sJ}, 7')
A(f's_add_u32 s{sXT}, s{sXT}, s{sT0}')
A(f's_lshl_b32 s{sT0}, s{sWAVE}, 5')
A(f's_add_u32 s{sT0}, s{sT0}, {L_ST1}')
A(f'v_lshl_add_u32 v{t0}, v{vI}, 7, s{sT0}')
A(f'v_lshl_add_u32 v{vXO}, v{vG}, 3, v{t0}')
A(f's_mul_i32 s{sT0}, s{sGW}, {11*128}')
A(f'v_min_u32 v{t0}, {10*128}, v{vTA}')
A(f'v_add_u32 v{vTP+1}, s{sT0}, v{t0}')
A(f'v_lshl_add_u32 v{vTP+2}, v{vI}, 1, s{sB1O}')
A(f's_lshl_b32 s{sT0}, s{sJ}, 7')
A(f'v_min_u32 v{t0}, 31, v{vLANE}')
A(f'v_lshl_add_u32 v{vTP+3}, v{t0}, 2, s{sT0}')
A(f's_mul_i32 s{sT0}, s{sIW}, {11*1024}')
A(f's_add_u32 s{sT0}, s{sT0}, {hx(384 - 11*1024)}')
A(f'v_min_u32 v{t0}, 21, v{vLANE}')
A(f'v_lshl_add_u32 v{t0}, v{t0}, 10, s{sT0}')
A(f'v_cmp_lt_u32 vcc, 10, v{vLANE}')
A(f'v_cndmask_b32 v{vTW2}, v{vTP+1}, v{t0}, vcc')
vON = 180
for r in range(4): A(f'v_mov_b32 v{vON+r}, 0x3f803f80')
A(f'v_add_u32 v{t1}, {L_ONES}, v{vOFF16}')
lg(f'ds_write_b128 v{t1}, {vr(vON,4)}', 'ones')
stamp('setup', 1)
l0 = label('Lnw')
R_(f's_cmp_eq_u32 s{sCQ}, 3')
R_(f's_cbranch_scc1 {l0}')
for u in wmod_load_units(vWM, 'wmodA', 'vm0'): emit(u)
R_(f'{l0}:')

def q_lds(n):
    if n == 0: return 65536
    if n <= 5: return L_B + (n-1)*12288
    if n <= 11: return L_A1 + (n-6)*12288
    return L_B + (n-12)*12288
def q_enq(n):
    for p in range(3):
        bg_dma(f's_add_u32 m0, s{sSLDS}, {q_lds(n)}', f's_add_u32 s{sD0}, s{sSOFF}, {n*32*3072}',
               f'buffer_load_dwordx4 v{vDQ}, {srd(SWQKV)}, s{sD0} offen offset:{p*1024} lds', f'q{n}')
def q_read(lo_, hi_, E):
    for n in range(lo_, hi_):
        for p in range(3):
            a = 64*p + 4*n
            base, off = (vTRQA, q_lds(n) - L_A1) if q_lds(n) < L_B else (vTRQ, q_lds(n) - L_B)
            if n == 0: base, off = vT+2, 0
            off += p*1024
            E(f'ds_read_b64_tr_b16 {ar(a,2)}, v{base} offset:{off}', 'lg', f'qr{n}')
            E(f'ds_read_b64_tr_b16 {ar(a+2,2)}, v{base} offset:{off+512}', 'lg', f'qr{n}')
def wo_enq(kk):
    bg_dma(f's_add_u32 m0, s{sWLDS}, {L_A1 + kk*4096}', f's_add_u32 s{sD0}, s{sWOFF}, {kk*32*1024}',
           f'buffer_load_dwordx4 v{vDWO}, {srd(SWO)}, s{sD0} offen lds', 'wo')

for kk in range(opt('xat', 4)): wo_enq(kk)
for k in range(3):
    bg(f'buffer_load_dwordx4 {vr(vXR0+8*k+4,4)}, v{vOFF16}, {srd(SX)}, s{sRG[k]} offen', 'vm', 'x')
for kk in range(opt('xat', 4), 16): wo_enq(kk)
for n in range(6): q_enq(n)
bg_pop(opt('pre0', 2))
wait('E')
stamp('E', 1)
A(f'v_readfirstlane_b32 s{sTAG}, v{vE}')
A(f's_mul_i32 s{sTAG}, s{sTAG}, 1664525')
A(f's_add_u32 s{sTAG}, s{sTAG}, 1013904223')
if TWICE:
    R_(f'v_readlane_b32 s{sT0}, v31, 42'); R_('s_nop 3'); R_(f's_add_u32 s{sTAG}, s{sTAG}, s{sT0}')
unpack(vS, vCV); unpack(vS+2, vCV+1)
for n in range(4): A(f'v_mul_f32 v{88+n}, {hx(f2u(-LOG2E))}, v{vS+n}')
for n in range(4): A(f'v_exp_f32 v{88+n}, v{88+n}')
for n in range(4): A(f'v_add_f32 v{88+n}, 1.0, v{88+n}')
for n in range(4): A(f'v_rcp_f32 v{88+n}, v{88+n}')
for n in range(4): A(f'v_mul_f32 v{vS+n}, v{vS+n}, v{88+n}')
A(f'v_cvt_pk_bf16_f32 v88, v{vS}, v{vS+1}')
A(f'v_cvt_pk_bf16_f32 v89, v{vS+2}, v{vS+3}')
unpack(vS, 88); unpack(vS+2, 89)
def p0_body(E, wm, ac, tp, pk=True):
    for n in range(4):
        for d in range(4): unpack(tp+2*d, wm+4*n+d, E)
        for d in range(4):
            if not pk:
                for h in range(2):
                    E(f'{"v_mul_f32" if n == 0 else "v_fmac_f32"} v{ac+2*d+h}, v{tp+2*d+h}, v{vS+n}')
            elif n == 0: E(f'v_pk_mul_f32 {vr(ac+2*d,2)}, {vr(tp+2*d,2)}, {vr(vS,2)} op_sel_hi:[1,0]')
            else:
                b = vS + (n & 2); o = n & 1
                E(f'v_pk_fma_f32 {vr(ac+2*d,2)}, {vr(tp+2*d,2)}, {vr(b,2)}, {vr(ac+2*d,2)} op_sel:[0,{o},0] op_sel_hi:[1,{o},1]')
    for e in (0, 2, 4, 6): E(f'v_permlane32_swap_b32 v{ac+e}, v{ac+e+1}')
    for e in (0, 2, 4, 6): E(f'v_add_f32 v{ac+e}, v{ac+e}, v{ac+e+1}')
    for e in (0, 4): E(f'v_permlane16_swap_b32 v{ac+e}, v{ac+e+2}')
    for e in (0, 4): E(f'v_add_f32 v{ac+e}, v{ac+e}, v{ac+e+2}')
    for n in (8, 4, 2):
        ror_add(ac, n, E); ror_add(ac+4, n, E)
    E(f'ds_write_b32 v{vP0A}, v{ac}', 'lg', 'p0w')
    E(f'ds_write_b32 v{vP0A}, v{ac+4} offset:16', 'lg', 'p0w')
def p0_publish(tb):
    R_(f'v_lshlrev_b32 v{tb+8}, 1, v{vFLO}')
    R_(f'v_add_u32 v{tb+9}, {L_P0S}, v{tb+8}')
    R_(f's_lshl_b32 s{sT0}, s{sP}, 6')
    for w in range(4): R_(f'ds_read_b64 {vr(tb+2*w,2)}, v{tb+9} offset:{64*w}')
    lk = label('Lperm')
    R_(f's_cmp_lg_u32 s{sCQ}, 0')
    R_(f's_cbranch_scc1 {lk}')
    R_(f'v_bfe_u32 v{tb+9}, v{vLANE}, 1, 1')
    R_(f'v_and_b32 v{tb+8}, 1, v{vLANE}')
    R_(f'v_lshlrev_b32 v{tb+8}, 3, v{tb+8}')
    R_(f'v_lshl_add_u32 v{tb+8}, v{tb+9}, 10, v{tb+8}')
    R_(f'v_bfe_u32 v{tb+9}, v{vLANE}, 2, 1')
    R_(f'v_lshl_add_u32 v{tb+8}, v{tb+9}, 4, v{tb+8}')
    R_(f's_and_b32 s{sT1}, s{sP}, 31')
    R_(f's_lshl_b32 s{sT1}, s{sT1}, 5')
    R_(f's_sub_u32 s{sT0}, s{sT0}, s{sT1}')
    R_(f'{lk}:')
    R_(f's_add_u32 s{sT0}, s{sT0}, {WS_MOD}')
    R_('s_waitcnt lgkmcnt(0)')
    R_(f'v_pk_add_f32 {vr(tb,2)}, {vr(tb,2)}, {vr(tb+2,2)}')
    R_(f'v_pk_add_f32 {vr(tb+4,2)}, {vr(tb+4,2)}, {vr(tb+6,2)}')
    R_(f'v_pk_add_f32 {vr(tb,2)}, {vr(tb,2)}, {vr(tb+4,2)}')
    R_(f'v_cvt_pk_bf16_f32 v{tb}, v{tb}, v{tb+1}')
    R_(f'v_mov_b32 v{tb+1}, s{sTAG}')
    R_(f's_mov_b64 exec, 0xff')
    R_(f'buffer_store_dwordx2 {vr(tb,2)}, v{tb+8}, {srd(SWS)}, s{sT0} offen sc1')
    R_(f's_mov_b64 exec, -1')
l0 = label('Lp0e')
R_(f's_cmp_eq_u32 s{sCQ}, 3')
R_(f's_cbranch_scc1 {l0}')
saveV, saveL, saveB = list(VM.q), list(LG.q), list(BG.q)
wait('wmodA')
bg_on(opt('ip0', 60))
p0_body(A, vWM, 112, 120)
bg_off()
npop = len(saveB) - len(BG.q)
l3 = label('Lp0j')
R_(f's_branch {l3}')
R_(f'{l0}:')
VM.q, LG.q = saveV, saveL
for u in saveB[:npop]: emit(u)
R_(f'{l3}:')
wait_all_lg()
R_('s_barrier')
l0, l1 = label('Lpub0'), label('Lpub0')
R_(f's_cmp_lg_u32 s{sWAVE}, 0')
R_(f's_cbranch_scc1 {l0}')
R_(f's_cmp_eq_u32 s{sCQ}, 3')
R_(f's_cbranch_scc1 {l1}')
p0_publish(vWM)
R_(f'{l1}:')
R_(f'v_mov_b32 v{vT+2}, s{sTAG}')
R_(f'v_mov_b32 v{vT+1}, s{sXCC}')
R_(f'v_lshlrev_b32 v{vT}, 1, v{vZ}')
R_('s_mov_b64 exec, 1')
R_(f'buffer_store_dwordx2 {vr(vT+1,2)}, v{vT}, {srd(SWS)}, s{sGX} offen sc1')
R_('s_mov_b64 exec, -1')
R_(f'{l0}:')
stamp('p0 early done')
bg_pop(opt('qpre', 12))
bg_on(opt('iln', 60))
wait('x')
sa = [88, 89, 90, 91]; sq = [92, 93, 94, 95]
for d in range(4):
    for q in range(3):
        A(f'v_dot2_f32_bf16 v{sa[q]}, v{vXR0+8*q+4+d}, v{vONE}, {"0" if d==0 else "v%d"%sa[q]}')
    for q in range(3):
        A(f'v_dot2_f32_bf16 v{sq[q]}, v{vXR0+8*q+4+d}, v{vXR0+8*q+4+d}, {"0" if d==0 else "v%d"%sq[q]}')
A(f'v_mov_b32 v{sa[3]}, 0'); A(f'v_mov_b32 v{sq[3]}, 0')
U = []
for q in range(3):
    for d in range(4): unpack(vXR0+8*q+2*d, vXR0+8*q+4+d, U.append)
C = []
red32(sa[0], sa[2], C.append); red32(sa[1], sa[3], C.append); red32(sq[0], sq[2], C.append); red32(sq[1], sq[3], C.append)
red16(sa[0], sa[1], C.append); red16(sq[0], sq[1], C.append)
for n in (8, 4, 2, 1):
    ror_add(sa[0], n, C.append); ror_add(sq[0], n, C.append)
C.append(f'v_mul_f32 v{sa[0]}, {hx(f2u(1/512))}, v{sa[0]}')
C.append(f'v_mul_f32 v{sq[0]}, {hx(f2u(1/512))}, v{sq[0]}')
C.append(f'v_fma_f32 v{sq[0]}, -v{sa[0]}, v{sa[0]}, v{sq[0]}')
C.append(f'v_max_f32 v{sq[0]}, 0, v{sq[0]}')
C.append(f'v_add_f32 v{sq[0]}, {hx(f2u(1e-5))}, v{sq[0]}')
C.append(f'v_rsq_f32 v{sq[0]}, v{sq[0]}')
C.append(f'v_mul_f32 v{sa[0]}, -v{sa[0]}, v{sq[0]}')
for q in range(3):
    C.append(f'v_readlane_b32 s{sLN+2*q}, v{sq[0]}, {16*q}')
    C.append(f'v_readlane_b32 s{sLN+2*q+1}, v{sa[0]}, {16*q}')
while C:
    if U: A(U.pop(0))
    A(C.pop(0))
for q in range(3):
    b = vXR0 + 8*q
    for d in range(4):
        A(f'v_pk_fma_f32 {vr(b+2*d,2)}, {vr(b+2*d,2)}, {sp(sLN+2*q)}, {sp(sLN+2*q)} op_sel:[0,0,1] op_sel_hi:[1,0,1]')
bg_off()
stamp('ln done', 1)
vG1R, vXC, vGS = 128, 144, 148
A(f'v_lshlrev_b32 v{vT+4}, 1, v{vFLO}')
A(f's_mov_b32 s{sT2}, {WS_MOD}')
def gather1_issue(E):
    for n in range(4):
        E(f'buffer_load_dwordx4 {vr(vG1R+4*n,4)}, v{vOFF16}, {srd(SWS)}, s{sT2} offen offset:{n*1024} sc1', 'vm', 'g1')
    E(f'buffer_load_dwordx2 {vr(vXC,2)}, v{vT+4}, {srd(SWS)}, s{sGX} offen sc1', 'vm', 'g1')
A(f'v_add_u32 v{vT+2}, 0x10000, v{vTRQA}')
A(f'v_subrev_u32 v{vT+3}, {L_B}, v{vTRW}')
NG = opt('ng', 4)
k_ = max(i_ for i_, u in enumerate(BG.q) if u[2] == f'q{NG}') + 1
rest = list(BG.q)[k_:]
for _ in rest: BG.q.pop()
gather1_issue(bg)
bg(f'buffer_load_dword v{vTCH}, v{vFLO}, {srd(SWS)}, s{sFL} offen sc1', 'vm', 'touch')
bg(f'buffer_load_dword v{vTCH}, v{vFLO}, {srd(SWS)}, s{sFL} offen offset:128 sc1', 'vm', 'touch')
BG.q.extend(rest)
IR = opt('ird', 44)
QS = dict(read=0, enq=6)
def q_pred(m): return 0 if m <= 11 else m - 11
def q_pre(until, landed):
    bg_until(f'q{min(until, QS["enq"]-1)}')
    wait(f'q{landed}', f'qr{QS["read"]-1}')
def q_post(landed, pace=True):
    while QS['enq'] < 16 and q_pred(QS['enq']) < QS['read']:
        q_enq(QS['enq']); QS['enq'] += 1
    if pace: bg_pop(opt('qpp', 2)); bg_on(IR)
    if QS['read'] == 0:
        for k2 in range(16):
            lg(f'ds_read_b64_tr_b16 {ar(192+4*k2,2)}, v{vT+3} offset:{k2*4096}', 'wor')
            lg(f'ds_read_b64_tr_b16 {ar(194+4*k2,2)}, v{vT+3} offset:{k2*4096+512}', 'wor')
    q_read(QS['read'], landed + 1, A)
    QS['read'] = max(QS['read'], landed + 1)
    bg_off()
def qbar(name, until, landed):
    until, landed = opt(name + 'u', until), opt(name + 'l', landed)
    q_pre(until, landed); R_('s_barrier'); stamp(name, 1); q_post(landed)
qbar('B1', 3, 0)
qbar('B2', 5, 1)
bg_until(f'q{opt("gq_", 9)}')
def tag_check(regs, t):
    R_(f'v_xor_b32 v{t}, s{sTAG}, v{regs[0]}')
    for r in regs[1:]:
        R_(f'v_xor_b32 v{t+1}, s{sTAG}, v{r}')
        R_(f'v_or_b32 v{t}, v{t}, v{t+1}')
    R_(f'v_cmp_ne_u32 vcc, 0, v{t}')
def checked(tag, issue, regs):
    wait(tag)
    lp, ld = label('Lg'), label('Lgok')
    tag_check(regs, vT)
    R_(f's_cbranch_vccz {ld}')
    R_(f'{lp}:')
    issue(lambda t, k, g: R_(t))
    R_('s_waitcnt vmcnt(0)')
    tag_check(regs, vT)
    R_(f's_cbranch_vccz {ld}')
    spin_guard(lp, ld)
checked('g1', gather1_issue, [vG1R+1+2*k for k in range(9)])
stamp('mod arrived')
for d in range(4): unpack(vGS+2*d, vG1R+8+2*d)
for d in range(4): A(f'v_pk_add_f32 {vr(vGS+2*d,2)}, {vr(vGS+2*d,2)}, 1.0 op_sel_hi:[1,0]')
for d in range(4):
    A(f'v_cvt_pk_bf16_f32 v{vG1R+8+2*d}, v{vGS+2*d}, v{vGS+2*d+1}')
    unpack(vGS+8+2*d, vG1R+2*d)
for d in range(4): unpack(vGS+2*d, vG1R+8+2*d)
A(f's_add_u32 s{sT2}, s{sCB}, {C_A}')
for q in range(3):
    b = vXR0 + 8*q
    for d in range(4): A(f'v_pk_fma_f32 {vr(b+2*d,2)}, {vr(b+2*d,2)}, {vr(vGS+2*d,2)}, {vr(vGS+8+2*d,2)}')
    for d in range(4): A(f'v_cvt_pk_bf16_f32 v{b+d}, v{b+2*d}, v{b+2*d+1}')
    vm(f'buffer_store_dwordx4 {vr(b,4)}, v{vHS+q}, {srd(SWS)}, s{sT2} offen sc1', 'st')
R_(f'v_cmp_ne_u32 vcc, s{sXCC}, v{vXC}')
R_(f's_cmp_eq_u64 vcc, 0')
R_(f's_cselect_b32 s{sLOCAL}, {0 if FORCE_GLOBAL else 1}, 0')
vG2 = 96
def gather2_issue(E):
    for n in range(2):
        E(f'buffer_load_dwordx4 {vr(vG2+4*n,4)}, v{vOFF16}, {srd(SWS)}, s{sGM} offen offset:{n*1024} sc1', 'vm', 'g2')
gather2_issue(E0)
qbar('B3', 11, 5)
checked('g2', gather2_issue, [vG2+1, vG2+3, vG2+5, vG2+7])
R_(f's_cmp_eq_u32 s{sWAVE}, 2')
R_(f's_cselect_b32 s{sT1}, 1.0, 0')
for k in range(4):
    unpack(vT+2, vG2+2*k)
    A(f'v_add_f32 v{vT+2}, s{sT1}, v{vT+2}')
    A(f'v_add_f32 v{vT+3}, s{sT1}, v{vT+3}')
    A(f'v_cvt_pk_bf16_f32 v{vG2+8+k}, v{vT+2}, v{vT+3}')
A(f's_add_u32 s{sT0}, s{sWLDS}, {L_MODT + 2048}')
A(f'v_add_u32 v{vT+4}, s{sT0}, v{vO8}')
for n in range(2): lg(f'ds_write_b64 v{vT+4}, {vr(vG2+8+2*n,2)} offset:{n*512}', 'modw')
wait(None, 'modw')
q_pre(opt('B4u', 10), opt('B4l', 7))

def code_touch(E):
    E(f's_and_b32 s{sT0}, s{sIW}, 31')
    E(f's_mul_i32 s{sT0}, s{sT0}, {CLW*128}')
    E(f'v_min_u32 v{vT+1}, {(CLW-1)*128}, v{vTA}')
    E(f'v_add_u32 v{vT+1}, s{sT0}, v{vT+1}')
    E(f'global_load_dword v{vTCH}, v{vT+1}, s[0:1]', 'vm', 'touch')
EARLIEST = {}
def flag(h, tag, E=E0, ct=False):
    l, l2 = label('Lpub'), label('Lpub')
    R_(f's_cmp_lg_u32 s{sWAVE}, 0')
    R_(f's_cbranch_scc1 {l}')
    R_(f's_add_u32 s{sT1}, s{sTAG}, {h+1}')
    R_(f'v_mov_b32 v{vT}, s{sT1}')
    R_('s_mov_b64 exec, 1')
    R_(f's_cmp_eq_u32 s{sLOCAL}, 1')
    R_(f's_cbranch_scc1 {l2}')
    R_(f'buffer_store_dword v{vT}, v{vZ}, {srd(SWS)}, s{sFL} offen offset:{32*h} sc1')
    R_(f's_mov_b64 exec, -1')
    R_(f's_branch {l}')
    R_(f'{l2}:')
    R_(f'buffer_store_dword v{vT}, v{vZ}, {srd(SWS)}, s{sFL} offen offset:{32*h}')
    R_('s_mov_b64 exec, -1')
    R_(f'{l}:')
    R_(f'; pub {h}')
    BG.deadline = min(BG.dl0, max(M.t + M.SKEW + 300, EARLIEST.get(h, 0)))
    if opt('pt', 0):
        for t in STORES[tag]: E(t, 'vm', 'touch')
    STORES[tag] = []
    if ct and opt('ct', 1): code_touch(E0)
def publish(h, tag='st', ltag=None, ct=True):
    wait(tag, ltag)
    R_('s_barrier')
    flag(h, tag, E0, ct)
def poll_issue(h, E=E0):
    E(f'buffer_load_dword v{vFLV}, v{vFLO}, {srd(SWS)}, s{sFL} offen offset:{32*h} sc1', 'vm', 'poll')
POLLED = set()
def want_seen(h, earliest=0): return max(M.pubs[h] + M.SKEW + 300, earliest)
def poll_maybe(h, earliest=0, force=False):
    if h in POLLED or h not in M.pubs: return
    if force or M.t >= max(M.pubs[h] + M.SKEW - 260, earliest - 800):
        bg_front(lambda: poll_issue(h, bg)); bg_until('poll'); POLLED.add(h)
        BG.deadline = min(BG.dl0, max(M.done['poll'], earliest) + opt('behind', 700))
TASKS = []; TDONE = set()
def task(name, ready, action): TASKS.append((name, ready, action))
def service(force=None):
    while True:
        cand = sorted(((r(), i) for i, (nm, r, a) in enumerate(TASKS)), key=lambda z: z[0])
        cand = [c for c in cand if c[0] < 1e8]
        if not cand:
            assert force is None or force in TDONE, force
            return
        tm, i = cand[0]
        if tm <= M.t + 20 or (force is not None and force not in TDONE):
            nm, r, a = TASKS.pop(i)
            if tm > M.t + 20: bg_fill()
            a(); TDONE.add(nm)
        else: return
def t_pub(h, tag, ct=False, after=None):
    def act():
        wait(tag); xbar('mt', 0); flag(h, tag, E0, ct); stamp(f'pub{h}', 4)
        if after: after()
    task(f'pub{h}', lambda: M.done[tag], act)
def t_seen(h, then, pre=lambda: True, earliest=0):
    def rp(): return max(M.pubs[h] + M.SKEW - 260, earliest - 800) if h in M.pubs else 1e9
    task(f'poll{h}', rp, lambda: poll_maybe(h, earliest, True))
    def act():
        poll_check(h); stamp(f'seen{h}', 4); then()
    task(f'seen{h}', lambda: max(M.done['poll'], earliest) if h in POLLED and pre() else 1e9, act)
def until_landed(tag):
    bg_until(tag)
    while True:
        c = sorted((r(), nm) for nm, r, a in TASKS)
        if c and c[0][0] <= M.done[tag]: service(c[0][1])
        else: break
    bg_fill()
def fill_until(cond, fillers):
    for f in fillers:
        service()
        if cond(): return
        f()
    service()
def win(dl0=1e9):
    BG.dl0 = dl0; bg_auto(dl0)
def poll_check(h):
    pass
    R_(f's_add_u32 s{sT1}, s{sTAG}, {h+1}')
    wait('poll')
    lp, ld = label('Lw'), label('Lwok')
    R_(f'v_cmp_ne_u32 vcc, s{sT1}, v{vFLV}')
    R_(f's_cbranch_vccz {ld}')
    R_(f'{lp}:')
    R_(f'buffer_load_dword v{vFLV}, v{vFLO}, {srd(SWS)}, s{sFL} offen offset:{32*h} sc1')
    R_('s_waitcnt vmcnt(0)')
    R_(f'v_cmp_ne_u32 vcc, s{sT1}, v{vFLV}')
    R_(f's_cbranch_vccz {ld}')
    spin_guard(lp, ld)
def await_(h):
    poll_issue(h); poll_check(h)
sQ = sLN
def tile_enq(rt, tag):
    for j in range(4):
        bg_dma(f's_add_u32 m0, s{sW4}, {L_A1 + rt*16384}', f's_add_u32 s{sD0}, s{sQ}, {rt*16384}',
               f'buffer_load_dwordx4 v{vOFF16}, {srd(SWS)}, s{sD0} offen offset:{j*1024} sc1 lds', f'{tag}{rt}')
A(f's_add_u32 s{sQ}, s{sT2}, s{sW4}')
publish(0)
stamp('h published')
q_post(opt('B4l', 7))
bg_until(f'q{opt("pq", 14)}')
poll_issue(0)
qbar('B5', 14, 11)
bg_flush()
vGA, vGB, vGP, vSP, vGG = 224, 228, 232, 236, 240
A(f'v_and_b32 v{vT+5}, {hx(~8)}, v{vMC}')
A(f'v_add_u32 v{vT+1}, {L_MODT}, v{vOFF16}')
lg(f'ds_read_b128 {vr(144,4)}, v{vT+1} offset:{4*1024}', 'c')
lg(f'ds_read_b128 {vr(148,4)}, v{vT+1} offset:{3*1024}', 'c')
lg(f'ds_read_b64 {vr(vGA+2,2)}, v{vMC} offset:{2*1024}', 'c')
lg(f'ds_read_b64 {vr(vGB+2,2)}, v{vMC} offset:{4*1024}', 'c')
lg(f'ds_read_b128 {vr(vGP,4)}, v{vT+5} offset:{4*1024}', 'c')
lg(f'ds_read_b128 {vr(vSP,4)}, v{vT+5} offset:{3*1024}', 'c')
wait(None, 'c')
q5 = [244, 245, 246, 247, 248]
for d in range(4):
    c = lambda r: '0' if d == 0 else f'v{r}'
    A(f'v_dot2_f32_bf16 v{q5[0]}, v{144+d}, v{vONE}, {c(q5[0])}')
    A(f'v_dot2_f32_bf16 v{q5[1]}, v{144+d}, v{144+d}, {c(q5[1])}')
    A(f'v_dot2_f32_bf16 v{q5[2]}, v{148+d}, v{vONE}, {c(q5[2])}')
    A(f'v_dot2_f32_bf16 v{q5[3]}, v{148+d}, v{148+d}, {c(q5[3])}')
    A(f'v_dot2_f32_bf16 v{q5[4]}, v{144+d}, v{148+d}, {c(q5[4])}')
L_ = lo
for b in (vGA, vGB):
    unpack(b, b+2, lo); unpack(b+2, b+3, lo)
red32(q5[0], q5[2], L_); red32(q5[1], q5[3], L_)
L_(f'v_mov_b32 v{q5[4]+1}, v{q5[4]}'); lo_gap(1)
red16(q5[0], q5[1], L_); red32(q5[4], q5[4]+1, L_)
L_(f'v_mov_b32 v{q5[4]+1}, v{q5[4]}'); lo_gap(1); red16(q5[4], q5[4]+1, L_)
for n in (8, 4, 2, 1):
    lo_gap(1); ror_add(q5[0], n, L_); ror_add(q5[4], n, L_)
L_(f'v_mul_f32 v{q5[0]}, {hx(f2u(1/512))}, v{q5[0]}')
L_(f'v_mul_f32 v{q5[4]}, {hx(f2u(1/512))}, v{q5[4]}')
for k in range(4): L_(f'v_readlane_b32 s{sG+k}, v{q5[0]}, {16*k}')
L_(f'v_readlane_b32 s{sG+4}, v{q5[4]}, 0')

poll_check(0)
stamp('hop h seen')
QL = opt('B6l', 13)
q_pre(15, QL); R_('s_barrier')
assert QS['read'] >= 12 and QS['enq'] == 16
vWB, vLA = 224, 240
def touch_batch():
    bg(f'buffer_load_dword v{vTCH}, v{vTP+1}, {srd(SW1)}, 0 offen', 'vm', 'touch')
    for tt in range(3): bg(f'global_load_ushort v{vBI+tt}, v{vTP+2}, {sp(sB1)} offset:{32*tt}', 'vm', 'b1')
    bg(f's_mov_b32 m0, {L_B2}')
    bg(f'global_load_lds_dword v{vTP+3}, {sp(sB2)}', 'vm', 'b2')
    bg(f'buffer_load_dword v{vTCH}, v{vZ}, {srd(SOUT)}, s{sXO} offen', 'vm', 'touch')
    for h in range(2):
        bg(f's_lshl_b32 m0, s{sWLDS}, 1')
        bg(f's_add_u32 m0, m0, {L_ST1 + 1024*h}')
        bg(f'buffer_load_dwordx4 v{vTP + (4 if h else 0)}, {srd(SX)}, s{sXT} offen lds ;k=mall,8', 'vm', 'xr')
    BG.m0 = None
def w2_touch():
    bg(f'buffer_load_dword v{vTCH}, v{vTW2}, {srd(SW2)}, 0 offen', 'vm', 'touch')
TPOS = opt('tpos', 3)
for rt in range(TPOS): tile_enq(rt, 'a')
touch_batch()
if opt('w2t', 0) == 0: w2_touch()
for rt in range(TPOS, 5): tile_enq(rt, 'a')
bg_pop(opt('hpre', 14))
q_read(QS['read'], QL + 1, A)

NA = min(2, opt('na', 2))
def w1_lds(n):
    if n == 15: return 65536
    if 5 <= n < 5 + NA: return 32768 + (n - 5)*12288
    return L_B + ((n if n < 5 else n - NA) % 5)*12288
def w1_enq(*ns):
    for n in ns:
        for p in range(3):
            bg_dma(f's_add_u32 m0, s{sSLDS}, {w1_lds(n)}', f's_add_u32 s{sD0}, s{sS1OFF}, {n*32*2752}',
                   f'buffer_load_dwordx4 v{vD1+p}, {srd(SW1)}, s{sD0} offen offset:{p*1024} lds', f'w{n}')
vTR1B = vAR4; vTR1C = vAR
W1ORD = list(range(5 + NA)) + [15] + list(range(5 + NA, 15))
class W1:
    enq = 0; landed = 0; read = 0; done = 0; gate15 = False; afree = 0
def w1_can():
    if W1.enq >= 16: return False
    n = W1ORD[W1.enq]
    if n == 15: return W1.gate15
    if n < 5: return True
    if n < 5 + NA: return w1_lds(n) + 12288 <= W1.afree
    prev = n - NA - 5 if n - NA - 5 < 5 else n - 5
    return W1ORD.index(prev) < W1.done
def w1_more(k):
    for _ in range(k):
        if not w1_can(): return
        w1_enq(W1ORD[W1.enq]); W1.enq += 1
def w1_pre(back):
    tgt = max(W1.landed, W1.enq - back)
    if tgt > W1.landed: wait(f'w{W1ORD[tgt-1]}')
    if W1.read > W1.done: wait(None, f'wr{W1ORD[W1.read-1]}')
    W1.nl, W1.nd = tgt, W1.read
def w1_post():
    W1.landed, W1.done = W1.nl, W1.nd
def w1_bar(back):
    w1_pre(back); R_('s_barrier'); w1_post()
def w1_issued():
    return W1.enq - (len([u for u in BG.q if u[1] and u[2][0] == 'w']) + 2) // 3
def w1_ml():
    k = W1.landed
    while k < W1.enq and landed(f'w{W1ORD[k]}'): k += 1
    return k
def w1_auto(margin, least=0):
    w1_pre(W1.enq - max(w1_ml(), least))
def w1_useful():
    if W1.done == 16: return False
    rd = W1.read > W1.done and not MID and landed(f'wr{W1ORD[W1.read-1]}', 0)
    starving = len([u for u in BG.q if u[1]]) <= opt('starve', 3)
    if W1.read > W1.done: return rd and starving
    return w1_ml() > W1.landed and (starving or w1_ml() == 16)
def w1_auto_old(margin, least=0):
    w1_pre(W1.enq - max(W1.landed, w1_issued() - margin, least))
def xbar(name, margin, least=0, more=16):
    w1_auto(opt(name, margin), least); R_('s_barrier'); w1_post(); w1_more(more)
def w1_reads(E):
    R_(f'; w1 reads {W1ORD[W1.read:W1.landed]}')
    for n in W1ORD[W1.read:W1.landed]:
        for tt in range(3):
            a = 64*tt + 4*n
            base, off = (vTR1+tt, w1_lds(n) - L_B) if w1_lds(n) >= L_B else (vTR1B+tt, w1_lds(n) - 8192)
            if off < 0: base, off = vTR1C+tt, w1_lds(n)
            E(f'ds_read_b64_tr_b16 {ar(a,2)}, v{base} offset:{off}', 'lg', f'wr{n}')
            E(f'ds_read_b64_tr_b16 {ar(a+2,2)}, v{base} offset:{off+1536}', 'lg', f'wr{n}')
    W1.read = W1.landed

def accK(rt): return 96 + 12*rt
def accV(rt): return 96 + 12*rt + 4
def accQ(rt): return 96 + 12*rt + 8
vKF, vVF, vQF, vOP = 156, 166, 176, 216
def tmp(t, k): return 184 + 16*(t & 1) + k
CS = 0.25 * LOG2E
sCS = sLN+1
A(f's_mov_b32 s{sCS}, {hx(f2u(CS))}')
sOS2 = sLN+2
A(f's_add_u32 s{sOS2}, s{sOST}, 32768')
def attn(t, E, gap):
    attn_a(t, E, gap, True)
    if t: attn_b(t, E, gap, False)
def attn_a(t, E, gap, withv):
    gap(3)
    for h in range(2): E(f'v_cvt_pk_bf16_f32 v{vKF+2*t+h}, v{accK(t)+2*h}, v{accK(t)+2*h+1}')
    if t:
        for h in range(2): E(f'v_cvt_pk_bf16_f32 v{vQF+h}, v{accQ(t)+2*h}, v{accQ(t)+2*h+1}')
    if withv:
        for h in range(2): E(f'v_cvt_pk_bf16_f32 v{vVF+2*t+h}, v{accV(t)+2*h}, v{accV(t)+2*h+1}')
    else: gap(1)
    if not t: return
    E(f'v_mfma_f32_16x16x16_bf16 {vr(tmp(t,0),4)}, {vr(vKF+2*(t-1),2)}, {vr(vQF,2)}, 0')
    E(f'v_mfma_f32_16x16x16_bf16 {vr(tmp(t,4),4)}, {vr(vKF+2*t,2)}, {vr(vQF,2)}, 0')
    gap(4)
    if t == 1:
        for r in range(4): E(f'v_min_f32 v{tmp(t,r)}, s{sMSK}, v{tmp(t,r)}')
    for r in range(4): E(f'v_cndmask_b32 v{tmp(t,r)}, v{tmp(t,r)}, v{tmp(t,4+r)}, {sp(4+2*r)}')
    E(f'v_cndmask_b32 v{tmp(t,0)}, v{tmp(t,0)}, v{tmp(t,1)}, {sp(12)}')
    E(f'v_cndmask_b32 v{tmp(t,1)}, v{tmp(t,2)}, v{tmp(t,3)}, {sp(12)}')
    E(f'v_max_f32 v{tmp(t,2)}, v{tmp(t,0)}, v{tmp(t,1)}')
    for op in ('v_permlane16_swap_b32', 'v_permlane32_swap_b32'):
        E(f'v_mov_b32 v{tmp(t,3)}, v{tmp(t,2)}')
        gap(1)
        E(f'{op} v{tmp(t,2)}, v{tmp(t,3)}')
        E(f'v_max_f32 v{tmp(t,2)}, v{tmp(t,2)}, v{tmp(t,3)}')
    E(f'v_mul_f32 v{tmp(t,2)}, {hx(f2u(-CS))}, v{tmp(t,2)}')
    E(f'v_fma_f32 v{tmp(t,0)}, v{tmp(t,0)}, s{sCS}, v{tmp(t,2)}')
    E(f'v_fma_f32 v{tmp(t,1)}, v{tmp(t,1)}, s{sCS}, v{tmp(t,2)}')
    E(f'v_exp_f32 v{tmp(t,0)}, v{tmp(t,0)}')
    E(f'v_exp_f32 v{tmp(t,1)}, v{tmp(t,1)}')
    E(f'v_cvt_pk_bf16_f32 v{tmp(t,0)}, v{tmp(t,0)}, v{tmp(t,0)}')
    E(f'v_cvt_pk_bf16_f32 v{tmp(t,1)}, v{tmp(t,1)}, v{tmp(t,1)}')
    E(f'v_and_b32 v{tmp(t,4)}, v{tmp(t,0)}, v{vM}')
    E(f'v_and_b32 v{tmp(t,5)}, v{tmp(t,1)}, v{vM+1}')
    E(f'v_and_b32 v{tmp(t,6)}, v{tmp(t,0)}, v{vM+2}')
    E(f'v_and_b32 v{tmp(t,7)}, v{tmp(t,1)}, v{vM+3}')
    gap(1)
    E(f'v_mfma_f32_16x16x32_bf16 {vr(tmp(t,12),4)}, {vr(vON,4)}, {vr(tmp(t,4),4)}, 0')
def attn_b(t, E, gap, withv):
    if withv:
        for h in range(2): E(f'v_cvt_pk_bf16_f32 v{vVF+2*t+h}, v{accV(t)+2*h}, v{accV(t)+2*h+1}')
    E(f'v_mfma_f32_16x16x32_bf16 {vr(tmp(t,8),4)}, {vr(vVF+2*(t-1),4)}, {vr(tmp(t,4),4)}, 0')
    gap(4)
    E(f'v_rcp_f32 v{tmp(t,12)}, v{tmp(t,12)}')
    for r in range(4): E(f'v_mul_f32 v{tmp(t,8+r)}, v{tmp(t,8+r)}, v{tmp(t,12)}')
    p, hf = (t-1) >> 1, (t-1) & 1
    o = vOP + 4*p
    for h in range(2): E(f'v_cvt_pk_bf16_f32 v{o+2*hf+h}, v{tmp(t,8+2*h)}, v{tmp(t,9+2*h)}')
    if hf:
        gap(1)
        E(f'v_permlane16_swap_b32 v{o}, v{o+2}')
        E(f'v_permlane16_swap_b32 v{o+1}, v{o+3}')
        E(f'buffer_store_dwordx4 {vr(o,4)}, v{vPO}, {srd(SWS)}, s{sOS2 if p else sOST} offen sc1', 'vm', 'stB' if p else 'stA')
bufs = [64 + 4*k for k in range(8)]
NB = 8
seq = [(rt, ks) for rt in range(6) for ks in range(16)]
def a1_read(n, E):
    rt, ks = seq[n]
    rt = min(rt, 4)
    base = vAR4 if rt == 4 else vAR
    E(f'ds_read_b128 {vr(bufs[n%NB],4)}, v{base+(ks&3)} offset:{(rt%4)*16384 + (ks>>2)*256}', 'lg', f'af{n}')
nread = 0; vis = 1
EARLY = opt('early', 8)
vXR = 240
for n, (rt, ks) in enumerate(seq):
    if n == 0:
        wait('a0'); R_('s_barrier')
        stamp('gemm start')
        if DBG:
            R_(f's_memtime {sp(sTM)}'); wait_all_lg(); R_(f'v_writelane_b32 v31, s{sTM}, 54')
        while nread < NB - 1: a1_read(nread, E0); nread += 1
        q_read(QL + 1, 16, mid)
        win(prev('attn done') + 900)
    if ks == 16 - EARLY and rt < 4:
        if rt == 0:
            wait('a1', 'qr15'); R_('s_barrier'); vis = 2
            w1_more(opt('w1x', 2))
            w1_more(5)
            if opt('w2t', 0) == 1: w2_touch()
        if rt == 1:
            wait('a2'); R_('s_barrier'); vis = 3
        if rt == 2:
            wait('a3'); R_('s_barrier'); vis = 4
        if rt == 3:
            wait('a4'); R_('s_barrier'); vis = 6
            pass
    if n == 66:
        R_('s_barrier'); W1.afree = 65536; w1_more(5)
    if n >= 64 and 'stA' in M.done and 'tA' not in TDONE:
        TDONE.add('tA')
        def pubA():
            wait('stA'); R_('s_barrier'); flag(1, 'stA', E0)
        task('pub1', lambda: M.done['stA'], pubA)
        def getA():
            A(f's_add_u32 s{sQ}, s{sCB}, s{sW4}')
            win(prev('P2A done') + 900)
            bg_front(lambda: (tile_enq(0, 'o'), tile_enq(1, 'o')))
        t_seen(1, getA)
    service()
    if ks == 0 and rt > 0:
        stamp(f'p1rt{rt}', 2)
        if rt < 5: attn(rt-1, lo, lo_gap)
        else:
            lo_flush(); attn_a(4, lo, lo_gap, False)
    if rt == 0: wait(None, f'qr{ks}')
    if nread < min(n + NB, len(seq)) and seq[nread][0] < vis:
        a1_read(nread, hi); nread += 1
    assert nread > n + (1 - n % 2)
    if n % 2 == 0: wait(None, f'af{n+1}')
    g3 = 2 if n % 2 == 0 else 1
    f = vr(bufs[n%NB], 4)
    c = lambda r: '0' if ks == 0 else vr(r, 4)
    if rt == 5:
        mfma(f'v_mfma_f32_16x16x32_bf16 {vr(accV(4),4)}, {f}, {ar(128+4*ks,4)}, {c(accV(4))}', 3)
        continue
    mfma(f'v_mfma_f32_16x16x32_bf16 {vr(accK(rt),4)}, {ar(64+4*ks,4)}, {f}, {c(accK(rt))}', 2 + (opt('xs', 1) if rt in (2, 3) else 0))
    if rt < 4:
        mfma(f'v_mfma_f32_16x16x32_bf16 {vr(accV(rt),4)}, {f}, {ar(128+4*ks,4)}, {c(accV(rt))}', 2 if rt else g3)
    if rt > 0:
        mfma(f'v_mfma_f32_16x16x32_bf16 {vr(accQ(rt),4)}, {ar(4*ks,4)}, {f}, {c(accQ(rt))}', g3)
stamp('P1 gemm done')
lo_flush()
attn_b(4, A, lambda k: None, True)
stamp('attn done')
for tt in range(3): A(f'v_subrev_u32 v{vTR1B+tt}, {L_B - 8192}, v{vTR1+tt}')
service('pub1')
W1.gate15 = True
wait('xr')
xbar('m1', 1)
t_pub(2, 'stB', True)
vX1 = 112
vAC2, vXP, vUF, vUP = 96, 144, 152, 160
sUS = [sLN+1, sLN+3]
A(f's_add_u32 s{sUS[0]}, s{sOST}, {C_U}')
A(f's_add_u32 s{sUS[1]}, s{sOST}, {C_U + 32768}')
def epi2(p, E, gap, pk):
    gap(5)
    for rt in (2*p, 2*p+1):
        x, a = vX1+4*rt, vAC2+4*rt
        xp, up, uf = vXP+2*rt, vUP+2*rt, vUF+4*(rt&1)
        if pk:
            for h in range(2): E(f'v_pk_fma_f32 {vr(x+2*h,2)}, {vr(vGA+2*h,2)}, {vr(a+2*h,2)}, {vr(x+2*h,2)}')
        else:
            for e in range(4): E(f'v_fmac_f32 v{x+e}, v{vGA+e}, v{a+e}')
        for h in range(2): E(f'v_cvt_pk_bf16_f32 v{xp+h}, v{x+2*h}, v{x+2*h+1}')
        for h in range(2): unpack(x+2*h, xp+h, E)
        if pk:
            for h in range(2): E(f'v_pk_mul_f32 {vr(uf+2*h,2)}, {vr(x+2*h,2)}, {vr(vGB+2*h,2)}')
        else:
            for e in range(4): E(f'v_mul_f32 v{uf+e}, v{x+e}, v{vGB+e}')
        for h in range(2): E(f'v_cvt_pk_bf16_f32 v{up+h}, v{uf+2*h}, v{uf+2*h+1}')
    o = vUP + 4*p
    gap(1)
    E(f'v_permlane16_swap_b32 v{o}, v{o+2}')
    E(f'v_permlane16_swap_b32 v{o+1}, v{o+3}')
    E(f'buffer_store_dwordx4 {vr(o,4)}, v{vPO}, {srd(SWS)}, s{sUS[p]} offen sc1', 'vm', 'stB' if p else 'stA')
seq = [(rt, ks) for rt in range(4) for ks in range(16)]
def f_read(n, E, tag):
    rt, ks = seq[n]
    E(f'ds_read_b128 {vr(bufs[n%NB],4)}, v{vOFF16} offset:{L_A1 + rt*16384 + ks*1024}', 'lg', f'{tag}{n}')
S = [[168+k for k in range(6)], [176+k for k in range(6)]]
def stat_dots(p):
    x, u = vXP + 4*p, vUP + 4*p
    A(f'v_permlane16_swap_b32 v{x}, v{x+2}')
    A(f'v_permlane16_swap_b32 v{x+1}, v{x+3}')
    for d in range(4):
        c = lambda r: '0' if d == 0 else f'v{r}'
        A(f'v_dot2_f32_bf16 v{S[p][2]}, v{u+d}, v{vONE}, {c(S[p][2])}')
        A(f'v_dot2_f32_bf16 v{S[p][3]}, v{u+d}, v{u+d}, {c(S[p][3])}')
        A(f'v_dot2_f32_bf16 v{S[p][4]}, v{u+d}, v{vGP+d}, {c(S[p][4])}')
        A(f'v_dot2_f32_bf16 v{S[p][5]}, v{u+d}, v{vSP+d}, {c(S[p][5])}')
        A(f'v_dot2_f32_bf16 v{S[p][0]}, v{x+d}, v{vONE}, {c(S[p][0])}')
        A(f'v_dot2_f32_bf16 v{S[p][1]}, v{x+d}, v{x+d}, {c(S[p][1])}')
vCO, vCB, vCS, vSTT, vAC3, vG1, vHP = 128, 140, 96, 144, 168, 216, 228
xdone = [0]
def extra_tile(upto, regs):
    upto = min(upto, W1.read, xdone[0] + len(regs))
    kss = W1ORD[xdone[0]:upto]
    for ks, r in zip(kss, regs): E0(f'ds_read_b128 {vr(r,4)}, v{vXA} offset:{ks*64}', 'lg', f'xf{ks}')
    for ks, r in zip(kss, regs):
        wait(None, f'wr{ks}'); wait(None, f'xf{ks}')
        for tt in range(3):
            acc = vr(vCO+4*tt, 4)
            mfma(f'v_mfma_f32_16x16x32_bf16 {acc}, {vr(r,4)}, {ar(64*tt+4*ks,4)}, {"0" if xdone[0] == 0 else acc}')
        xdone[0] += 1
XR1 = [184 + 4*k for k in range(8)]
sW2L, sSB2, sSTS = sLN+6, sLN+4, sLN+7
vTR2 = vAR
def late_consts(L_):
    L_(f's_mul_i32 s{sWOFF}, s{sWAVE}, {11*32*1024}')
    L_(f's_lshl_b32 s{sT0}, s{sJ}, 7')
    L_(f's_add_u32 s{sWOFF}, s{sWOFF}, s{sT0}')
    L_(f's_lshr_b32 s{sT0}, s{sWAVE}, 1')
    L_(f's_and_b32 s{sT0}, s{sT0}, s{sWAVE}')
    L_(f's_lshl_b32 s{sT0}, s{sT0}, 15')
    L_(f's_sub_u32 s{sW2L}, s{sWOFF}, s{sT0}')
    L_(f's_add_u32 s{sW2L}, s{sW2L}, {10*32*1024}')
    L_(f's_add_u32 s{sSB2}, s{sSB}, 3072')
    for c in range(4): L_(f'v_add_u32 v{vTRW+c}, s{sW4}, v{vTRW+c}')
    for c in range(4): L_(f'v_subrev_u32 v{vTR2+c}, {L_B - 16384}, v{vTRW+c}')
    L_(f's_mul_i32 s{sT0}, s{sWAVE}, 1536')
    L_(f's_add_u32 s{sT0}, s{sT0}, {L_ST1}')
    L_(f'v_add_u32 v{vT+4}, s{sT0}, v{vO8}')
    L_(f's_min_u32 s{sT0}, s{sWAVE}, 2')
    L_(f's_lshl_b32 s{sSTS}, s{sT0}, 10')
    L_(f's_lshl_b32 s{sT0}, s{sT0}, 9')
    L_(f's_add_u32 s{sT0}, s{sT0}, {L_ST1}')
    L_(f'v_add_u32 v{vT+5}, s{sT0}, v{vO8}')
    L_(f's_mul_i32 s{sT0}, s{sJ}, 3072')
    L_(f's_add_u32 s{sSTS}, s{sSTS}, s{sT0}')
    L_(f's_add_u32 s{sSTS}, s{sSTS}, s{sCB}')
    L_(f's_add_u32 s{sSTS}, s{sSTS}, {C_ST}')
def p2_half(p, hook):
    n0 = 32*p
    nread = n0; lim = n0 + 16
    until_landed(f'o{2*p}')
    wait(f'o{2*p}'); xbar('mx', 0)
    while nread < n0 + NB - 1: f_read(nread, E0, 'of'); nread += 1
    BG.second = True
    for n in range(n0, n0 + 32):
        rt, ks = seq[n]
        hook(n - n0)
        if n - n0 == opt('obk', 8):
            wait(f'o{2*p+1}'); R_('s_barrier'); lim = n0 + 32
        if nread < min(lim, n + NB): f_read(nread, hi, 'of'); nread += 1
        if n % 2 == 0: wait(None, f'of{n+1}')
        acc = vr(vAC2+4*rt, 4)
        mfma(f'v_mfma_f32_16x16x32_bf16 {acc}, {ar(192+4*ks,4)}, {vr(bufs[n%NB],4)}, {"0" if ks==0 else acc}', 2 if n % 2 == 0 else 1)
    BG.second = False
def epoch_bump():
    le = label('Lnoep')
    if TWICE:
        R_(f'v_readlane_b32 s{sT0}, v31, 42'); R_('s_nop 3'); R_(f's_cmp_eq_u32 s{sT0}, 0'); R_(f's_cbranch_scc1 {le}')
    R_(f's_cmp_lg_u32 s2, 0')
    R_(f's_cbranch_scc1 {le}')
    R_(f's_cmp_lg_u32 s{sWAVE}, 3')
    R_(f's_cbranch_scc1 {le}')
    R_(f's_mov_b32 s{sT0}, {WS_XCC}')
    lp, ld = label('Lep'), label('Lepok')
    R_(f'{lp}:')
    R_(f'buffer_load_dwordx4 {vr(184,4)}, v{vOFF16}, {srd(SWS)}, s{sT0} offen sc1')
    R_(f'buffer_load_dwordx4 {vr(188,4)}, v{vOFF16}, {srd(SWS)}, s{sT0} offen offset:1024 sc1')
    R_('s_waitcnt vmcnt(0)')
    tag_check([185, 187, 189, 191], vT)
    R_(f's_cbranch_vccz {ld}')
    spin_guard(lp, ld)
    R_(f'v_mov_b32 v{vT+1}, s{sTAG}')
    R_(f'v_mov_b32 v{vT+2}, 0')
    R_('s_mov_b64 exec, 1')
    R_(f'buffer_store_dword v{vT+1}, v{vT+2}, {srd(SWS)}, 0 offen sc1')
    R_('s_mov_b64 exec, -1')
    R_(f'{le}:')
def w1_some():
    if W1.read < W1.landed:
        keep = W1.landed; W1.landed = min(keep, W1.read + 2); w1_reads(A); W1.landed = keep
    elif w1_useful(): xbar('ms', 0)
    elif xdone[0] < W1.read: extra_tile(xdone[0] + 2, XR1)
def x_load():
    for r2 in range(4): lg(f'ds_read_b64 {vr(vXR+2*r2,2)}, v{vXO} offset:{r2*2048}', 'xl')
def x_unpack():
    wait(None, 'xl')
    for r2 in range(4):
        unpack(vX1+4*r2, vXR+2*r2); unpack(vX1+4*r2+2, vXR+2*r2+1)
def getB():
    if W1.done < 5 + NA:
        if W1.landed < 5 + NA: xbar('mp', 0, 5 + NA)
        w1_reads(A); xbar('mp', 0)
    win(prev('P2 gemm done') + 900)
    bg_front(lambda: (tile_enq(2, 'o'), tile_enq(3, 'o')))
x_load()
fill_until(lambda: False, [w1_some, x_unpack, lambda: late_consts(A)])
fill_until(lambda: landed('o0', -100), [w1_some]*12)
service('seen1')
bg_until('o1')
fill_until(lambda: landed('o0', -100), [w1_some]*12)
t_seen(2, getB, lambda: W1.done >= 5 + NA or 'P2A' in TDONE)
bg_fill()
stamp('P2A start')
p2_half(0, lambda k: service())
TDONE.add('P2A')
stamp('P2A done')
epi2(0, A, lambda k: None, True)
BG.dl0 = 1e9
t_pub(3, 'stA')
fill_until(lambda: False, [lambda: stat_dots(0), epoch_bump])
fill_until(lambda: landed('o2', -100), [w1_some]*12)
service('seen2')
bg_until('o3')
fill_until(lambda: landed('o2', -100), [w1_some]*12)
def getUA():
    A(f's_add_u32 s{sQ}, s{sQ}, {C_U}')
    win(prev('P2 gemm done') + 1100)
    bg_front(lambda: (tile_enq(0, 'u'), tile_enq(1, 'u')))
t_seen(3, getUA)
bg_fill()
stamp('P2B start')
p2_half(1, lambda k: service())
stamp('P2 gemm done')
epi2(1, A, lambda k: None, True)
BG.dl0 = 1e9
t_pub(4, 'stB', True)
service()
stat_dots(1)
for k in range(6): A(f'v_permlane32_swap_b32 v{S[0][k]}, v{S[1][k]}')
for k in range(6): A(f'v_add_f32 v{S[0][k]}, v{S[0][k]}, v{S[1][k]}')
for k in range(3): lg(f'ds_write_b64 v{vT+4}, {vr(S[0][2*k],2)} offset:{512*k}', 'sw')
service()
wait(None, 'sw')
xbar('m6', 2)
for w in range(4): lg(f'ds_read_b64 {vr(248+2*w,2)}, v{vT+5} offset:{1536*w}', 'sr')
w1_some()
wait(None, 'sr')
A(f'v_pk_add_f32 {vr(248,2)}, {vr(248,2)}, {vr(250,2)}')
A(f'v_pk_add_f32 {vr(252,2)}, {vr(252,2)}, {vr(254,2)}')
A(f'v_mov_b32 v251, s{sTAG}')
A(f'v_add_f32 v250, v249, v253')
A(f'v_add_f32 v248, v248, v252')
A(f'v_mov_b32 v249, s{sTAG}')
vm(f'buffer_store_dwordx4 {vr(248,4)}, v{vOFF16}, {srd(SWS)}, s{sSTS} offen sc1', 'sts')
fill_until(lambda: landed('u1', -100), [w1_some]*12)
service('seen3')
bg_until('u1')
fill_until(lambda: landed('u1', -100), [w1_some]*12)
until_landed('u1')
wait('u1'); xbar('m8', 2)
stamp('u1 landed')

def stat_issue(E):
    for m in range(2):
        for k in range(3):
            E(f'buffer_load_dwordx4 {vr(vSTT+12*m+4*k,4)}, v{vSTA}, {srd(SWS)}, s{sSB2 if m else sSB} offen offset:{k*1024} sc1', 'vm', 'stt')
W2SLOT = {}; W2FREE = []; W2N = [0]
def w2_more():
    while W2FREE and W2N[0] < 11:
        kk = W2N[0]; W2N[0] += 1
        W2SLOT[kk] = W2FREE.pop(0)
        for j in range(4):
            bg_dma(f's_add_u32 m0, s{sW4}, {W2SLOT[kk]}',
                   f's_add_u32 s{sD0}, s{sWOFF}, {kk*32*1024}' if kk < 10 else f's_mov_b32 s{sD0}, s{sW2L}',
                   f'buffer_load_dwordx4 v{vDW+j}, {srd(SW2)}, s{sD0} offen offset:{j*1024} lds', f'z{kk}')
def w2_areg(kk): return 192 + 16*kk if kk < 4 else 16*(kk-4)
def w2_read(kk, E):
    o = W2SLOT[kk]
    for c in range(4):
        a = w2_areg(kk) + 4*c
        base, off = (vTRW+c, o - L_B) if o >= L_B else (vTR2+c, o - 16384)
        E(f'ds_read_b64_tr_b16 {ar(a,2)}, v{base} offset:{off}', 'lg', f'zr{kk}')
        E(f'ds_read_b64_tr_b16 {ar(a+2,2)}, v{base} offset:{off+512}', 'lg', f'zr{kk}')
def stats_fin(E, gap):
    b = vSTT
    X = [b+2*k for k in range(6)]
    for k in range(6): E(f'v_add_f32 v{X[k]}, v{X[k]}, v{b+12+2*k}')
    for op in ('v_permlane16_swap_b32', 'v_permlane32_swap_b32'):
        for k in range(6): E(f'v_mov_b32 v{X[k]+1}, v{X[k]}')
        for k in range(6): E(f'{op} v{X[k]}, v{X[k]+1}')
        for k in range(6): E(f'v_add_f32 v{X[k]}, v{X[k]}, v{X[k]+1}')
    X1, X2, X3, X4, X5, X6 = X
    a_, b_, c_, d_ = b+1, b+3, b+5, b+7
    co = [b+12, b+13, b+14, b+15]; cs = [b+16, b+17, b+18, b+19]
    for r in X: E(f'v_mul_f32 v{r}, {hx(f2u(1/512))}, v{r}')
    E(f'v_fma_f32 v{X2}, -v{X1}, v{X1}, v{X2}')
    E(f'v_max_f32 v{X2}, 0, v{X2}')
    E(f'v_add_f32 v{X2}, {hx(f2u(1e-5))}, v{X2}')
    E(f'v_rsq_f32 v{a_}, v{X2}')
    E(f'v_fma_f32 v{X3}, -v{X1}, s{sG}, v{X3}')
    E(f'v_mul_f32 v{co[1]}, v{X2}, v{a_}')
    E(f'v_fma_f32 v{b_}, v{X3}, v{a_}, s{sG+2}')
    E(f'v_mul_f32 v{c_}, s{sG+1}, v{X1}')
    E(f'v_fma_f32 v{c_}, -2.0, v{X5}, v{c_}')
    E(f'v_fma_f32 v{X4}, v{X1}, v{c_}, v{X4}')
    E(f'v_fma_f32 v{X6}, -v{X1}, s{sG+4}, v{X6}')
    E(f'v_add_f32 v{X6}, v{X6}, v{X6}')
    E(f'v_fma_f32 v{X4}, v{X4}, v{a_}, v{X6}')
    E(f'v_fma_f32 v{X4}, v{X4}, v{a_}, s{sG+3}')
    E(f'v_fma_f32 v{X4}, -v{b_}, v{b_}, v{X4}')
    E(f'v_max_f32 v{X4}, 0, v{X4}')
    E(f'v_add_f32 v{X4}, {hx(f2u(1e-5))}, v{X4}')
    E(f'v_rsq_f32 v{d_}, v{X4}')
    K0 = -2.0 * 0.7978845608028654 * LOG2E
    K1_ = K0 * 0.044715
    E(f'v_sub_f32 v{co[0]}, 0, v{X1}')
    E(f'v_mul_f32 v{X4}, v{X4}, v{d_}')
    E(f'v_mul_f32 v{co[2]}, -v{b_}, v{co[1]}')
    E(f'v_mul_f32 v{co[3]}, v{co[1]}, v{X4}')
    E(f'v_mul_f32 v{d_}, v{a_}, v{d_}')
    E(f'v_mul_f32 v{cs[0]}, {hx(f2u(K0))}, v{d_}')
    E(f'v_mul_f32 v{cs[1]}, v{d_}, v{d_}')
    E(f'v_mul_f32 v{cs[1]}, v{cs[1]}, v{d_}')
    E(f'v_mul_f32 v{cs[1]}, {hx(f2u(K1_))}, v{cs[1]}')
    E(f'v_mov_b32 v{cs[2]}, v{co[3]}')
    E(f'v_mov_b32 v{cs[3]}, 0')
    E(f's_lshl_b32 s{sT0}, s{sWAVE}, 9')
    E(f'v_lshlrev_b32 v{vT+2}, 5, v{vI}')
    E(f'v_add_u32 v{vT+2}, {L_ST2}, v{vT+2}')
    E(f'v_add_u32 v{vT+4}, s{sT0}, v{vT+2}')
    E(f'v_lshl_add_u32 v{vT+3}, v{vG}, 2, v{vT+2}')
    E(f'ds_write_b128 v{vT+4}, {vr(co[0],4)}', 'lg', 'sw2')
    E(f'ds_write_b128 v{vT+4}, {vr(cs[0],4)} offset:16', 'lg', 'sw2')
sHB2 = sLN+5
def gelu(rt, E, pk):
    a = vAC3 + 12*rt
    c0 = vCS + 4*rt
    if pk:
        P = range(0, 12, 2)
        for e in P: E(f'v_pk_mul_f32 {vr(vG1+e,2)}, {vr(a+e,2)}, {vr(a+e,2)}')
        for e in P: E(f'v_pk_fma_f32 {vr(vG1+e,2)}, {vr(vG1+e,2)}, {vr(c0,2)}, {vr(c0,2)} op_sel:[0,1,0] op_sel_hi:[1,1,0]')
        for e in P: E(f'v_pk_mul_f32 {vr(vG1+e,2)}, {vr(vG1+e,2)}, {vr(a+e,2)}')
        for e in range(12): E(f'v_exp_f32 v{vG1+e}, v{vG1+e}')
        for e in P: E(f'v_pk_fma_f32 {vr(vG1+e,2)}, {vr(vG1+e,2)}, {vr(c0+2,2)}, {vr(c0+2,2)} op_sel_hi:[1,0,0]')
        for e in range(12): E(f'v_rcp_f32 v{vG1+e}, v{vG1+e}')
        for e in P: E(f'v_pk_mul_f32 {vr(vG1+e,2)}, {vr(vG1+e,2)}, {vr(a+e,2)}')
    else:
        Ee = range(12)
        for e in Ee: E(f'v_mul_f32 v{vG1+e}, v{a+e}, v{a+e}')
        for e in Ee: E(f'v_fma_f32 v{vG1+e}, v{vG1+e}, v{c0+1}, v{c0}')
        for e in Ee: E(f'v_mul_f32 v{vG1+e}, v{vG1+e}, v{a+e}')
        for e in Ee: E(f'v_exp_f32 v{vG1+e}, v{vG1+e}')
        for e in Ee: E(f'v_fma_f32 v{vG1+e}, v{vG1+e}, v{c0+2}, v{c0+2}')
        for e in Ee: E(f'v_rcp_f32 v{vG1+e}, v{vG1+e}')
        for e in Ee: E(f'v_mul_f32 v{vG1+e}, v{vG1+e}, v{a+e}')
    p, hf = rt >> 1, rt & 1
    for tt in range(3):
        for h in range(2):
            E(f'v_cvt_pk_bf16_f32 v{vHP+12*p+4*tt+2*hf+h}, v{vG1+4*tt+2*h}, v{vG1+4*tt+2*h+1}')
    if hf:
        for tt in range(3):
            o = vHP+12*p+4*tt
            E(f'v_permlane16_swap_b32 v{o}, v{o+2}')
            E(f'v_permlane16_swap_b32 v{o+1}, v{o+3}')
        for tt in range(3):
            o = vHP+12*p+4*tt
            E(f'buffer_store_dwordx4 {vr(o,4)}, v{vPH}, {srd(SWS)}, s{sHB2 if p else sHB} offen offset:{tt*512} sc1', 'vm', 'stB' if p else 'stA')
def corr(rt):
    for tt in range(3):
        acc = vr(vAC3+12*rt+4*tt, 4)
        mfma(f'v_mfma_f32_16x16x4_f32 {acc}, v{vCO+4*tt}, v{vCB+rt}, {acc}', 4)
zread = set(); zenq = set()
NGH = opt('ngh', 1)
seq = [(rt, ks) for ks in W1ORD for rt in (0, 1)] + [(rt, ks) for rt in (2, 3) for ks in W1ORD]
nread = 0; vis = 2
w2go = [False, False]
def w2_start():
    if not w2go[1] and W1.enq == 16 and W1.done > 5 + NA:
        W2FREE.append(65536); w2_more(); w2go[1] = True
    if not w2go[0] and W1.done == 16:
        W2FREE.extend(L_B + 16384*k for k in range(4)); w2_more()
        w2go[0] = True
XR2 = [216 + 4*k for k in range(8)]
for n, (rt, ks) in enumerate(seq):
    if n == 0:
        while nread < NB - 1: f_read(nread, E0, 'uf'); nread += 1
        w1_more(16); w1_reads(mid); w2_start()
        P3S = dict(u=False, st=0, cb=None, g1=False)
        lo(f's_add_u32 s{sHB2}, s{sHB}, {2*HRT}')
        for tt in range(3): lo(f'v_lshlrev_b32 v{vBI+tt}, 16, v{vBI+tt}')
    if n % 16 == 0 and n: stamp(f'p3q{n//16}', 3)
    if n == 0:
        def getUB():
            win(); P3S['u'] = True
            keep = 0
            for i_, u in enumerate(BG.q):
                if u[1] and u[2][0] == 'w': keep = i_ + 1
            head = [BG.q.popleft() for _ in range(keep)]
            e0, e1 = BG.em0, BG.ed0
            for u in head:
                if ' m0,' in u[0][:16]: BG.em0 = u[0]
                if u[0].startswith('s_') and ' s91,' in u[0][:18]: BG.ed0 = u[0]
            bg_front(lambda: (tile_enq(2, 'u'), stat_issue(bg), tile_enq(3, 'u')))
            BG.em0, BG.ed0 = e0, e1
            BG.q.extendleft(reversed(head))
        t_seen(4, getUB)
    service('seen4' if n == 26 else None)
    if W1.read < W1.landed: w1_reads(mid); w2_start()
    if P3S['u'] and P3S['st'] == 0 and (landed('stt') or n == 36):
        checked('stt', stat_issue, [vSTT+1+2*k for k in range(12)])
        stats_fin(lo, lo_gap); P3S['st'] = 1
    need = n < 32 and W1ORD.index(ks) + 2 > W1.read and W1.read < 16
    tile = vis < 4 and P3S['u'] and (landed(f'u{vis}') or n == 16*vis - 2)
    stb = P3S['st'] == 1 and n >= 33 and ((not LO and landed('sw2', 0)) or n == opt('sb', 44))
    if need or tile or stb or w1_useful():
        if tile:
            while vis < 4 and (landed(f'u{vis}') or n == 16*vis - 2):
                wait(f'u{vis}'); vis += 1
        if stb: lo_flush(); wait(None, 'sw2')
        xbar('m9', 0, min(16, W1ORD.index(ks) + 2) if need else 0); w1_reads(mid); w2_start()
        if stb:
            P3S['st'] = 2; P3S['cb'] = n
            for r2 in range(4):
                mid(f'ds_read_b32 v{vCB+r2}, v{vT+3} offset:{r2*512}', 'lg', 'cb')
                mid(f'ds_read_b128 {vr(vCS+4*r2,4)}, v{vT+2} offset:{r2*512+16}', 'lg', 'cb')
            lo(f'v_cmp_eq_u32 vcc, 3, v{vG}'); lo_gap(1)
            for tt in range(3): lo(f'v_cndmask_b32 v{vCO+4*tt}, v{vCO+4*tt}, v{vBI+tt}, vcc')
    if n == 32:
        extra_tile(16, XR2); extra_tile(16, XR2); assert xdone[0] == 16
    if P3S['st'] == 2 and n == P3S['cb'] + 5:
        lo_flush(); wait(None, 'cb')
        corr(0); corr(1)
        gelu(0, lo, 0); P3S['st'] = 3
    if n == opt('g1n', 52):
        assert P3S['st'] == 3 and n >= 49
        lo_flush(); gelu(1, A, 1)
        stamp('h1A stored', 3)
        corr(2); lo_gap(3)
        if opt('g2h', 1): gelu(2, lo, 0)
        win(prev('gelu done') + 900)
        EARLIEST[5] = prev('gelu done', 0)
        def pubHA():
            wait('stA'); R_('s_barrier'); flag(5, 'stA', E0)
        task('pub5', lambda: M.done['stA'], pubHA)
        t_seen(5, lambda: None, lambda: 'P4' in TDONE, prev('gelu done', 0))
    for kk in range(4):
        if kk not in zread and kk in W2SLOT and landed(f'z{kk}') and not MID:
            wait(f'z{kk}'); w2_read(kk, mid); zread.add(kk)
        elif kk in zread and kk not in zenq and not any(u[2] == f'zr{kk}' for u in MID) and landed(f'zr{kk}', 0):
            wait(None, f'zr{kk}'); W2FREE.append(W2SLOT[kk]); w2_more(); zenq.add(kk)
    for _ in range(2):
        if nread < min(n + NB, len(seq)) and seq[nread][0] < vis and len(HI) < 2:
            f_read(nread, hi, 'uf'); nread += 1
    assert nread > n + (1 - n % 2)
    wait(None, f'wr{ks}')
    if n % 2 == 0: wait(None, f'uf{n+1}')
    f = vr(bufs[n%NB], 4)
    for tt in range(3):
        acc = vr(vAC3+12*rt+4*tt, 4)
        mfma(f'v_mfma_f32_16x16x32_bf16 {acc}, {ar(64*tt+4*ks,4)}, {f}, {"0" if ks == W1ORD[0] else acc}', 2 if tt < 2 or n % 2 == 0 else 1)
assert w2go[0]
corr(3)
R_('s_barrier')
stamp('P3 gemm done')
mid_flush()
W2FREE.extend([16384, 32768, 49152]); w2_more()
lo_flush()
stamp('lo flushed', 3)
def z_catch(kk, E=E0):
    if kk not in zread:
        wait(f'z{kk}'); w2_read(kk, E); zread.add(kk)
def z_refill():
    for kk in sorted(zread):
        if kk not in zenq and W2N[0] < 11:
            wait(None, f'zr{kk}'); W2FREE.append(W2SLOT[kk]); w2_more(); zenq.add(kk)
z_refill()
for kk in range(opt('zc0', 4)): z_catch(kk)
if not opt('g2h', 1): gelu(2, A, 1)
service()
gelu(3, A, 1)
service()
z_refill()
assert W2N[0] == 11
stamp('gelu done', 3)
win()
bg_flush()
vGG = 136
lg(f'ds_read_b64 {vr(vGG+2,2)}, v{vMC} offset:{5*1024}', 'c5')
A(f'v_lshlrev_b32 v{vT}, 3, v{vG}')
A(f's_lshl_b32 s{sT0}, s{sWAVE}, 5')
A(f's_add_u32 s{sT0}, s{sT0}, {L_B2}')
A(f'v_add_u32 v{vT}, s{sT0}, v{vT}')
lg(f'ds_read_b64 {vr(134,2)}, v{vT}', 'c5')
hs = [4, 5, 6, 7, 8, 9, 10, 11, 12, 13, sLN, sLN+1]
A(f's_mul_i32 s{hs[0]}, s{sWAVE}, {11*1024}')
A(f's_add_u32 s{hs[0]}, s{hs[0]}, s{sCB}')
for k in range(1, 6): A(f's_add_u32 s{hs[k]}, s{hs[0]}, {(k//3)*HRT + (k%3)*4096}')

def pubHB():
    wait('stB'); R_('s_barrier'); flag(6, 'stB', E0)
task('pub6', lambda: M.done['stB'], pubHB)
TDONE.add('P4')
zs = [lambda kk=kk: z_catch(kk) if landed(f'z{kk}') else None for kk in range(11)]
fill_until(lambda: 'seen5' in TDONE, zs)
service('seen5')
stamp('h1A seen')
aAC = 112
NH = 16
hb = [144 + 4*k for k in range(NH)]
hseq = [(r, kk) for kk in range(11) for r in (0, 1)] + [(r, kk) for r in (2, 3) for kk in range(11)]
def h_load(n, E):
    r, kk = hseq[n]
    vo = vLAST if kk == 10 else vOFF16
    E(f'buffer_load_dwordx4 {vr(hb[n%NH],4)}, v{vo}, {srd(SWS)}, s{hs[3*r+(kk>>2)]} offen offset:{(kk&3)*1024} sc1', 'vm', f'h{n}')
LH = opt('lh', 10)
for n in range(opt('lh0', 6)): h_load(n, A)
nload = opt('lh0', 6)
fill_until(lambda: False, zs)
for kk in range(2): z_catch(kk)
okB = [False]
def setB(): okB[0] = True
t_seen(6, setB)
for k in range(6, 12): lo(f's_add_u32 s{hs[k]}, s{hs[0]}, {(k//3)*HRT + (k%3)*4096}')
vRA = vT + 2; vPX = vDQ
L_RED = L_B
for c in range(4):
    lo(f's_add_u32 s{sT0}, s{sWAVE}, {c}')
    lo(f's_and_b32 s{sT0}, s{sT0}, 3')
    lo(f's_mul_i32 s{sT0}, s{sT0}, 12288')
    lo(f's_add_u32 s{sT0}, s{sT0}, {L_RED + max(c-1, 0)*4096}')
    lo(f'v_add_u32 v{vRA + (c-1 if c else 3)}, s{sT0}, v{vOFF16}')
lo(f'v_and_b32 v{vT+1}, 1, v{vG}')
lo(f'v_lshlrev_b32 v{vPX}, 10, v{vI}')
lo(f'v_lshl_add_u32 v{vPX}, v{vT+1}, 14, v{vPX}')
lo(f'v_lshrrev_b32 v{vT+1}, 1, v{vG}')
lo(f'v_lshl_add_u32 v{vPX}, v{vT+1}, 4, v{vPX}')
sXO2 = sLN+2
lo(f's_add_u32 s{sXO2}, s{sXO}, 32768')
lo_wait(None, 'c5')
unpack(vGG, vGG+2, lo); unpack(vGG+2, vGG+3, lo); unpack(132, 134, lo); unpack(134, 135, lo)
for r2 in range(4):
    for e in range(4): lo(f'v_fmac_f32 v{vX1+4*r2+e}, v{vGG+e}, v{132+e}')
vR, vOW, vOUT = 64, 208, 224
def red_write(r, E):
    for c in range(1, 4):
        E(f'ds_write_b128 v{vRA+c-1}, {ar(aAC+16*r+4*c,4)} offset:{r*1024}', 'lg', f'rw{r}')
def red_read(r, E):
    for c in range(3):
        E(f'ds_read_b128 {vr(vR+12*r+4*c,4)}, v{vRA+3} offset:{c*4096 + r*1024}', 'lg', f'rr{r}')
def fin(r, E, pk):
    y = vR + 12*r
    for e in range(4): E(f'v_accvgpr_read_b32 v{vOW+4*r+e}, a{aAC+16*r+e}')
    if pk:
        for h in range(2): E(f'v_pk_add_f32 {vr(y+2*h,2)}, {vr(y+2*h,2)}, {vr(y+4+2*h,2)}')
        for h in range(2): E(f'v_pk_add_f32 {vr(y+8+2*h,2)}, {vr(y+8+2*h,2)}, {vr(vOW+4*r+2*h,2)}')
        for h in range(2): E(f'v_pk_add_f32 {vr(y+2*h,2)}, {vr(y+2*h,2)}, {vr(y+8+2*h,2)}')
        for h in range(2): E(f'v_pk_fma_f32 {vr(y+2*h,2)}, {vr(vGG+2*h,2)}, {vr(y+2*h,2)}, {vr(vX1+4*r+2*h,2)}')
    else:
        for e in range(4): E(f'v_add_f32 v{y+e}, v{y+e}, v{y+4+e}')
        for e in range(4): E(f'v_add_f32 v{y+8+e}, v{y+8+e}, v{vOW+4*r+e}')
        for e in range(4): E(f'v_add_f32 v{y+e}, v{y+e}, v{y+8+e}')
        for e in range(4): E(f'v_fma_f32 v{y+e}, v{vGG+e}, v{y+e}, v{vX1+4*r+e}')
    o = vOUT + 4*(r >> 1)
    for h in range(2): E(f'v_cvt_pk_bf16_f32 v{o+2*(r&1)+h}, v{y+2*h}, v{y+2*h+1}')
    if r & 1:
        E(f'v_permlane16_swap_b32 v{o}, v{o+2}')
        E(f'v_permlane16_swap_b32 v{o+1}, v{o+3}')
        E(f'buffer_store_dwordx4 {vr(o,4)}, v{vPX}, {srd(SOUT)}, s{sXO2 if r >> 1 else sXO} offen', 'vm', 'out')
for n, (r, kk) in enumerate(hseq):
    if n == 6: lo_flush()
    service('seen6' if n == 21 else None)
    for _ in range(2):
        if nload < min(n + LH, 44 if okB[0] and n >= 6 else 22) and len(HI) < 2:
            h_load(nload, hi); nload += 1
    if n < 22 and r == 0 and kk + 2 < 11: z_catch(kk + 2, mid)
    if n == 23:
        mid_flush(); wait_all_lg(); R_('s_barrier')
    if n == 24: red_write(0, mid); red_write(1, mid)
    if n == 35: red_write(2, mid)
    if n == opt('rb', 38):
        wait(None, 'rw2'); R_('s_barrier')
        for r2 in range(3): red_read(r2, mid)
        for r2 in range(3):
            lo_wait(None, f'rr{r2}'); fin(r2, lo, False)
    assert nload > n
    wait(f'h{n}', f'zr{kk}')
    cs_ = [1, 2, 3, 0]
    for ci, c in enumerate(cs_):
        acc = ar(aAC+16*r+4*c, 4)
        mfma(f'v_mfma_f32_16x16x32_bf16 {acc}, {ar(w2_areg(kk)+4*c,4)}, {vr(hb[n%NH],4)}, {"0" if kk==0 else acc}', 2 if ci < 3 else 1)
stamp('P4 gemm done')
mid_flush()
red_write(3, A)
lo_flush()
wait(None, 'rw3'); R_('s_barrier')
red_read(3, A)
wait(None, 'rr3')
fin(3, A, True)
if TWICE:
    R_('s_waitcnt vmcnt(0)')
    R_('s_barrier')
    R_(f'v_readlane_b32 s{sT0}, v31, 42'); R_('s_nop 3'); R_(f's_cmp_lg_u32 s{sT0}, 0'); R_('s_cbranch_scc1 L_fin')
    R_(f's_mov_b32 s{sT0}, 256'); R_(f'v_writelane_b32 v31, s{sT0}, 42')
    R_('v_readlane_b32 s0, v31, 40'); R_('v_readlane_b32 s1, v31, 41')
    R_(f's_lshl_b32 s{sT0}, s{sWAVE}, 6'); R_(f'v_or_b32 v0, s{sT0}, v0'); R_('s_nop 4')
    R_('s_branch L_again')
    R_('L_fin:')
if STAMP:
    R_('s_waitcnt vmcnt(0)')
    stamp('end')
    R_(f's_memrealtime {sp(sTM)}')
    R_('s_waitcnt lgkmcnt(0)')
    R_(f's_lshl_b32 s{sT0}, s2, 7')
    R_(f's_lshl_b32 s{sT1}, s{sWAVE}, 15')
    R_(f's_add_u32 s{sT0}, s{sT0}, s{sT1}')
    R_(f's_add_u32 s{sT0}, s{sT0}, {WS_STAMP}')
    R_(f'v_writelane_b32 v31, s{sTM}, 29')
    R_(f'v_writelane_b32 v31, s{sSPIN}, 30')
    R_(f'v_writelane_b32 v31, s{sLOCAL}, 31')
    R_(f'v_lshlrev_b32 v{vT}, 2, v{vLANE}')
    R_('s_mov_b64 exec, 0xffffffff')
    R_(f'buffer_store_dword v31, v{vT}, {srd(SWS)}, s{sT0} offen')
if DBG:
    l = label('Ldbg')
    R_('s_waitcnt vmcnt(0)')
    R_('s_cmp_ge_u32 s2, 8'); R_(f's_cbranch_scc1 {l}')
    R_(f's_cmp_lg_u32 s{sWAVE}, 0'); R_(f's_cbranch_scc1 {l}')
    R_(f's_memrealtime {sp(sTM)}'); R_('s_memtime s[4:5]'); R_('s_waitcnt lgkmcnt(0)')
    R_('v_readlane_b32 s6, v31, 52'); R_('v_readlane_b32 s7, v31, 53'); R_('v_readlane_b32 s8, v31, 54')
    R_('v_readlane_b32 s10, v31, 50'); R_('v_readlane_b32 s11, v31, 51'); R_('s_nop 4')
    R_(f's_sub_u32 s9, s{sTM}, s6'); R_('s_and_b32 s6, s6, 0xffff'); R_('s_mul_i32 s6, s6, 10000'); R_('s_add_u32 s9, s9, s6')
    R_('s_sub_u32 s4, s4, s7'); R_('s_sub_u32 s8, s8, s7'); R_('s_lshr_b32 s8, s8, 4'); R_('s_mul_i32 s8, s8, 1000000'); R_('s_add_u32 s4, s4, s8')
    R_('v_mov_b32 v10, s10'); R_('v_mov_b32 v11, s11'); R_('s_lshl_b32 s5, s2, 2'); R_('v_add_u32 v10, s5, v10')
    R_('v_mov_b32 v12, s9'); R_('v_mov_b32 v13, s4')
    R_('s_mov_b64 exec, 1')
    R_('global_store_dword v[10:11], v12, off'); R_('global_store_dword v[10:11], v13, off offset:32')
    R_(f'{l}:')
R_('s_endpgm')
R_('.fill 2048, 4, 0xbf800000')
assert not HI and not LO and not BG.q and not MID
print(f"""; Kernarg layout (104 bytes, ptrs only, base s[0:1]): A_x, A_wqkv, A_wo, B_x, B_w1, B_b1, B_w2, B_b2, c, w_mod, d_out, d_debug, d_ws
; Persistent fused kernel: 256 workgroups = 32 clusters x 8 members; a cluster owns 64 tokens.
; @launch grid=(256,1,1) block=(256,1,1) lds={LDS_BYTES}
.amdgcn_target "amdgcn-amd-amdhsa--gfx950"
.text
.globl {NAME}_kernel
.p2align 8
.type {NAME}_kernel,@function
{NAME}_kernel:""")
sys.stdout.write(ASM.render())
print(f""".section .rodata,"a"
.p2align 6
.amdhsa_kernel {NAME}_kernel
  .amdhsa_next_free_vgpr 512
  .amdhsa_next_free_sgpr 102
  .amdhsa_accum_offset 256
  .amdhsa_group_segment_fixed_size 0
  .amdhsa_kernarg_size 104
  .amdhsa_user_sgpr_count 2
  .amdhsa_user_sgpr_kernarg_segment_ptr 1
  .amdhsa_system_sgpr_workgroup_id_x 1
.end_amdhsa_kernel""")
sys.stderr.write(f'\nstamps={nstamp[0]} nops={ASM.nnop} lines={len(ASM.lines)}\n')
finish()
```

```python
from infra import *
NAME = 'adaLN_cond__sliding_local_dilated__mixer_channel_mlp__prompt'
FORCE_GLOBAL = '--global' in sys.argv
WS_XCC, WS_MOD, WS_STAMP, WS_CL = 0x1000, 0x2000, 0x20000, 0x100000
HRT = 43*1024
C_U = 4*HRT; C_A = C_U; C_ST = C_U + 65536; C_FLAG = C_ST + 24576
CLSZ = 0x48000
WS_SIZE = WS_CL + 32*CLSZ
L_A1, L_B, L_MISC = 0, 81920, 147456
L_MODT = L_MISC - 2048
L_ONES = L_MISC + 4096
L_ST1  = L_MISC + 5120
L_ST2  = L_MISC + 13312
L_P0S  = L_MISC + 15360
L_B2   = L_MISC + 15616
LDS_BYTES = 163840
sWAVE = 3
SX, SWQKV, SWO, SW1, SW2, SWS, SOUT, SWMOD = 32, 36, 40, 44, 48, 52, 56, 60
sB1, sB2, sC = 14, 18, 20
sCL, sJ, sTAG, sLOCAL, sR0 = 64, 65, 66, 67, 68
sT0, sT1, sT2 = 69, 70, 71
sLN = 72; sG = 80; sCB = 86
sSOFF, sSLDS, sWOFF, sWLDS, sD0 = 87, 88, 89, 90, 91
sIW, sWMB, sGW, sB1O = 92, 93, 94, 95
sXO, sSB, sHB, sMSK, sP, sCQ = 96, 97, 98, 99, 100, 101
sXCC, sWM, sS1OFF, sOST, sFL = 26, 27, 22, 16, 17
sGM, sGX, sW4 = 23, 24, 25
vLANE, vOFF16, vDQ, vTRQA, vTA, vTCH = 0, 1, 2, 3, 4, 5
vDW, vAR4, vAR, vTRQ, vTRW, vI, vG, vT = 6, 10, 14, 18, 19, 23, 24, 25
vDWO, vXO, vTR1, vPO, vPH, vFLO, vFLV, vZ, vMC, vO8 = 32, 33, 34, 37, 38, 39, 40, 41, 42, 43
vXA, vSTA, vLAST, vONE = 44, 45, 46, 47
vM, vD1, vBI, vWMO, vP0A, vS = 48, 52, 55, 58, 59, 60
LOG2E = 1.4426950408889634
def mk_srd(b, ptr, size):
    A(f's_mov_b32 s{b}, s{ptr}'); A(f's_mov_b32 s{b+1}, s{ptr+1}')
    A(f's_mov_b32 s{b+2}, {hx(size)}'); A(f's_mov_b32 s{b+3}, 0x00020000')

CLW = opt('clw', 8)
vXR0, vHS, vTQ, vTM = 64, 164, 90, 91
A('s_cmp_lt_u32 s2, 256')
A('s_cbranch_scc1 L_go')
A('s_endpgm')
A('L_go:')
TWICE = opt('twice', 0)
if TWICE:
    R_('v_writelane_b32 v31, s0, 40'); R_('v_writelane_b32 v31, s1, 41'); R_('v_mov_b32 v30, 0'); R_('s_mov_b32 s3, 0'); R_('v_writelane_b32 v31, s3, 42')
    R_('L_again:')
A('s_load_dwordx16 s[4:19], s[0:1], 0')
A('s_load_dwordx8 s[20:27], s[0:1], 64')
A('s_load_dwordx2 s[28:29], s[0:1], 96')
A(f's_getpc_b64 {sp(sTM)}')
A(f'v_lshrrev_b32 v{vT}, 6, v0')
A(f'v_and_b32 v{vLANE}, 63, v0')
A(f'v_readfirstlane_b32 s{sWAVE}, v{vT}')
A(f's_bfe_u32 s{sJ}, s2, 0x30003')
A(f's_lshl_b32 s{sT2}, s{sJ}, 2')
A(f's_add_u32 s{sT2}, s{sT2}, s{sWAVE}')
A(f's_mul_i32 s{sT0}, s{sT2}, {CLW*128}')
A(f'v_lshlrev_b32 v{vTA}, 7, v{vLANE}')
A(f'v_add_u32 v{vT}, s{sT0}, v{vTA}')
A(f's_mov_b64 exec, {hx((1<<CLW)-1)}')
vm(f'global_load_dword v{vTCH}, v{vT}, {sp(sTM)}', 'touch')
A('s_mov_b64 exec, -1')
A(f'v_lshlrev_b32 v{vOFF16}, 4, v{vLANE}')
A(f's_and_b32 s{sT0}, s2, 7')
A(f's_lshr_b32 s{sCQ}, s2, 6')
A(f's_lshl_b32 s{sCL}, s{sT0}, 2')
A(f's_add_u32 s{sCL}, s{sCL}, s{sCQ}')
A(f's_lshl_b32 s{sR0}, s{sCL}, 6')
A(f's_lshr_b32 s{sIW}, s2, 3')
A(f's_lshl_b32 s{sIW}, s{sIW}, 2')
A(f's_add_u32 s{sIW}, s{sIW}, s{sWAVE}')
A(f'v_lshrrev_b32 v{vT+2}, 2, v{vLANE}')
A(f'v_mul_u32_u24 v{vTM}, 6144, v{vT+2}')
A(f'v_and_b32 v{vT+2}, 3, v{vLANE}')
A(f'v_lshl_add_u32 v{vTM}, v{vT+2}, 7, v{vTM}')
A(f's_mul_i32 s{sLN+1}, s{sIW}, {4*6144}')
A(f's_lshl_b32 s{sT1}, s{sT0}, 9')
A(f's_add_u32 s{sWMB}, s{sLN+1}, s{sT1}')
A(f's_lshl_b32 s{sT1}, s{sT0}, 8')
A(f's_add_u32 s{sLN+1}, s{sLN+1}, s{sT1}')
sRL = [sG, sG+1, sG+2]; sRG = [sLN+4, sLN+5, sLN+6]
A(f's_mul_i32 s{sRL[0]}, s{sJ}, 10')
A(f's_add_u32 s{sRL[0]}, s{sRL[0]}, s{sWAVE}')
A(f's_add_u32 s{sRL[1]}, s{sRL[0]}, 4')
A(f's_add_u32 s{sRL[2]}, s{sRL[0]}, 8')
A(f's_min_u32 s{sRL[2]}, s{sRL[2]}, 79')
for k in range(3):
    A(f's_add_u32 s{sRG[k]}, s{sRL[k]}, s{sR0}')
    A(f's_sub_u32 s{sRG[k]}, s{sRG[k]}, 16')
    A(f's_max_i32 s{sRG[k]}, s{sRG[k]}, 0')
    A(f's_lshl_b32 s{sRG[k]}, s{sRG[k]}, 10')
A(f's_lshl_b32 s{sP}, s{sT0}, 3')
A(f's_min_u32 s{sT1}, s{sCQ}, 2')
A(f's_lshl_b32 s{sT1}, s{sT1}, 3')
A(f's_add_u32 s{sT1}, s{sT1}, 56')
A(f's_add_u32 s{sT1}, s{sT1}, s{sP}')
A(f's_cmp_eq_u32 s{sCQ}, 0')
A(f's_cselect_b32 s{sT1}, 0, s{sT1}')
A(f's_add_u32 s{sP}, s{sP}, s{sT1}')
A(f's_add_u32 s{sP}, s{sP}, s{sJ}')
A(f's_lshl_b32 s{sGW}, s2, 2')
A(f's_add_u32 s{sGW}, s{sGW}, s{sWAVE}')
A(f's_mul_i32 s{sT1}, s{sGW}, {12*128}')
A(f'v_add_u32 v{vTQ}, s{sT1}, v{vTA}')
A(f's_mul_i32 s{sT1}, s{sIW}, {12*1024}')
A(f's_add_u32 s{sT1}, s{sT1}, {hx(384 - 12*1024)}')
A(f'v_lshl_add_u32 v{vT+2}, v{vLANE}, 10, s{sT1}')
A(f'v_cmp_lt_u32 vcc, 11, v{vLANE}')
A(f'v_lshrrev_b32 v{vT+1}, 1, v{vLANE}')
A(f's_lshl_b32 s{sT0}, s{sWAVE}, 8')
A(f'v_cndmask_b32 v{vTQ}, v{vTQ}, v{vT+2}, vcc')
A(f'v_mul_u32_u24 v{vWMO}, {4*6144}, v{vT+1}')
A(f'v_lshl_add_u32 v{vT+1}, v{vT+1}, 3, s{sT0}')
A(f'v_mov_b32 v{vT+3}, 0')
A('s_waitcnt lgkmcnt(0)')
A(f's_mov_b64 s[0:1], {sp(sTM)}')
DBG = opt('dbg', 0)
if DBG:
    R_('v_writelane_b32 v31, s26, 50'); R_('v_writelane_b32 v31, s27, 51')
    R_(f's_memrealtime {sp(sTM)}'); R_('s_waitcnt lgkmcnt(0)'); R_(f'v_writelane_b32 v31, s{sTM}, 52')
    R_(f's_memtime {sp(sTM)}'); R_('s_waitcnt lgkmcnt(0)'); R_(f'v_writelane_b32 v31, s{sTM}, 53')
stamp('kernarg')
if STAMP:
    R_(f's_memrealtime {sp(sTM)}'); R_('s_waitcnt lgkmcnt(0)'); R_(f'v_writelane_b32 v31, s{sTM}, 28')
mk_srd(SWMOD, 22, 512*3072*2)
A('s_mov_b64 exec, 0x3333')
vm(f'buffer_load_dword v{vTCH}, v{vTM}, {srd(SWMOD)}, s{sLN+1} offen', 'touch')
A('s_mov_b64 exec, -1')
mk_srd(SWS, 28, WS_SIZE)
vE, vCV = vT+4, 62
vm(f'buffer_load_dword v{vE}, v{vT+3}, {srd(SWS)}, 0 offen sc1', 'E')
vm(f'global_load_dwordx2 {vr(vCV,2)}, v{vT+1}, {sp(sC)}', 'E')
mk_srd(SWQKV, 6, 512*1536*2)
A('s_mov_b64 exec, 0xffffff')
vm(f'buffer_load_dword v{vTCH}, v{vTQ}, {srd(SWQKV)}, 0 offen', 'touch')
A('s_mov_b64 exec, -1')
mk_srd(SWO, 8, 512*512*2)
A(f's_lshl_b32 s{sT0}, s{sGW}, 9')
A(f'v_add_u32 v{vTQ}, s{sT0}, v{vTA}')
A(f's_lshl_b32 s{sT0}, s{sIW}, 12')
A(f's_add_u32 s{sT0}, s{sT0}, {hx(384 - 4*1024)}')
A(f'v_lshl_add_u32 v{vT+2}, v{vLANE}, 10, s{sT0}')
A(f'v_cmp_lt_u32 vcc, 3, v{vLANE}')
A(f'v_cndmask_b32 v{vTQ}, v{vTQ}, v{vT+2}, vcc')
A('s_mov_b64 exec, 0xff')
vm(f'buffer_load_dword v{vTCH}, v{vTQ}, {srd(SWO)}, 0 offen', 'touch')
A('s_mov_b64 exec, -1')
if opt('tlb', 0):
    A(f's_mul_i32 s{sT0}, s{sCL}, {CLSZ}')
    A(f's_add_u32 s{sT0}, s{sT0}, {WS_CL + C_FLAG}')
    A('s_mov_b64 exec, 1')
    for pr in (4, 12, 16, 14, 18, 24): vm(f'global_load_dword v{vTCH}, v{vT+3}, {sp(pr)}', 'touch')
    vm(f'buffer_load_dword v{vTCH}, v{vT+3}, {srd(SWS)}, s{sT0} offen sc1', 'touch')
    A('s_mov_b64 exec, -1')
mk_srd(SX, 4, 2048*512*2)
mk_srd(SW1, 12, 512*1376*2)
mk_srd(SW2, 16, 1376*512*2)
mk_srd(SOUT, 24, 2048*512*2)
A(f's_mov_b32 s{sSPIN}, 0')
A(f's_mul_i32 s{sCB}, s{sCL}, {CLSZ}')
A(f's_add_u32 s{sCB}, s{sCB}, {WS_CL}')
A(f's_getreg_b32 s{sXCC}, hwreg(HW_REG_XCC_ID)')
A(f's_and_b32 s{sXCC}, s{sXCC}, 15')
A(f's_mul_i32 s{sWM}, s{sWAVE}, {128*6144}')
A(f's_lshl_b32 s{sT1}, s{sP}, 5')
A(f's_add_u32 s{sWM}, s{sWM}, s{sT1}')
t0, t1, t2, t3 = vT, vT+1, vT+2, vT+3
vRR, vC8, vFSW, vL8 = 92, 93, 94, 95
A(f'v_and_b32 v{t3}, 1, v{vLANE}')
A(f'v_lshl_add_u32 v{vWMO}, v{t3}, 4, v{vWMO}')
A(f'v_and_b32 v{vI}, 15, v{vLANE}')
A(f'v_lshrrev_b32 v{vG}, 4, v{vLANE}')
A(f'v_lshrrev_b32 v{t0}, 1, v{vG}')
A(f'v_and_b32 v{t1}, 1, v{vG}')
A(f'v_lshl_add_u32 v{t2}, v{t1}, 1, v{t0}')
A(f'v_lshl_add_u32 v{t2}, v{t3}, 3, v{t2}')
A(f's_lshl_b32 s{sT0}, s{sWAVE}, 6')
A(f's_add_u32 s{sT0}, s{sT0}, {L_P0S}')
A(f'v_lshl_add_u32 v{vP0A}, v{t2}, 2, s{sT0}')
A(f'v_and_b32 v{t3}, 7, v{vLANE}')
A(f'v_lshlrev_b32 v{vFLO}, 2, v{t3}')
A(f'v_lshlrev_b32 v{t3}, 4, v{t3}')
A(f'v_lshlrev_b32 v{t2}, 5, v{t1}')
A(f'v_xor_b32 v{t3}, v{t3}, v{t2}')
A(f'v_lshrrev_b32 v{vL8}, 3, v{vLANE}')
A(f's_and_b32 s{sT2}, s{sWAVE}, 1')
A(f's_lshl_b32 s{sT2}, s{sT2}, 6')
A(f'v_xor_b32 v{t1}, s{sT2}, v{t3}')
A(f'v_mul_u32_u24 v{vDQ}, 3072, v{vL8}')
A(f'v_add_u32 v{vDQ}, v{vDQ}, v{t1}')
A(f's_mul_i32 s{sSOFF}, s{sWAVE}, {8*3072}')
A(f's_lshl_b32 s{sT0}, s{sJ}, 7')
A(f's_add_u32 s{sSOFF}, s{sSOFF}, s{sT0}')
A(f's_mul_i32 s{sSLDS}, s{sWAVE}, 3072')
vWM = 96
def wmod_load_units(dst, tag, kind):
    U = []
    for n in range(4):
        U.append((f's_add_u32 s{sD0}, s{sWM}, {6144*n}', None, None))
        U.append((f'buffer_load_dwordx4 {vr(dst+4*n,4)}, v{vWMO}, {srd(SWMOD)}, s{sD0} offen', kind, tag))
    return U
l0 = label('Lnt')
R_(f's_sub_u32 s{sT1}, s{sCQ}, 1')
R_(f's_cmp_gt_u32 s{sT1}, 1')
R_(f's_cbranch_scc1 {l0}')
R_(f's_and_b32 s{sD0}, s{sP}, 3')
R_(f's_mul_i32 s{sD0}, s{sD0}, 6144')
R_(f's_add_u32 s{sD0}, s{sD0}, s{sWM}')
E0(f'buffer_load_dword v{vTCH}, v{vWMO}, {srd(SWMOD)}, s{sD0} offen', 'vm0', 'touch')
R_(f'{l0}:')
A(f'v_lshl_add_u32 v{vDW}, v{vL8}, 10, v{t3}')
A(f'v_xor_b32 v{vDW+1}, 64, v{vDW}')
A(f'v_add_u32 v{vDW+1}, 7168, v{vDW+1}')
A(f'v_add_u32 v{vDW+2}, {2*7168}, v{vDW}')
A(f'v_add_u32 v{vDW+3}, {2*7168}, v{vDW+1}')
A(f'v_lshl_add_u32 v{vDWO}, v{vL8}, 10, v{t1}')
A(f's_lshl_b32 s{sWOFF}, s{sWAVE}, 13')
A(f's_add_u32 s{sWOFF}, s{sWOFF}, s{sT0}')
A(f's_lshl_b32 s{sWLDS}, s{sWAVE}, 10')
A(f's_lshl_b32 s{sW4}, s{sWAVE}, 12')
A(f'v_mov_b32 v{vONE}, 0x3f803f80')
A(f'v_bfe_u32 v{vRR}, v{vLANE}, 2, 2')
A(f'v_lshrrev_b32 v{t1}, 1, v{vRR}')
A(f'v_and_b32 v{t2}, 1, v{vG}')
A(f'v_lshl_add_u32 v{vFSW}, v{t2}, 1, v{t1}')
A(f'v_and_b32 v{vC8}, 3, v{vLANE}')
A(f'v_lshlrev_b32 v{vC8}, 3, v{vC8}')
A(f'v_mul_u32_u24 v{t2}, 3072, v{vG}')
A(f'v_lshl_add_u32 v{t2}, v{vRR}, 7, v{t2}')
A(f'v_add_u32 v{t2}, v{t2}, v{vC8}')
A(f'v_xor_b32 v{t1}, s{sWAVE}, v{vFSW}')
A(f'v_lshl_add_u32 v{vTRQA}, v{t1}, 5, v{t2}')
A(f'v_add_u32 v{vTRQ}, {L_B}, v{vTRQA}')
A(f'v_lshl_add_u32 v{t3}, v{vG}, 3, v{vRR}')
A(f'v_lshl_add_u32 v{t2}, v{t3}, 7, v{vC8}')
A(f'v_add_u32 v{t2}, {L_B}, v{t2}')
for c in range(4):
    A(f's_add_u32 s{sT1}, s{sWAVE}, {c}')
    A(f's_and_b32 s{sT1}, s{sT1}, 3')
    A(f'v_xor_b32 v{t1}, s{sT1}, v{vFSW}')
    A(f'v_lshl_add_u32 v{vTRW+c}, v{t1}, 5, v{t2}')
A(f'v_mul_u32_u24 v{t0}, 384, v{t3}')
A(f'v_add_u32 v{t0}, v{t0}, v{vC8}')
A(f'v_add_u32 v{t0}, {L_B}, v{t0}')
A(f's_mul_i32 s{sT1}, s{sWAVE}, 3')
A(f's_mul_i32 s{sHB}, s{sJ}, 12')
A(f's_min_u32 s{sHB}, s{sHB}, 74')
A(f's_mul_i32 s{sS1OFF}, s{sWAVE}, {8*2752}')
A(f's_lshl_b32 s{sT0}, s{sHB}, 5')
A(f's_add_u32 s{sS1OFF}, s{sS1OFF}, s{sT0}')
A(f's_add_u32 s{sHB}, s{sHB}, s{sT1}')
A(f's_lshl_b32 s{sB1O}, s{sHB}, 5')
A(f's_lshl_b32 s{sHB}, s{sHB}, 9')
A(f's_add_u32 s{sHB}, s{sHB}, s{sCB}')
for tt in range(3):
    A(f'v_xor_b32 v{t1}, s{sT1}, v{vFSW}')
    A(f'v_lshl_add_u32 v{vTR1+tt}, v{t1}, 5, v{t0}')
    if tt < 2: A(f's_add_u32 s{sT1}, s{sT1}, 1')
for k in range(3):
    A(f's_and_b32 s{sT0}, s{sRL[k]}, 15')
    A(f's_lshl_b32 s{sT1}, s{sRL[k]}, 10')
    if k == 2:
        A(f's_cmp_lt_u32 s{sWAVE}, 2')
        A(f's_cselect_b32 s{sT1}, s{sT1}, 0x7ff00000')
    A(f'v_xor_b32 v{t0}, s{sT0}, v{vLANE}')
    A(f'v_lshl_add_u32 v{vHS+k}, v{t0}, 4, s{sT1}')
A(f'v_lshlrev_b32 v{t1}, 10, v{vI}')
for m in range(4):
    A(f'v_add_u32 v{t0}, {4*m}, v{vG}')
    A(f'v_xor_b32 v{t0}, v{t0}, v{vI}')
    A(f'v_lshl_add_u32 v{vAR+m}, v{t0}, 4, v{t1}')
    A(f'v_add_u32 v{vAR4+m}, 0x10000, v{vAR+m}')
for n in range(3):
    A(f'v_add_u32 v{t0}, {64*n}, v{vLANE}')
    A(f'v_mul_u32_u24 v{t1}, 2731, v{t0}')
    A(f'v_lshrrev_b32 v{t1}, 16, v{t1}')
    A(f'v_mul_u32_u24 v{t2}, 24, v{t1}')
    A(f'v_sub_u32 v{t2}, v{t0}, v{t2}')
    A(f'v_lshlrev_b32 v{t2}, 4, v{t2}')
    A(f'v_bfe_u32 v{t3}, v{t1}, 1, 1')
    A(f'v_lshlrev_b32 v{t3}, 5, v{t3}')
    A(f'v_xor_b32 v{t2}, v{t2}, v{t3}')
    A(f'v_xor_b32 v{t2}, s{sT2}, v{t2}')
    A(f'v_mul_u32_u24 v{t1}, 2752, v{t1}')
    A(f'v_add_u32 v{vD1+n}, v{t1}, v{t2}')
    if n: A(f'v_subrev_u32 v{vD1+n}, {n*1024}, v{vD1+n}')
A(f's_cmp_eq_u32 s{sWAVE}, 3')
A(f's_cselect_b32 s{sT0}, 0x7ffffff0, 0')
A(f'v_or_b32 v{vLAST}, s{sT0}, v{vOFF16}')
A(f's_mov_b32 s{sMSK}, 0x7f800000')
A(f's_cmp_eq_u32 s{sCL}, 0')
A(f's_cselect_b32 s{sMSK}, {hx(f2u(-4e9))}, s{sMSK}')
A(f'v_lshlrev_b32 v{t0}, 2, v{vG}')
for r in range(4):
    A(f'v_add_u32 v{t1}, {r}, v{t0}')
    A(f'v_cmp_le_u32 {sp(4+2*r)}, v{t1}, v{vI}')
A(f'v_and_b32 v{t1}, 1, v{vI}')
A(f'v_cmp_eq_u32 {sp(12)}, 1, v{t1}')
A(f'v_mov_b32 v{t2}, 0xffff')
A(f'v_mov_b32 v{t3}, 0xffff0000')
A(f'v_cndmask_b32 v{t2}, v{t2}, v{t3}, {sp(12)}')
A(f'v_add_u32 v{t1}, v{t1}, v{t0}')
for k in range(2):
    A(f'v_cmp_le_u32 vcc, v{t1}, v{vI}')
    A(f'v_cndmask_b32 v{vM+2+k}, 0, v{t2}, vcc')
    A(f'v_xor_b32 v{vM+k}, v{vM+2+k}, v{t2}')
    if k == 0: A(f'v_add_u32 v{t1}, 2, v{t1}')
A(f'v_lshrrev_b32 v{t0}, 1, v{vG}')
A(f'v_and_b32 v{t1}, 1, v{vG}')
A(f'v_lshlrev_b32 v{t0}, 8, v{t0}')
A(f'v_lshl_add_u32 v{t0}, v{vI}, 4, v{t0}')
A(f'v_lshl_add_u32 v{vPO}, v{t1}, 14, v{t0}')
A(f'v_mul_u32_u24 v{t1}, {HRT}, v{t1}')
A(f'v_add_u32 v{vPH}, v{t1}, v{t0}')
A(f's_lshl_b32 s{sOST}, s{sJ}, 11')
A(f's_lshl_b32 s{sT1}, s{sWAVE}, 9')
A(f's_add_u32 s{sOST}, s{sOST}, s{sT1}')
A(f's_add_u32 s{sOST}, s{sOST}, s{sCB}')
A(f's_add_u32 s{sFL}, s{sCB}, {C_FLAG}')
A(f's_lshl_b32 s{sT0}, s{sJ}, 2')
A(f'v_mov_b32 v{vZ}, s{sT0}')
A(f's_lshl_b32 s{sT0}, s{sJ}, 7')
A(f's_lshl_b32 s{sT1}, s{sWAVE}, 5')
A(f's_add_u32 s{sT0}, s{sT0}, s{sT1}')
A(f's_lshl_b32 s{sXO}, s{sR0}, 10')
A(f's_add_u32 s{sXO}, s{sXO}, s{sT0}')
A(f's_add_u32 s{sT0}, s{sT0}, {L_MODT}')
A(f'v_lshl_add_u32 v{vMC}, v{vG}, 3, s{sT0}')
A(f'v_lshlrev_b32 v{vO8}, 3, v{vLANE}')
A(f's_lshl_b32 s{sSB}, s{sWAVE}, 8')
A(f's_add_u32 s{sSB}, s{sSB}, s{sCB}')
A(f's_add_u32 s{sSB}, s{sSB}, {C_ST}')
A(f'v_mul_u32_u24 v{vSTA}, 6144, v{vG}')
A(f'v_lshl_add_u32 v{vSTA}, v{vI}, 4, v{vSTA}')
A(f'v_lshrrev_b32 v{t0}, 2, v{vI}')
A(f'v_mov_b32 v{vXA}, {L_ONES}')
A(f'v_mov_b32 v{t2}, {L_MODT+4*1024}')
A(f'v_cmp_eq_u32 vcc, 0, v{t0}')
A(f'v_cndmask_b32 v{vXA}, v{vXA}, v{t2}, vcc')
A(f'v_mov_b32 v{t2}, {L_MODT+3*1024}')
A(f'v_cmp_eq_u32 vcc, 1, v{t0}')
A(f'v_cndmask_b32 v{vXA}, v{vXA}, v{t2}, vcc')
A(f'v_lshl_add_u32 v{vXA}, v{vG}, 4, v{vXA}')
A(f's_lshl_b32 s{sGX}, s{sCL}, 6')
A(f's_add_u32 s{sGX}, s{sGX}, {WS_XCC}')
A(f's_lshl_b32 s{sGM}, s{sWAVE}, 11')
A(f's_add_u32 s{sGM}, s{sGM}, {WS_MOD + 4096}')
vTP, vTW2 = 250, 178
sXT = sWMB
A(f'v_and_b32 v{t0}, 7, v{vLANE}')
A(f'v_lshlrev_b32 v{t0}, 4, v{t0}')
A(f'v_lshl_add_u32 v{vTP}, v{vL8}, 10, v{t0}')
A(f'v_add_u32 v{vTP+4}, 8192, v{vTP}')
A(f's_lshl_b32 s{sXT}, s{sWAVE}, 4')
A(f's_add_u32 s{sXT}, s{sXT}, s{sR0}')
A(f's_lshl_b32 s{sXT}, s{sXT}, 10')
A(f's_lshl_b32 s{sT0}, s{sJ}, 7')
A(f's_add_u32 s{sXT}, s{sXT}, s{sT0}')
A(f's_lshl_b32 s{sT0}, s{sWAVE}, 5')
A(f's_add_u32 s{sT0}, s{sT0}, {L_ST1}')
A(f'v_lshl_add_u32 v{t0}, v{vI}, 7, s{sT0}')
A(f'v_lshl_add_u32 v{vXO}, v{vG}, 3, v{t0}')
A(f's_mul_i32 s{sT0}, s{sGW}, {11*128}')
A(f'v_min_u32 v{t0}, {10*128}, v{vTA}')
A(f'v_add_u32 v{vTP+1}, s{sT0}, v{t0}')
A(f'v_lshl_add_u32 v{vTP+2}, v{vI}, 1, s{sB1O}')
A(f's_lshl_b32 s{sT0}, s{sJ}, 7')
A(f'v_min_u32 v{t0}, 31, v{vLANE}')
A(f'v_lshl_add_u32 v{vTP+3}, v{t0}, 2, s{sT0}')
A(f's_mul_i32 s{sT0}, s{sIW}, {11*1024}')
A(f's_add_u32 s{sT0}, s{sT0}, {hx(384 - 11*1024)}')
A(f'v_min_u32 v{t0}, 21, v{vLANE}')
A(f'v_lshl_add_u32 v{t0}, v{t0}, 10, s{sT0}')
A(f'v_cmp_lt_u32 vcc, 10, v{vLANE}')
A(f'v_cndmask_b32 v{vTW2}, v{vTP+1}, v{t0}, vcc')
vON = 180
for r in range(4): A(f'v_mov_b32 v{vON+r}, 0x3f803f80')
A(f'v_add_u32 v{t1}, {L_ONES}, v{vOFF16}')
lg(f'ds_write_b128 v{t1}, {vr(vON,4)}', 'ones')
stamp('setup', 1)
l0 = label('Lnw')
R_(f's_cmp_eq_u32 s{sCQ}, 3')
R_(f's_cbranch_scc1 {l0}')
for u in wmod_load_units(vWM, 'wmodA', 'vm0'): emit(u)
R_(f'{l0}:')

def q_lds(n):
    if n == 0: return 65536
    if n <= 5: return L_B + (n-1)*12288
    if n <= 11: return L_A1 + (n-6)*12288
    return L_B + (n-12)*12288
def q_enq(n):
    for p in range(3):
        bg_dma(f's_add_u32 m0, s{sSLDS}, {q_lds(n)}', f's_add_u32 s{sD0}, s{sSOFF}, {n*32*3072}',
               f'buffer_load_dwordx4 v{vDQ}, {srd(SWQKV)}, s{sD0} offen offset:{p*1024} lds', f'q{n}')
def q_read(lo_, hi_, E):
    for n in range(lo_, hi_):
        for p in range(3):
            a = 64*p + 4*n
            base, off = (vTRQA, q_lds(n) - L_A1) if q_lds(n) < L_B else (vTRQ, q_lds(n) - L_B)
            if n == 0: base, off = vT+2, 0
            off += p*1024
            E(f'ds_read_b64_tr_b16 {ar(a,2)}, v{base} offset:{off}', 'lg', f'qr{n}')
            E(f'ds_read_b64_tr_b16 {ar(a+2,2)}, v{base} offset:{off+512}', 'lg', f'qr{n}')
def wo_enq(kk):
    bg_dma(f's_add_u32 m0, s{sWLDS}, {L_A1 + kk*4096}', f's_add_u32 s{sD0}, s{sWOFF}, {kk*32*1024}',
           f'buffer_load_dwordx4 v{vDWO}, {srd(SWO)}, s{sD0} offen lds', 'wo')

for kk in range(opt('xat', 4)): wo_enq(kk)
for k in range(3):
    bg(f'buffer_load_dwordx4 {vr(vXR0+8*k+4,4)}, v{vOFF16}, {srd(SX)}, s{sRG[k]} offen', 'vm', 'x')
for kk in range(opt('xat', 4), 16): wo_enq(kk)
for n in range(6): q_enq(n)
bg_pop(opt('pre0', 2))
wait('E')
stamp('E', 1)
A(f'v_readfirstlane_b32 s{sTAG}, v{vE}')
A(f's_mul_i32 s{sTAG}, s{sTAG}, 1664525')
A(f's_add_u32 s{sTAG}, s{sTAG}, 1013904223')
if TWICE:
    R_(f'v_readlane_b32 s{sT0}, v31, 42'); R_('s_nop 3'); R_(f's_add_u32 s{sTAG}, s{sTAG}, s{sT0}')
unpack(vS, vCV); unpack(vS+2, vCV+1)
for n in range(4): A(f'v_mul_f32 v{88+n}, {hx(f2u(-LOG2E))}, v{vS+n}')
for n in range(4): A(f'v_exp_f32 v{88+n}, v{88+n}')
for n in range(4): A(f'v_add_f32 v{88+n}, 1.0, v{88+n}')
for n in range(4): A(f'v_rcp_f32 v{88+n}, v{88+n}')
for n in range(4): A(f'v_mul_f32 v{vS+n}, v{vS+n}, v{88+n}')
A(f'v_cvt_pk_bf16_f32 v88, v{vS}, v{vS+1}')
A(f'v_cvt_pk_bf16_f32 v89, v{vS+2}, v{vS+3}')
unpack(vS, 88); unpack(vS+2, 89)
def p0_body(E, wm, ac, tp, pk=True):
    for n in range(4):
        for d in range(4): unpack(tp+2*d, wm+4*n+d, E)
        for d in range(4):
            if not pk:
                for h in range(2):
                    E(f'{"v_mul_f32" if n == 0 else "v_fmac_f32"} v{ac+2*d+h}, v{tp+2*d+h}, v{vS+n}')
            elif n == 0: E(f'v_pk_mul_f32 {vr(ac+2*d,2)}, {vr(tp+2*d,2)}, {vr(vS,2)} op_sel_hi:[1,0]')
            else:
                b = vS + (n & 2); o = n & 1
                E(f'v_pk_fma_f32 {vr(ac+2*d,2)}, {vr(tp+2*d,2)}, {vr(b,2)}, {vr(ac+2*d,2)} op_sel:[0,{o},0] op_sel_hi:[1,{o},1]')
    for e in (0, 2, 4, 6): E(f'v_permlane32_swap_b32 v{ac+e}, v{ac+e+1}')
    for e in (0, 2, 4, 6): E(f'v_add_f32 v{ac+e}, v{ac+e}, v{ac+e+1}')
    for e in (0, 4): E(f'v_permlane16_swap_b32 v{ac+e}, v{ac+e+2}')
    for e in (0, 4): E(f'v_add_f32 v{ac+e}, v{ac+e}, v{ac+e+2}')
    for n in (8, 4, 2):
        ror_add(ac, n, E); ror_add(ac+4, n, E)
    E(f'ds_write_b32 v{vP0A}, v{ac}', 'lg', 'p0w')
    E(f'ds_write_b32 v{vP0A}, v{ac+4} offset:16', 'lg', 'p0w')
def p0_publish(tb):
    R_(f'v_lshlrev_b32 v{tb+8}, 1, v{vFLO}')
    R_(f'v_add_u32 v{tb+9}, {L_P0S}, v{tb+8}')
    R_(f's_lshl_b32 s{sT0}, s{sP}, 6')
    for w in range(4): R_(f'ds_read_b64 {vr(tb+2*w,2)}, v{tb+9} offset:{64*w}')
    lk = label('Lperm')
    R_(f's_cmp_lg_u32 s{sCQ}, 0')
    R_(f's_cbranch_scc1 {lk}')
    R_(f'v_bfe_u32 v{tb+9}, v{vLANE}, 1, 1')
    R_(f'v_and_b32 v{tb+8}, 1, v{vLANE}')
    R_(f'v_lshlrev_b32 v{tb+8}, 3, v{tb+8}')
    R_(f'v_lshl_add_u32 v{tb+8}, v{tb+9}, 10, v{tb+8}')
    R_(f'v_bfe_u32 v{tb+9}, v{vLANE}, 2, 1')
    R_(f'v_lshl_add_u32 v{tb+8}, v{tb+9}, 4, v{tb+8}')
    R_(f's_and_b32 s{sT1}, s{sP}, 31')
    R_(f's_lshl_b32 s{sT1}, s{sT1}, 5')
    R_(f's_sub_u32 s{sT0}, s{sT0}, s{sT1}')
    R_(f'{lk}:')
    R_(f's_add_u32 s{sT0}, s{sT0}, {WS_MOD}')
    R_('s_waitcnt lgkmcnt(0)')
    R_(f'v_pk_add_f32 {vr(tb,2)}, {vr(tb,2)}, {vr(tb+2,2)}')
    R_(f'v_pk_add_f32 {vr(tb+4,2)}, {vr(tb+4,2)}, {vr(tb+6,2)}')
    R_(f'v_pk_add_f32 {vr(tb,2)}, {vr(tb,2)}, {vr(tb+4,2)}')
    R_(f'v_cvt_pk_bf16_f32 v{tb}, v{tb}, v{tb+1}')
    R_(f'v_mov_b32 v{tb+1}, s{sTAG}')
    R_(f's_mov_b64 exec, 0xff')
    R_(f'buffer_store_dwordx2 {vr(tb,2)}, v{tb+8}, {srd(SWS)}, s{sT0} offen sc1')
    R_(f's_mov_b64 exec, -1')
l0 = label('Lp0e')
R_(f's_cmp_eq_u32 s{sCQ}, 3')
R_(f's_cbranch_scc1 {l0}')
saveV, saveL, saveB = list(VM.q), list(LG.q), list(BG.q)
wait('wmodA')
bg_on(opt('ip0', 60))
p0_body(A, vWM, 112, 120)
bg_off()
npop = len(saveB) - len(BG.q)
l3 = label('Lp0j')
R_(f's_branch {l3}')
R_(f'{l0}:')
VM.q, LG.q = saveV, saveL
for u in saveB[:npop]: emit(u)
R_(f'{l3}:')
wait_all_lg()
R_('s_barrier')
l0, l1 = label('Lpub0'), label('Lpub0')
R_(f's_cmp_lg_u32 s{sWAVE}, 0')
R_(f's_cbranch_scc1 {l0}')
R_(f's_cmp_eq_u32 s{sCQ}, 3')
R_(f's_cbranch_scc1 {l1}')
p0_publish(vWM)
R_(f'{l1}:')
R_(f'v_mov_b32 v{vT+2}, s{sTAG}')
R_(f'v_mov_b32 v{vT+1}, s{sXCC}')
R_(f'v_lshlrev_b32 v{vT}, 1, v{vZ}')
R_('s_mov_b64 exec, 1')
R_(f'buffer_store_dwordx2 {vr(vT+1,2)}, v{vT}, {srd(SWS)}, s{sGX} offen sc1')
R_('s_mov_b64 exec, -1')
R_(f'{l0}:')
stamp('p0 early done')
bg_pop(opt('qpre', 12))
bg_on(opt('iln', 60))
wait('x')
sa = [88, 89, 90, 91]; sq = [92, 93, 94, 95]
for d in range(4):
    for q in range(3):
        A(f'v_dot2_f32_bf16 v{sa[q]}, v{vXR0+8*q+4+d}, v{vONE}, {"0" if d==0 else "v%d"%sa[q]}')
    for q in range(3):
        A(f'v_dot2_f32_bf16 v{sq[q]}, v{vXR0+8*q+4+d}, v{vXR0+8*q+4+d}, {"0" if d==0 else "v%d"%sq[q]}')
A(f'v_mov_b32 v{sa[3]}, 0'); A(f'v_mov_b32 v{sq[3]}, 0')
U = []
for q in range(3):
    for d in range(4): unpack(vXR0+8*q+2*d, vXR0+8*q+4+d, U.append)
C = []
red32(sa[0], sa[2], C.append); red32(sa[1], sa[3], C.append); red32(sq[0], sq[2], C.append); red32(sq[1], sq[3], C.append)
red16(sa[0], sa[1], C.append); red16(sq[0], sq[1], C.append)
for n in (8, 4, 2, 1):
    ror_add(sa[0], n, C.append); ror_add(sq[0], n, C.append)
C.append(f'v_mul_f32 v{sa[0]}, {hx(f2u(1/512))}, v{sa[0]}')
C.append(f'v_mul_f32 v{sq[0]}, {hx(f2u(1/512))}, v{sq[0]}')
C.append(f'v_fma_f32 v{sq[0]}, -v{sa[0]}, v{sa[0]}, v{sq[0]}')
C.append(f'v_max_f32 v{sq[0]}, 0, v{sq[0]}')
C.append(f'v_add_f32 v{sq[0]}, {hx(f2u(1e-5))}, v{sq[0]}')
C.append(f'v_rsq_f32 v{sq[0]}, v{sq[0]}')
C.append(f'v_mul_f32 v{sa[0]}, -v{sa[0]}, v{sq[0]}')
for q in range(3):
    C.append(f'v_readlane_b32 s{sLN+2*q}, v{sq[0]}, {16*q}')
    C.append(f'v_readlane_b32 s{sLN+2*q+1}, v{sa[0]}, {16*q}')
while C:
    if U: A(U.pop(0))
    A(C.pop(0))
for q in range(3):
    b = vXR0 + 8*q
    for d in range(4):
        A(f'v_pk_fma_f32 {vr(b+2*d,2)}, {vr(b+2*d,2)}, {sp(sLN+2*q)}, {sp(sLN+2*q)} op_sel:[0,0,1] op_sel_hi:[1,0,1]')
bg_off()
stamp('ln done', 1)
vG1R, vXC, vGS = 128, 144, 148
A(f'v_lshlrev_b32 v{vT+4}, 1, v{vFLO}')
A(f's_mov_b32 s{sT2}, {WS_MOD}')
def gather1_issue(E):
    for n in range(4):
        E(f'buffer_load_dwordx4 {vr(vG1R+4*n,4)}, v{vOFF16}, {srd(SWS)}, s{sT2} offen offset:{n*1024} sc1', 'vm', 'g1')
    E(f'buffer_load_dwordx2 {vr(vXC,2)}, v{vT+4}, {srd(SWS)}, s{sGX} offen sc1', 'vm', 'g1')
A(f'v_add_u32 v{vT+2}, 0x10000, v{vTRQA}')
A(f'v_subrev_u32 v{vT+3}, {L_B}, v{vTRW}')
NG = opt('ng', 4)
k_ = max(i_ for i_, u in enumerate(BG.q) if u[2] == f'q{NG}') + 1
rest = list(BG.q)[k_:]
for _ in rest: BG.q.pop()
gather1_issue(bg)
bg(f'buffer_load_dword v{vTCH}, v{vFLO}, {srd(SWS)}, s{sFL} offen sc1', 'vm', 'touch')
bg(f'buffer_load_dword v{vTCH}, v{vFLO}, {srd(SWS)}, s{sFL} offen offset:128 sc1', 'vm', 'touch')
BG.q.extend(rest)
IR = opt('ird', 44)
QS = dict(read=0, enq=6)
def q_pred(m): return 0 if m <= 11 else m - 11
def q_pre(until, landed):
    bg_until(f'q{min(until, QS["enq"]-1)}')
    wait(f'q{landed}', f'qr{QS["read"]-1}')
def q_post(landed, pace=True):
    while QS['enq'] < 16 and q_pred(QS['enq']) < QS['read']:
        q_enq(QS['enq']); QS['enq'] += 1
    if pace: bg_pop(opt('qpp', 2)); bg_on(IR)
    if QS['read'] == 0:
        for k2 in range(16):
            lg(f'ds_read_b64_tr_b16 {ar(192+4*k2,2)}, v{vT+3} offset:{k2*4096}', 'wor')
            lg(f'ds_read_b64_tr_b16 {ar(194+4*k2,2)}, v{vT+3} offset:{k2*4096+512}', 'wor')
    q_read(QS['read'], landed + 1, A)
    QS['read'] = max(QS['read'], landed + 1)
    bg_off()
def qbar(name, until, landed):
    until, landed = opt(name + 'u', until), opt(name + 'l', landed)
    q_pre(until, landed); R_('s_barrier'); stamp(name, 1); q_post(landed)
qbar('B1', 3, 0)
qbar('B2', 5, 1)
bg_until(f'q{opt("gq_", 9)}')
def tag_check(regs, t):
    R_(f'v_xor_b32 v{t}, s{sTAG}, v{regs[0]}')
    for r in regs[1:]:
        R_(f'v_xor_b32 v{t+1}, s{sTAG}, v{r}')
        R_(f'v_or_b32 v{t}, v{t}, v{t+1}')
    R_(f'v_cmp_ne_u32 vcc, 0, v{t}')
def checked(tag, issue, regs):
    wait(tag)
    lp, ld = label('Lg'), label('Lgok')
    tag_check(regs, vT)
    R_(f's_cbranch_vccz {ld}')
    R_(f'{lp}:')
    issue(lambda t, k, g: R_(t))
    R_('s_waitcnt vmcnt(0)')
    tag_check(regs, vT)
    R_(f's_cbranch_vccz {ld}')
    spin_guard(lp, ld)
checked('g1', gather1_issue, [vG1R+1+2*k for k in range(9)])
stamp('mod arrived')
for d in range(4): unpack(vGS+2*d, vG1R+8+2*d)
for d in range(4): A(f'v_pk_add_f32 {vr(vGS+2*d,2)}, {vr(vGS+2*d,2)}, 1.0 op_sel_hi:[1,0]')
for d in range(4):
    A(f'v_cvt_pk_bf16_f32 v{vG1R+8+2*d}, v{vGS+2*d}, v{vGS+2*d+1}')
    unpack(vGS+8+2*d, vG1R+2*d)
for d in range(4): unpack(vGS+2*d, vG1R+8+2*d)
A(f's_add_u32 s{sT2}, s{sCB}, {C_A}')
for q in range(3):
    b = vXR0 + 8*q
    for d in range(4): A(f'v_pk_fma_f32 {vr(b+2*d,2)}, {vr(b+2*d,2)}, {vr(vGS+2*d,2)}, {vr(vGS+8+2*d,2)}')
    for d in range(4): A(f'v_cvt_pk_bf16_f32 v{b+d}, v{b+2*d}, v{b+2*d+1}')
    vm(f'buffer_store_dwordx4 {vr(b,4)}, v{vHS+q}, {srd(SWS)}, s{sT2} offen sc1', 'st')
R_(f'v_cmp_ne_u32 vcc, s{sXCC}, v{vXC}')
R_(f's_cmp_eq_u64 vcc, 0')
R_(f's_cselect_b32 s{sLOCAL}, {0 if FORCE_GLOBAL else 1}, 0')
vG2 = 96
def gather2_issue(E):
    for n in range(2):
        E(f'buffer_load_dwordx4 {vr(vG2+4*n,4)}, v{vOFF16}, {srd(SWS)}, s{sGM} offen offset:{n*1024} sc1', 'vm', 'g2')
gather2_issue(E0)
qbar('B3', 11, 5)
checked('g2', gather2_issue, [vG2+1, vG2+3, vG2+5, vG2+7])
R_(f's_cmp_eq_u32 s{sWAVE}, 2')
R_(f's_cselect_b32 s{sT1}, 1.0, 0')
for k in range(4):
    unpack(vT+2, vG2+2*k)
    A(f'v_add_f32 v{vT+2}, s{sT1}, v{vT+2}')
    A(f'v_add_f32 v{vT+3}, s{sT1}, v{vT+3}')
    A(f'v_cvt_pk_bf16_f32 v{vG2+8+k}, v{vT+2}, v{vT+3}')
A(f's_add_u32 s{sT0}, s{sWLDS}, {L_MODT + 2048}')
A(f'v_add_u32 v{vT+4}, s{sT0}, v{vO8}')
for n in range(2): lg(f'ds_write_b64 v{vT+4}, {vr(vG2+8+2*n,2)} offset:{n*512}', 'modw')
wait(None, 'modw')
q_pre(opt('B4u', 10), opt('B4l', 7))

def code_touch(E):
    E(f's_and_b32 s{sT0}, s{sIW}, 31')
    E(f's_mul_i32 s{sT0}, s{sT0}, {CLW*128}')
    E(f'v_min_u32 v{vT+1}, {(CLW-1)*128}, v{vTA}')
    E(f'v_add_u32 v{vT+1}, s{sT0}, v{vT+1}')
    E(f'global_load_dword v{vTCH}, v{vT+1}, s[0:1]', 'vm', 'touch')
EARLIEST = {}
def flag(h, tag, E=E0, ct=False):
    l, l2 = label('Lpub'), label('Lpub')
    R_(f's_cmp_lg_u32 s{sWAVE}, 0')
    R_(f's_cbranch_scc1 {l}')
    R_(f's_add_u32 s{sT1}, s{sTAG}, {h+1}')
    R_(f'v_mov_b32 v{vT}, s{sT1}')
    R_('s_mov_b64 exec, 1')
    R_(f's_cmp_eq_u32 s{sLOCAL}, 1')
    R_(f's_cbranch_scc1 {l2}')
    R_(f'buffer_store_dword v{vT}, v{vZ}, {srd(SWS)}, s{sFL} offen offset:{32*h} sc1')
    R_(f's_mov_b64 exec, -1')
    R_(f's_branch {l}')
    R_(f'{l2}:')
    R_(f'buffer_store_dword v{vT}, v{vZ}, {srd(SWS)}, s{sFL} offen offset:{32*h}')
    R_('s_mov_b64 exec, -1')
    R_(f'{l}:')
    R_(f'; pub {h}')
    BG.deadline = min(BG.dl0, max(M.t + M.SKEW + 300, EARLIEST.get(h, 0)))
    if opt('pt', 0):
        for t in STORES[tag]: E(t, 'vm', 'touch')
    STORES[tag] = []
    if ct and opt('ct', 1): code_touch(E0)
def publish(h, tag='st', ltag=None, ct=True):
    wait(tag, ltag)
    R_('s_barrier')
    flag(h, tag, E0, ct)
def poll_issue(h, E=E0):
    E(f'buffer_load_dword v{vFLV}, v{vFLO}, {srd(SWS)}, s{sFL} offen offset:{32*h} sc1', 'vm', 'poll')
POLLED = set()
def want_seen(h, earliest=0): return max(M.pubs[h] + M.SKEW + 300, earliest)
def poll_maybe(h, earliest=0, force=False):
    if h in POLLED or h not in M.pubs: return
    if force or M.t >= max(M.pubs[h] + M.SKEW - 260, earliest - 800):
        bg_front(lambda: poll_issue(h, bg)); bg_until('poll'); POLLED.add(h)
        BG.deadline = min(BG.dl0, max(M.done['poll'], earliest) + opt('behind', 700))
TASKS = []; TDONE = set()
def task(name, ready, action): TASKS.append((name, ready, action))
def service(force=None):
    while True:
        cand = sorted(((r(), i) for i, (nm, r, a) in enumerate(TASKS)), key=lambda z: z[0])
        cand = [c for c in cand if c[0] < 1e8]
        if not cand:
            assert force is None or force in TDONE, force
            return
        tm, i = cand[0]
        if tm <= M.t + 20 or (force is not None and force not in TDONE):
            nm, r, a = TASKS.pop(i)
            if tm > M.t + 20: bg_fill()
            a(); TDONE.add(nm)
        else: return
def t_pub(h, tag, ct=False, after=None):
    def act():
        wait(tag); xbar('mt', 0); flag(h, tag, E0, ct); stamp(f'pub{h}', 4)
        if after: after()
    task(f'pub{h}', lambda: M.done[tag], act)
def t_seen(h, then, pre=lambda: True, earliest=0):
    def rp(): return max(M.pubs[h] + M.SKEW - 260, earliest - 800) if h in M.pubs else 1e9
    task(f'poll{h}', rp, lambda: poll_maybe(h, earliest, True))
    def act():
        poll_check(h); stamp(f'seen{h}', 4); then()
    task(f'seen{h}', lambda: max(M.done['poll'], earliest) if h in POLLED and pre() else 1e9, act)
def until_landed(tag):
    bg_until(tag)
    while True:
        c = sorted((r(), nm) for nm, r, a in TASKS)
        if c and c[0][0] <= M.done[tag]: service(c[0][1])
        else: break
    bg_fill()
def fill_until(cond, fillers):
    for f in fillers:
        service()
        if cond(): return
        f()
    service()
def win(dl0=1e9):
    BG.dl0 = dl0; bg_auto(dl0)
def poll_check(h):
    pass
    R_(f's_add_u32 s{sT1}, s{sTAG}, {h+1}')
    wait('poll')
    lp, ld = label('Lw'), label('Lwok')
    R_(f'v_cmp_ne_u32 vcc, s{sT1}, v{vFLV}')
    R_(f's_cbranch_vccz {ld}')
    R_(f'{lp}:')
    R_(f'buffer_load_dword v{vFLV}, v{vFLO}, {srd(SWS)}, s{sFL} offen offset:{32*h} sc1')
    R_('s_waitcnt vmcnt(0)')
    R_(f'v_cmp_ne_u32 vcc, s{sT1}, v{vFLV}')
    R_(f's_cbranch_vccz {ld}')
    spin_guard(lp, ld)
def await_(h):
    poll_issue(h); poll_check(h)
sQ = sLN
def tile_enq(rt, tag):
    for j in range(4):
        bg_dma(f's_add_u32 m0, s{sW4}, {L_A1 + rt*16384}', f's_add_u32 s{sD0}, s{sQ}, {rt*16384}',
               f'buffer_load_dwordx4 v{vOFF16}, {srd(SWS)}, s{sD0} offen offset:{j*1024} sc1 lds', f'{tag}{rt}')
A(f's_add_u32 s{sQ}, s{sT2}, s{sW4}')
publish(0)
stamp('h published')
q_post(opt('B4l', 7))
bg_until(f'q{opt("pq", 14)}')
poll_issue(0)
qbar('B5', 14, 11)
bg_flush()
vGA, vGB, vGP, vSP, vGG = 224, 228, 232, 236, 240
A(f'v_and_b32 v{vT+5}, {hx(~8)}, v{vMC}')
A(f'v_add_u32 v{vT+1}, {L_MODT}, v{vOFF16}')
lg(f'ds_read_b128 {vr(144,4)}, v{vT+1} offset:{4*1024}', 'c')
lg(f'ds_read_b128 {vr(148,4)}, v{vT+1} offset:{3*1024}', 'c')
lg(f'ds_read_b64 {vr(vGA+2,2)}, v{vMC} offset:{2*1024}', 'c')
lg(f'ds_read_b64 {vr(vGB+2,2)}, v{vMC} offset:{4*1024}', 'c')
lg(f'ds_read_b128 {vr(vGP,4)}, v{vT+5} offset:{4*1024}', 'c')
lg(f'ds_read_b128 {vr(vSP,4)}, v{vT+5} offset:{3*1024}', 'c')
wait(None, 'c')
q5 = [244, 245, 246, 247, 248]
for d in range(4):
    c = lambda r: '0' if d == 0 else f'v{r}'
    A(f'v_dot2_f32_bf16 v{q5[0]}, v{144+d}, v{vONE}, {c(q5[0])}')
    A(f'v_dot2_f32_bf16 v{q5[1]}, v{144+d}, v{144+d}, {c(q5[1])}')
    A(f'v_dot2_f32_bf16 v{q5[2]}, v{148+d}, v{vONE}, {c(q5[2])}')
    A(f'v_dot2_f32_bf16 v{q5[3]}, v{148+d}, v{148+d}, {c(q5[3])}')
    A(f'v_dot2_f32_bf16 v{q5[4]}, v{144+d}, v{148+d}, {c(q5[4])}')
L_ = lo
for b in (vGA, vGB):
    unpack(b, b+2, lo); unpack(b+2, b+3, lo)
red32(q5[0], q5[2], L_); red32(q5[1], q5[3], L_)
L_(f'v_mov_b32 v{q5[4]+1}, v{q5[4]}'); lo_gap(1)
red16(q5[0], q5[1], L_); red32(q5[4], q5[4]+1, L_)
L_(f'v_mov_b32 v{q5[4]+1}, v{q5[4]}'); lo_gap(1); red16(q5[4], q5[4]+1, L_)
for n in (8, 4, 2, 1):
    lo_gap(1); ror_add(q5[0], n, L_); ror_add(q5[4], n, L_)
L_(f'v_mul_f32 v{q5[0]}, {hx(f2u(1/512))}, v{q5[0]}')
L_(f'v_mul_f32 v{q5[4]}, {hx(f2u(1/512))}, v{q5[4]}')
for k in range(4): L_(f'v_readlane_b32 s{sG+k}, v{q5[0]}, {16*k}')
L_(f'v_readlane_b32 s{sG+4}, v{q5[4]}, 0')

poll_check(0)
stamp('hop h seen')
QL = opt('B6l', 13)
q_pre(15, QL); R_('s_barrier')
assert QS['read'] >= 12 and QS['enq'] == 16
vWB, vLA = 224, 240
def touch_batch():
    bg(f'buffer_load_dword v{vTCH}, v{vTP+1}, {srd(SW1)}, 0 offen', 'vm', 'touch')
    for tt in range(3): bg(f'global_load_ushort v{vBI+tt}, v{vTP+2}, {sp(sB1)} offset:{32*tt}', 'vm', 'b1')
    bg(f's_mov_b32 m0, {L_B2}')
    bg(f'global_load_lds_dword v{vTP+3}, {sp(sB2)}', 'vm', 'b2')
    bg(f'buffer_load_dword v{vTCH}, v{vZ}, {srd(SOUT)}, s{sXO} offen', 'vm', 'touch')
    for h in range(2):
        bg(f's_lshl_b32 m0, s{sWLDS}, 1')
        bg(f's_add_u32 m0, m0, {L_ST1 + 1024*h}')
        bg(f'buffer_load_dwordx4 v{vTP + (4 if h else 0)}, {srd(SX)}, s{sXT} offen lds ;k=mall,8', 'vm', 'xr')
    BG.m0 = None
def w2_touch():
    bg(f'buffer_load_dword v{vTCH}, v{vTW2}, {srd(SW2)}, 0 offen', 'vm', 'touch')
TPOS = opt('tpos', 3)
for rt in range(TPOS): tile_enq(rt, 'a')
touch_batch()
if opt('w2t', 0) == 0: w2_touch()
for rt in range(TPOS, 5): tile_enq(rt, 'a')
bg_pop(opt('hpre', 14))
q_read(QS['read'], QL + 1, A)

NA = min(2, opt('na', 2))
def w1_lds(n):
    if n == 15: return 65536
    if 5 <= n < 5 + NA: return 32768 + (n - 5)*12288
    return L_B + ((n if n < 5 else n - NA) % 5)*12288
def w1_enq(*ns):
    for n in ns:
        for p in range(3):
            bg_dma(f's_add_u32 m0, s{sSLDS}, {w1_lds(n)}', f's_add_u32 s{sD0}, s{sS1OFF}, {n*32*2752}',
                   f'buffer_load_dwordx4 v{vD1+p}, {srd(SW1)}, s{sD0} offen offset:{p*1024} lds', f'w{n}')
vTR1B = vAR4; vTR1C = vAR
W1ORD = list(range(5 + NA)) + [15] + list(range(5 + NA, 15))
class W1:
    enq = 0; landed = 0; read = 0; done = 0; gate15 = False; afree = 0
def w1_can():
    if W1.enq >= 16: return False
    n = W1ORD[W1.enq]
    if n == 15: return W1.gate15
    if n < 5: return True
    if n < 5 + NA: return w1_lds(n) + 12288 <= W1.afree
    prev = n - NA - 5 if n - NA - 5 < 5 else n - 5
    return W1ORD.index(prev) < W1.done
def w1_more(k):
    for _ in range(k):
        if not w1_can(): return
        w1_enq(W1ORD[W1.enq]); W1.enq += 1
def w1_pre(back):
    tgt = max(W1.landed, W1.enq - back)
    if tgt > W1.landed: wait(f'w{W1ORD[tgt-1]}')
    if W1.read > W1.done: wait(None, f'wr{W1ORD[W1.read-1]}')
    W1.nl, W1.nd = tgt, W1.read
def w1_post():
    W1.landed, W1.done = W1.nl, W1.nd
def w1_bar(back):
    w1_pre(back); R_('s_barrier'); w1_post()
def w1_issued():
    return W1.enq - (len([u for u in BG.q if u[1] and u[2][0] == 'w']) + 2) // 3
def w1_ml():
    k = W1.landed
    while k < W1.enq and landed(f'w{W1ORD[k]}'): k += 1
    return k
def w1_auto(margin, least=0):
    w1_pre(W1.enq - max(w1_ml(), least))
def w1_useful():
    if W1.done == 16: return False
    rd = W1.read > W1.done and not MID and landed(f'wr{W1ORD[W1.read-1]}', 0)
    starving = len([u for u in BG.q if u[1]]) <= opt('starve', 3)
    if W1.read > W1.done: return rd and starving
    return w1_ml() > W1.landed and (starving or w1_ml() == 16)
def w1_auto_old(margin, least=0):
    w1_pre(W1.enq - max(W1.landed, w1_issued() - margin, least))
def xbar(name, margin, least=0, more=16):
    w1_auto(opt(name, margin), least); R_('s_barrier'); w1_post(); w1_more(more)
def w1_reads(E):
    R_(f'; w1 reads {W1ORD[W1.read:W1.landed]}')
    for n in W1ORD[W1.read:W1.landed]:
        for tt in range(3):
            a = 64*tt + 4*n
            base, off = (vTR1+tt, w1_lds(n) - L_B) if w1_lds(n) >= L_B else (vTR1B+tt, w1_lds(n) - 8192)
            if off < 0: base, off = vTR1C+tt, w1_lds(n)
            E(f'ds_read_b64_tr_b16 {ar(a,2)}, v{base} offset:{off}', 'lg', f'wr{n}')
            E(f'ds_read_b64_tr_b16 {ar(a+2,2)}, v{base} offset:{off+1536}', 'lg', f'wr{n}')
    W1.read = W1.landed

def accK(rt): return 96 + 12*rt
def accV(rt): return 96 + 12*rt + 4
def accQ(rt): return 96 + 12*rt + 8
vKF, vVF, vQF, vOP = 156, 166, 176, 216
def tmp(t, k): return 184 + 16*(t & 1) + k
CS = 0.25 * LOG2E
sCS = sLN+1
A(f's_mov_b32 s{sCS}, {hx(f2u(CS))}')
sOS2 = sLN+2
A(f's_add_u32 s{sOS2}, s{sOST}, 32768')
def attn(t, E, gap):
    attn_a(t, E, gap, True)
    if t: attn_b(t, E, gap, False)
def attn_a(t, E, gap, withv):
    gap(3)
    for h in range(2): E(f'v_cvt_pk_bf16_f32 v{vKF+2*t+h}, v{accK(t)+2*h}, v{accK(t)+2*h+1}')
    if t:
        for h in range(2): E(f'v_cvt_pk_bf16_f32 v{vQF+h}, v{accQ(t)+2*h}, v{accQ(t)+2*h+1}')
    if withv:
        for h in range(2): E(f'v_cvt_pk_bf16_f32 v{vVF+2*t+h}, v{accV(t)+2*h}, v{accV(t)+2*h+1}')
    else: gap(1)
    if not t: return
    E(f'v_mfma_f32_16x16x16_bf16 {vr(tmp(t,0),4)}, {vr(vKF+2*(t-1),2)}, {vr(vQF,2)}, 0')
    E(f'v_mfma_f32_16x16x16_bf16 {vr(tmp(t,4),4)}, {vr(vKF+2*t,2)}, {vr(vQF,2)}, 0')
    gap(4)
    if t == 1:
        for r in range(4): E(f'v_min_f32 v{tmp(t,r)}, s{sMSK}, v{tmp(t,r)}')
    for r in range(4): E(f'v_cndmask_b32 v{tmp(t,r)}, v{tmp(t,r)}, v{tmp(t,4+r)}, {sp(4+2*r)}')
    E(f'v_cndmask_b32 v{tmp(t,0)}, v{tmp(t,0)}, v{tmp(t,1)}, {sp(12)}')
    E(f'v_cndmask_b32 v{tmp(t,1)}, v{tmp(t,2)}, v{tmp(t,3)}, {sp(12)}')
    E(f'v_max_f32 v{tmp(t,2)}, v{tmp(t,0)}, v{tmp(t,1)}')
    for op in ('v_permlane16_swap_b32', 'v_permlane32_swap_b32'):
        E(f'v_mov_b32 v{tmp(t,3)}, v{tmp(t,2)}')
        gap(1)
        E(f'{op} v{tmp(t,2)}, v{tmp(t,3)}')
        E(f'v_max_f32 v{tmp(t,2)}, v{tmp(t,2)}, v{tmp(t,3)}')
    E(f'v_mul_f32 v{tmp(t,2)}, {hx(f2u(-CS))}, v{tmp(t,2)}')
    E(f'v_fma_f32 v{tmp(t,0)}, v{tmp(t,0)}, s{sCS}, v{tmp(t,2)}')
    E(f'v_fma_f32 v{tmp(t,1)}, v{tmp(t,1)}, s{sCS}, v{tmp(t,2)}')
    E(f'v_exp_f32 v{tmp(t,0)}, v{tmp(t,0)}')
    E(f'v_exp_f32 v{tmp(t,1)}, v{tmp(t,1)}')
    E(f'v_cvt_pk_bf16_f32 v{tmp(t,0)}, v{tmp(t,0)}, v{tmp(t,0)}')
    E(f'v_cvt_pk_bf16_f32 v{tmp(t,1)}, v{tmp(t,1)}, v{tmp(t,1)}')
    E(f'v_and_b32 v{tmp(t,4)}, v{tmp(t,0)}, v{vM}')
    E(f'v_and_b32 v{tmp(t,5)}, v{tmp(t,1)}, v{vM+1}')
    E(f'v_and_b32 v{tmp(t,6)}, v{tmp(t,0)}, v{vM+2}')
    E(f'v_and_b32 v{tmp(t,7)}, v{tmp(t,1)}, v{vM+3}')
    gap(1)
    E(f'v_mfma_f32_16x16x32_bf16 {vr(tmp(t,12),4)}, {vr(vON,4)}, {vr(tmp(t,4),4)}, 0')
def attn_b(t, E, gap, withv):
    if withv:
        for h in range(2): E(f'v_cvt_pk_bf16_f32 v{vVF+2*t+h}, v{accV(t)+2*h}, v{accV(t)+2*h+1}')
    E(f'v_mfma_f32_16x16x32_bf16 {vr(tmp(t,8),4)}, {vr(vVF+2*(t-1),4)}, {vr(tmp(t,4),4)}, 0')
    gap(4)
    E(f'v_rcp_f32 v{tmp(t,12)}, v{tmp(t,12)}')
    for r in range(4): E(f'v_mul_f32 v{tmp(t,8+r)}, v{tmp(t,8+r)}, v{tmp(t,12)}')
    p, hf = (t-1) >> 1, (t-1) & 1
    o = vOP + 4*p
    for h in range(2): E(f'v_cvt_pk_bf16_f32 v{o+2*hf+h}, v{tmp(t,8+2*h)}, v{tmp(t,9+2*h)}')
    if hf:
        gap(1)
        E(f'v_permlane16_swap_b32 v{o}, v{o+2}')
        E(f'v_permlane16_swap_b32 v{o+1}, v{o+3}')
        E(f'buffer_store_dwordx4 {vr(o,4)}, v{vPO}, {srd(SWS)}, s{sOS2 if p else sOST} offen sc1', 'vm', 'stB' if p else 'stA')
bufs = [64 + 4*k for k in range(8)]
NB = 8
seq = [(rt, ks) for rt in range(6) for ks in range(16)]
def a1_read(n, E):
    rt, ks = seq[n]
    rt = min(rt, 4)
    base = vAR4 if rt == 4 else vAR
    E(f'ds_read_b128 {vr(bufs[n%NB],4)}, v{base+(ks&3)} offset:{(rt%4)*16384 + (ks>>2)*256}', 'lg', f'af{n}')
nread = 0; vis = 1
EARLY = opt('early', 8)
vXR = 240
for n, (rt, ks) in enumerate(seq):
    if n == 0:
        wait('a0'); R_('s_barrier')
        stamp('gemm start')
        if DBG:
            R_(f's_memtime {sp(sTM)}'); wait_all_lg(); R_(f'v_writelane_b32 v31, s{sTM}, 54')
        while nread < NB - 1: a1_read(nread, E0); nread += 1
        q_read(QL + 1, 16, mid)
        win(prev('attn done') + 900)
    if ks == 16 - EARLY and rt < 4:
        if rt == 0:
            wait('a1', 'qr15'); R_('s_barrier'); vis = 2
            w1_more(opt('w1x', 2))
            w1_more(5)
            if opt('w2t', 0) == 1: w2_touch()
        if rt == 1:
            wait('a2'); R_('s_barrier'); vis = 3
        if rt == 2:
            wait('a3'); R_('s_barrier'); vis = 4
        if rt == 3:
            wait('a4'); R_('s_barrier'); vis = 6
            pass
    if n == 66:
        R_('s_barrier'); W1.afree = 65536; w1_more(5)
    if n >= 64 and 'stA' in M.done and 'tA' not in TDONE:
        TDONE.add('tA')
        def pubA():
            wait('stA'); R_('s_barrier'); flag(1, 'stA', E0)
        task('pub1', lambda: M.done['stA'], pubA)
        def getA():
            A(f's_add_u32 s{sQ}, s{sCB}, s{sW4}')
            win(prev('P2A done') + 900)
            bg_front(lambda: (tile_enq(0, 'o'), tile_enq(1, 'o')))
        t_seen(1, getA)
    service()
    if ks == 0 and rt > 0:
        stamp(f'p1rt{rt}', 2)
        if rt < 5: attn(rt-1, lo, lo_gap)
        else:
            lo_flush(); attn_a(4, lo, lo_gap, False)
    if rt == 0: wait(None, f'qr{ks}')
    if nread < min(n + NB, len(seq)) and seq[nread][0] < vis:
        a1_read(nread, hi); nread += 1
    assert nread > n + (1 - n % 2)
    if n % 2 == 0: wait(None, f'af{n+1}')
    g3 = 2 if n % 2 == 0 else 1
    f = vr(bufs[n%NB], 4)
    c = lambda r: '0' if ks == 0 else vr(r, 4)
    if rt == 5:
        mfma(f'v_mfma_f32_16x16x32_bf16 {vr(accV(4),4)}, {f}, {ar(128+4*ks,4)}, {c(accV(4))}', 3)
        continue
    mfma(f'v_mfma_f32_16x16x32_bf16 {vr(accK(rt),4)}, {ar(64+4*ks,4)}, {f}, {c(accK(rt))}', 2 + (opt('xs', 1) if rt in (2, 3) else 0))
    if rt < 4:
        mfma(f'v_mfma_f32_16x16x32_bf16 {vr(accV(rt),4)}, {f}, {ar(128+4*ks,4)}, {c(accV(rt))}', 2 if rt else g3)
    if rt > 0:
        mfma(f'v_mfma_f32_16x16x32_bf16 {vr(accQ(rt),4)}, {ar(4*ks,4)}, {f}, {c(accQ(rt))}', g3)
stamp('P1 gemm done')
lo_flush()
attn_b(4, A, lambda k: None, True)
stamp('attn done')
for tt in range(3): A(f'v_subrev_u32 v{vTR1B+tt}, {L_B - 8192}, v{vTR1+tt}')
service('pub1')
W1.gate15 = True
wait('xr')
xbar('m1', 1)
t_pub(2, 'stB', True)
vX1 = 112
vAC2, vXP, vUF, vUP = 96, 144, 152, 160
sUS = [sLN+1, sLN+3]
A(f's_add_u32 s{sUS[0]}, s{sOST}, {C_U}')
A(f's_add_u32 s{sUS[1]}, s{sOST}, {C_U + 32768}')
def epi2(p, E, gap, pk):
    gap(5)
    for rt in (2*p, 2*p+1):
        x, a = vX1+4*rt, vAC2+4*rt
        xp, up, uf = vXP+2*rt, vUP+2*rt, vUF+4*(rt&1)
        if pk:
            for h in range(2): E(f'v_pk_fma_f32 {vr(x+2*h,2)}, {vr(vGA+2*h,2)}, {vr(a+2*h,2)}, {vr(x+2*h,2)}')
        else:
            for e in range(4): E(f'v_fmac_f32 v{x+e}, v{vGA+e}, v{a+e}')
        for h in range(2): E(f'v_cvt_pk_bf16_f32 v{xp+h}, v{x+2*h}, v{x+2*h+1}')
        for h in range(2): unpack(x+2*h, xp+h, E)
        if pk:
            for h in range(2): E(f'v_pk_mul_f32 {vr(uf+2*h,2)}, {vr(x+2*h,2)}, {vr(vGB+2*h,2)}')
        else:
            for e in range(4): E(f'v_mul_f32 v{uf+e}, v{x+e}, v{vGB+e}')
        for h in range(2): E(f'v_cvt_pk_bf16_f32 v{up+h}, v{uf+2*h}, v{uf+2*h+1}')
    o = vUP + 4*p
    gap(1)
    E(f'v_permlane16_swap_b32 v{o}, v{o+2}')
    E(f'v_permlane16_swap_b32 v{o+1}, v{o+3}')
    E(f'buffer_store_dwordx4 {vr(o,4)}, v{vPO}, {srd(SWS)}, s{sUS[p]} offen sc1', 'vm', 'stB' if p else 'stA')
seq = [(rt, ks) for rt in range(4) for ks in range(16)]
def f_read(n, E, tag):
    rt, ks = seq[n]
    E(f'ds_read_b128 {vr(bufs[n%NB],4)}, v{vOFF16} offset:{L_A1 + rt*16384 + ks*1024}', 'lg', f'{tag}{n}')
S = [[168+k for k in range(6)], [176+k for k in range(6)]]
def stat_dots(p):
    x, u = vXP + 4*p, vUP + 4*p
    A(f'v_permlane16_swap_b32 v{x}, v{x+2}')
    A(f'v_permlane16_swap_b32 v{x+1}, v{x+3}')
    for d in range(4):
        c = lambda r: '0' if d == 0 else f'v{r}'
        A(f'v_dot2_f32_bf16 v{S[p][2]}, v{u+d}, v{vONE}, {c(S[p][2])}')
        A(f'v_dot2_f32_bf16 v{S[p][3]}, v{u+d}, v{u+d}, {c(S[p][3])}')
        A(f'v_dot2_f32_bf16 v{S[p][4]}, v{u+d}, v{vGP+d}, {c(S[p][4])}')
        A(f'v_dot2_f32_bf16 v{S[p][5]}, v{u+d}, v{vSP+d}, {c(S[p][5])}')
        A(f'v_dot2_f32_bf16 v{S[p][0]}, v{x+d}, v{vONE}, {c(S[p][0])}')
        A(f'v_dot2_f32_bf16 v{S[p][1]}, v{x+d}, v{x+d}, {c(S[p][1])}')
vCO, vCB, vCS, vSTT, vAC3, vG1, vHP = 128, 140, 96, 144, 168, 216, 228
xdone = [0]
def extra_tile(upto, regs):
    upto = min(upto, W1.read, xdone[0] + len(regs))
    kss = W1ORD[xdone[0]:upto]
    for ks, r in zip(kss, regs): E0(f'ds_read_b128 {vr(r,4)}, v{vXA} offset:{ks*64}', 'lg', f'xf{ks}')
    for ks, r in zip(kss, regs):
        wait(None, f'wr{ks}'); wait(None, f'xf{ks}')
        for tt in range(3):
            acc = vr(vCO+4*tt, 4)
            mfma(f'v_mfma_f32_16x16x32_bf16 {acc}, {vr(r,4)}, {ar(64*tt+4*ks,4)}, {"0" if xdone[0] == 0 else acc}')
        xdone[0] += 1
XR1 = [184 + 4*k for k in range(8)]
sW2L, sSB2, sSTS = sLN+6, sLN+4, sLN+7
vTR2 = vAR
def late_consts(L_):
    L_(f's_mul_i32 s{sWOFF}, s{sWAVE}, {11*32*1024}')
    L_(f's_lshl_b32 s{sT0}, s{sJ}, 7')
    L_(f's_add_u32 s{sWOFF}, s{sWOFF}, s{sT0}')
    L_(f's_lshr_b32 s{sT0}, s{sWAVE}, 1')
    L_(f's_and_b32 s{sT0}, s{sT0}, s{sWAVE}')
    L_(f's_lshl_b32 s{sT0}, s{sT0}, 15')
    L_(f's_sub_u32 s{sW2L}, s{sWOFF}, s{sT0}')
    L_(f's_add_u32 s{sW2L}, s{sW2L}, {10*32*1024}')
    L_(f's_add_u32 s{sSB2}, s{sSB}, 3072')
    for c in range(4): L_(f'v_add_u32 v{vTRW+c}, s{sW4}, v{vTRW+c}')
    for c in range(4): L_(f'v_subrev_u32 v{vTR2+c}, {L_B - 16384}, v{vTRW+c}')
    L_(f's_mul_i32 s{sT0}, s{sWAVE}, 1536')
    L_(f's_add_u32 s{sT0}, s{sT0}, {L_ST1}')
    L_(f'v_add_u32 v{vT+4}, s{sT0}, v{vO8}')
    L_(f's_min_u32 s{sT0}, s{sWAVE}, 2')
    L_(f's_lshl_b32 s{sSTS}, s{sT0}, 10')
    L_(f's_lshl_b32 s{sT0}, s{sT0}, 9')
    L_(f's_add_u32 s{sT0}, s{sT0}, {L_ST1}')
    L_(f'v_add_u32 v{vT+5}, s{sT0}, v{vO8}')
    L_(f's_mul_i32 s{sT0}, s{sJ}, 3072')
    L_(f's_add_u32 s{sSTS}, s{sSTS}, s{sT0}')
    L_(f's_add_u32 s{sSTS}, s{sSTS}, s{sCB}')
    L_(f's_add_u32 s{sSTS}, s{sSTS}, {C_ST}')
def p2_half(p, hook):
    n0 = 32*p
    nread = n0; lim = n0 + 16
    until_landed(f'o{2*p}')
    wait(f'o{2*p}'); xbar('mx', 0)
    while nread < n0 + NB - 1: f_read(nread, E0, 'of'); nread += 1
    BG.second = True
    for n in range(n0, n0 + 32):
        rt, ks = seq[n]
        hook(n - n0)
        if n - n0 == opt('obk', 8):
            wait(f'o{2*p+1}'); R_('s_barrier'); lim = n0 + 32
        if nread < min(lim, n + NB): f_read(nread, hi, 'of'); nread += 1
        if n % 2 == 0: wait(None, f'of{n+1}')
        acc = vr(vAC2+4*rt, 4)
        mfma(f'v_mfma_f32_16x16x32_bf16 {acc}, {ar(192+4*ks,4)}, {vr(bufs[n%NB],4)}, {"0" if ks==0 else acc}', 2 if n % 2 == 0 else 1)
    BG.second = False
def epoch_bump():
    le = label('Lnoep')
    if TWICE:
        R_(f'v_readlane_b32 s{sT0}, v31, 42'); R_('s_nop 3'); R_(f's_cmp_eq_u32 s{sT0}, 0'); R_(f's_cbranch_scc1 {le}')
    R_(f's_cmp_lg_u32 s2, 0')
    R_(f's_cbranch_scc1 {le}')
    R_(f's_cmp_lg_u32 s{sWAVE}, 3')
    R_(f's_cbranch_scc1 {le}')
    R_(f's_mov_b32 s{sT0}, {WS_XCC}')
    lp, ld = label('Lep'), label('Lepok')
    R_(f'{lp}:')
    R_(f'buffer_load_dwordx4 {vr(184,4)}, v{vOFF16}, {srd(SWS)}, s{sT0} offen sc1')
    R_(f'buffer_load_dwordx4 {vr(188,4)}, v{vOFF16}, {srd(SWS)}, s{sT0} offen offset:1024 sc1')
    R_('s_waitcnt vmcnt(0)')
    tag_check([185, 187, 189, 191], vT)
    R_(f's_cbranch_vccz {ld}')
    spin_guard(lp, ld)
    R_(f'v_mov_b32 v{vT+1}, s{sTAG}')
    R_(f'v_mov_b32 v{vT+2}, 0')
    R_('s_mov_b64 exec, 1')
    R_(f'buffer_store_dword v{vT+1}, v{vT+2}, {srd(SWS)}, 0 offen sc1')
    R_('s_mov_b64 exec, -1')
    R_(f'{le}:')
def w1_some():
    if W1.read < W1.landed:
        keep = W1.landed; W1.landed = min(keep, W1.read + 2); w1_reads(A); W1.landed = keep
    elif w1_useful(): xbar('ms', 0)
    elif xdone[0] < W1.read: extra_tile(xdone[0] + 2, XR1)
def x_load():
    for r2 in range(4): lg(f'ds_read_b64 {vr(vXR+2*r2,2)}, v{vXO} offset:{r2*2048}', 'xl')
def x_unpack():
    wait(None, 'xl')
    for r2 in range(4):
        unpack(vX1+4*r2, vXR+2*r2); unpack(vX1+4*r2+2, vXR+2*r2+1)
def getB():
    if W1.done < 5 + NA:
        if W1.landed < 5 + NA: xbar('mp', 0, 5 + NA)
        w1_reads(A); xbar('mp', 0)
    win(prev('P2 gemm done') + 900)
    bg_front(lambda: (tile_enq(2, 'o'), tile_enq(3, 'o')))
x_load()
fill_until(lambda: False, [w1_some, x_unpack, lambda: late_consts(A)])
fill_until(lambda: landed('o0', -100), [w1_some]*12)
service('seen1')
bg_until('o1')
fill_until(lambda: landed('o0', -100), [w1_some]*12)
t_seen(2, getB, lambda: W1.done >= 5 + NA or 'P2A' in TDONE)
bg_fill()
stamp('P2A start')
p2_half(0, lambda k: service())
TDONE.add('P2A')
stamp('P2A done')
epi2(0, A, lambda k: None, True)
BG.dl0 = 1e9
t_pub(3, 'stA')
fill_until(lambda: False, [lambda: stat_dots(0), epoch_bump])
fill_until(lambda: landed('o2', -100), [w1_some]*12)
service('seen2')
bg_until('o3')
fill_until(lambda: landed('o2', -100), [w1_some]*12)
def getUA():
    A(f's_add_u32 s{sQ}, s{sQ}, {C_U}')
    win(prev('P2 gemm done') + 1100)
    bg_front(lambda: (tile_enq(0, 'u'), tile_enq(1, 'u')))
t_seen(3, getUA)
bg_fill()
stamp('P2B start')
p2_half(1, lambda k: service())
stamp('P2 gemm done')
epi2(1, A, lambda k: None, True)
BG.dl0 = 1e9
t_pub(4, 'stB', True)
service()
stat_dots(1)
for k in range(6): A(f'v_permlane32_swap_b32 v{S[0][k]}, v{S[1][k]}')
for k in range(6): A(f'v_add_f32 v{S[0][k]}, v{S[0][k]}, v{S[1][k]}')
for k in range(3): lg(f'ds_write_b64 v{vT+4}, {vr(S[0][2*k],2)} offset:{512*k}', 'sw')
service()
wait(None, 'sw')
xbar('m6', 2)
for w in range(4): lg(f'ds_read_b64 {vr(248+2*w,2)}, v{vT+5} offset:{1536*w}', 'sr')
w1_some()
wait(None, 'sr')
A(f'v_pk_add_f32 {vr(248,2)}, {vr(248,2)}, {vr(250,2)}')
A(f'v_pk_add_f32 {vr(252,2)}, {vr(252,2)}, {vr(254,2)}')
A(f'v_mov_b32 v251, s{sTAG}')
A(f'v_add_f32 v250, v249, v253')
A(f'v_add_f32 v248, v248, v252')
A(f'v_mov_b32 v249, s{sTAG}')
vm(f'buffer_store_dwordx4 {vr(248,4)}, v{vOFF16}, {srd(SWS)}, s{sSTS} offen sc1', 'sts')
fill_until(lambda: landed('u1', -100), [w1_some]*12)
service('seen3')
bg_until('u1')
fill_until(lambda: landed('u1', -100), [w1_some]*12)
until_landed('u1')
wait('u1'); xbar('m8', 2)
stamp('u1 landed')

def stat_issue(E):
    for m in range(2):
        for k in range(3):
            E(f'buffer_load_dwordx4 {vr(vSTT+12*m+4*k,4)}, v{vSTA}, {srd(SWS)}, s{sSB2 if m else sSB} offen offset:{k*1024} sc1', 'vm', 'stt')
W2SLOT = {}; W2FREE = []; W2N = [0]
def w2_more():
    while W2FREE and W2N[0] < 11:
        kk = W2N[0]; W2N[0] += 1
        W2SLOT[kk] = W2FREE.pop(0)
        for j in range(4):
            bg_dma(f's_add_u32 m0, s{sW4}, {W2SLOT[kk]}',
                   f's_add_u32 s{sD0}, s{sWOFF}, {kk*32*1024}' if kk < 10 else f's_mov_b32 s{sD0}, s{sW2L}',
                   f'buffer_load_dwordx4 v{vDW+j}, {srd(SW2)}, s{sD0} offen offset:{j*1024} lds', f'z{kk}')
def w2_areg(kk): return 192 + 16*kk if kk < 4 else 16*(kk-4)
def w2_read(kk, E):
    o = W2SLOT[kk]
    for c in range(4):
        a = w2_areg(kk) + 4*c
        base, off = (vTRW+c, o - L_B) if o >= L_B else (vTR2+c, o - 16384)
        E(f'ds_read_b64_tr_b16 {ar(a,2)}, v{base} offset:{off}', 'lg', f'zr{kk}')
        E(f'ds_read_b64_tr_b16 {ar(a+2,2)}, v{base} offset:{off+512}', 'lg', f'zr{kk}')
def stats_fin(E, gap):
    b = vSTT
    X = [b+2*k for k in range(6)]
    for k in range(6): E(f'v_add_f32 v{X[k]}, v{X[k]}, v{b+12+2*k}')
    for op in ('v_permlane16_swap_b32', 'v_permlane32_swap_b32'):
        for k in range(6): E(f'v_mov_b32 v{X[k]+1}, v{X[k]}')
        for k in range(6): E(f'{op} v{X[k]}, v{X[k]+1}')
        for k in range(6): E(f'v_add_f32 v{X[k]}, v{X[k]}, v{X[k]+1}')
    X1, X2, X3, X4, X5, X6 = X
    a_, b_, c_, d_ = b+1, b+3, b+5, b+7
    co = [b+12, b+13, b+14, b+15]; cs = [b+16, b+17, b+18, b+19]
    for r in X: E(f'v_mul_f32 v{r}, {hx(f2u(1/512))}, v{r}')
    E(f'v_fma_f32 v{X2}, -v{X1}, v{X1}, v{X2}')
    E(f'v_max_f32 v{X2}, 0, v{X2}')
    E(f'v_add_f32 v{X2}, {hx(f2u(1e-5))}, v{X2}')
    E(f'v_rsq_f32 v{a_}, v{X2}')
    E(f'v_fma_f32 v{X3}, -v{X1}, s{sG}, v{X3}')
    E(f'v_mul_f32 v{co[1]}, v{X2}, v{a_}')
    E(f'v_fma_f32 v{b_}, v{X3}, v{a_}, s{sG+2}')
    E(f'v_mul_f32 v{c_}, s{sG+1}, v{X1}')
    E(f'v_fma_f32 v{c_}, -2.0, v{X5}, v{c_}')
    E(f'v_fma_f32 v{X4}, v{X1}, v{c_}, v{X4}')
    E(f'v_fma_f32 v{X6}, -v{X1}, s{sG+4}, v{X6}')
    E(f'v_add_f32 v{X6}, v{X6}, v{X6}')
    E(f'v_fma_f32 v{X4}, v{X4}, v{a_}, v{X6}')
    E(f'v_fma_f32 v{X4}, v{X4}, v{a_}, s{sG+3}')
    E(f'v_fma_f32 v{X4}, -v{b_}, v{b_}, v{X4}')
    E(f'v_max_f32 v{X4}, 0, v{X4}')
    E(f'v_add_f32 v{X4}, {hx(f2u(1e-5))}, v{X4}')
    E(f'v_rsq_f32 v{d_}, v{X4}')
    K0 = -2.0 * 0.7978845608028654 * LOG2E
    K1_ = K0 * 0.044715
    E(f'v_sub_f32 v{co[0]}, 0, v{X1}')
    E(f'v_mul_f32 v{X4}, v{X4}, v{d_}')
    E(f'v_mul_f32 v{co[2]}, -v{b_}, v{co[1]}')
    E(f'v_mul_f32 v{co[3]}, v{co[1]}, v{X4}')
    E(f'v_mul_f32 v{d_}, v{a_}, v{d_}')
    E(f'v_mul_f32 v{cs[0]}, {hx(f2u(K0))}, v{d_}')
    E(f'v_mul_f32 v{cs[1]}, v{d_}, v{d_}')
    E(f'v_mul_f32 v{cs[1]}, v{cs[1]}, v{d_}')
    E(f'v_mul_f32 v{cs[1]}, {hx(f2u(K1_))}, v{cs[1]}')
    E(f'v_mov_b32 v{cs[2]}, v{co[3]}')
    E(f'v_mov_b32 v{cs[3]}, 0')
    E(f's_lshl_b32 s{sT0}, s{sWAVE}, 9')
    E(f'v_lshlrev_b32 v{vT+2}, 5, v{vI}')
    E(f'v_add_u32 v{vT+2}, {L_ST2}, v{vT+2}')
    E(f'v_add_u32 v{vT+4}, s{sT0}, v{vT+2}')
    E(f'v_lshl_add_u32 v{vT+3}, v{vG}, 2, v{vT+2}')
    E(f'ds_write_b128 v{vT+4}, {vr(co[0],4)}', 'lg', 'sw2')
    E(f'ds_write_b128 v{vT+4}, {vr(cs[0],4)} offset:16', 'lg', 'sw2')
sHB2 = sLN+5
def gelu(rt, E, pk):
    a = vAC3 + 12*rt
    c0 = vCS + 4*rt
    if pk:
        P = range(0, 12, 2)
        for e in P: E(f'v_pk_mul_f32 {vr(vG1+e,2)}, {vr(a+e,2)}, {vr(a+e,2)}')
        for e in P: E(f'v_pk_fma_f32 {vr(vG1+e,2)}, {vr(vG1+e,2)}, {vr(c0,2)}, {vr(c0,2)} op_sel:[0,1,0] op_sel_hi:[1,1,0]')
        for e in P: E(f'v_pk_mul_f32 {vr(vG1+e,2)}, {vr(vG1+e,2)}, {vr(a+e,2)}')
        for e in range(12): E(f'v_exp_f32 v{vG1+e}, v{vG1+e}')
        for e in P: E(f'v_pk_fma_f32 {vr(vG1+e,2)}, {vr(vG1+e,2)}, {vr(c0+2,2)}, {vr(c0+2,2)} op_sel_hi:[1,0,0]')
        for e in range(12): E(f'v_rcp_f32 v{vG1+e}, v{vG1+e}')
        for e in P: E(f'v_pk_mul_f32 {vr(vG1+e,2)}, {vr(vG1+e,2)}, {vr(a+e,2)}')
    else:
        Ee = range(12)
        for e in Ee: E(f'v_mul_f32 v{vG1+e}, v{a+e}, v{a+e}')
        for e in Ee: E(f'v_fma_f32 v{vG1+e}, v{vG1+e}, v{c0+1}, v{c0}')
        for e in Ee: E(f'v_mul_f32 v{vG1+e}, v{vG1+e}, v{a+e}')
        for e in Ee: E(f'v_exp_f32 v{vG1+e}, v{vG1+e}')
        for e in Ee: E(f'v_fma_f32 v{vG1+e}, v{vG1+e}, v{c0+2}, v{c0+2}')
        for e in Ee: E(f'v_rcp_f32 v{vG1+e}, v{vG1+e}')
        for e in Ee: E(f'v_mul_f32 v{vG1+e}, v{vG1+e}, v{a+e}')
    p, hf = rt >> 1, rt & 1
    for tt in range(3):
        for h in range(2):
            E(f'v_cvt_pk_bf16_f32 v{vHP+12*p+4*tt+2*hf+h}, v{vG1+4*tt+2*h}, v{vG1+4*tt+2*h+1}')
    if hf:
        for tt in range(3):
            o = vHP+12*p+4*tt
            E(f'v_permlane16_swap_b32 v{o}, v{o+2}')
            E(f'v_permlane16_swap_b32 v{o+1}, v{o+3}')
        for tt in range(3):
            o = vHP+12*p+4*tt
            E(f'buffer_store_dwordx4 {vr(o,4)}, v{vPH}, {srd(SWS)}, s{sHB2 if p else sHB} offen offset:{tt*512} sc1', 'vm', 'stB' if p else 'stA')
def corr(rt):
    for tt in range(3):
        acc = vr(vAC3+12*rt+4*tt, 4)
        mfma(f'v_mfma_f32_16x16x4_f32 {acc}, v{vCO+4*tt}, v{vCB+rt}, {acc}', 4)
zread = set(); zenq = set()
NGH = opt('ngh', 1)
seq = [(rt, ks) for ks in W1ORD for rt in (0, 1)] + [(rt, ks) for rt in (2, 3) for ks in W1ORD]
nread = 0; vis = 2
w2go = [False, False]
def w2_start():
    if not w2go[1] and W1.enq == 16 and W1.done > 5 + NA:
        W2FREE.append(65536); w2_more(); w2go[1] = True
    if not w2go[0] and W1.done == 16:
        W2FREE.extend(L_B + 16384*k for k in range(4)); w2_more()
        w2go[0] = True
XR2 = [216 + 4*k for k in range(8)]
for n, (rt, ks) in enumerate(seq):
    if n == 0:
        while nread < NB - 1: f_read(nread, E0, 'uf'); nread += 1
        w1_more(16); w1_reads(mid); w2_start()
        P3S = dict(u=False, st=0, cb=None, g1=False)
        lo(f's_add_u32 s{sHB2}, s{sHB}, {2*HRT}')
        for tt in range(3): lo(f'v_lshlrev_b32 v{vBI+tt}, 16, v{vBI+tt}')
    if n % 16 == 0 and n: stamp(f'p3q{n//16}', 3)
    if n == 0:
        def getUB():
            win(); P3S['u'] = True
            keep = 0
            for i_, u in enumerate(BG.q):
                if u[1] and u[2][0] == 'w': keep = i_ + 1
            head = [BG.q.popleft() for _ in range(keep)]
            e0, e1 = BG.em0, BG.ed0
            for u in head:
                if ' m0,' in u[0][:16]: BG.em0 = u[0]
                if u[0].startswith('s_') and ' s91,' in u[0][:18]: BG.ed0 = u[0]
            bg_front(lambda: (tile_enq(2, 'u'), stat_issue(bg), tile_enq(3, 'u')))
            BG.em0, BG.ed0 = e0, e1
            BG.q.extendleft(reversed(head))
        t_seen(4, getUB)
    service('seen4' if n == 26 else None)
    if W1.read < W1.landed: w1_reads(mid); w2_start()
    if P3S['u'] and P3S['st'] == 0 and (landed('stt') or n == 36):
        checked('stt', stat_issue, [vSTT+1+2*k for k in range(12)])
        stats_fin(lo, lo_gap); P3S['st'] = 1
    need = n < 32 and W1ORD.index(ks) + 2 > W1.read and W1.read < 16
    tile = vis < 4 and P3S['u'] and (landed(f'u{vis}') or n == 16*vis - 2)
    stb = P3S['st'] == 1 and n >= 33 and ((not LO and landed('sw2', 0)) or n == opt('sb', 44))
    if need or tile or stb or w1_useful():
        if tile:
            while vis < 4 and (landed(f'u{vis}') or n == 16*vis - 2):
                wait(f'u{vis}'); vis += 1
        if stb: lo_flush(); wait(None, 'sw2')
        xbar('m9', 0, min(16, W1ORD.index(ks) + 2) if need else 0); w1_reads(mid); w2_start()
        if stb:
            P3S['st'] = 2; P3S['cb'] = n
            for r2 in range(4):
                mid(f'ds_read_b32 v{vCB+r2}, v{vT+3} offset:{r2*512}', 'lg', 'cb')
                mid(f'ds_read_b128 {vr(vCS+4*r2,4)}, v{vT+2} offset:{r2*512+16}', 'lg', 'cb')
            lo(f'v_cmp_eq_u32 vcc, 3, v{vG}'); lo_gap(1)
            for tt in range(3): lo(f'v_cndmask_b32 v{vCO+4*tt}, v{vCO+4*tt}, v{vBI+tt}, vcc')
    if n == 32:
        extra_tile(16, XR2); extra_tile(16, XR2); assert xdone[0] == 16
    if P3S['st'] == 2 and n == P3S['cb'] + 5:
        lo_flush(); wait(None, 'cb')
        corr(0); corr(1)
        gelu(0, lo, 0); P3S['st'] = 3
    if n == opt('g1n', 52):
        assert P3S['st'] == 3 and n >= 49
        lo_flush(); gelu(1, A, 1)
        stamp('h1A stored', 3)
        corr(2); lo_gap(3)
        if opt('g2h', 1): gelu(2, lo, 0)
        win(prev('gelu done') + 900)
        EARLIEST[5] = prev('gelu done', 0)
        def pubHA():
            wait('stA'); R_('s_barrier'); flag(5, 'stA', E0)
        task('pub5', lambda: M.done['stA'], pubHA)
        t_seen(5, lambda: None, lambda: 'P4' in TDONE, prev('gelu done', 0))
    for kk in range(4):
        if kk not in zread and kk in W2SLOT and landed(f'z{kk}') and not MID:
            wait(f'z{kk}'); w2_read(kk, mid); zread.add(kk)
        elif kk in zread and kk not in zenq and not any(u[2] == f'zr{kk}' for u in MID) and landed(f'zr{kk}', 0):
            wait(None, f'zr{kk}'); W2FREE.append(W2SLOT[kk]); w2_more(); zenq.add(kk)
    for _ in range(2):
        if nread < min(n + NB, len(seq)) and seq[nread][0] < vis and len(HI) < 2:
            f_read(nread, hi, 'uf'); nread += 1
    assert nread > n + (1 - n % 2)
    wait(None, f'wr{ks}')
    if n % 2 == 0: wait(None, f'uf{n+1}')
    f = vr(bufs[n%NB], 4)
    for tt in range(3):
        acc = vr(vAC3+12*rt+4*tt, 4)
        mfma(f'v_mfma_f32_16x16x32_bf16 {acc}, {ar(64*tt+4*ks,4)}, {f}, {"0" if ks == W1ORD[0] else acc}', 2 if tt < 2 or n % 2 == 0 else 1)
assert w2go[0]
corr(3)
R_('s_barrier')
stamp('P3 gemm done')
mid_flush()
W2FREE.extend([16384, 32768, 49152]); w2_more()
lo_flush()
stamp('lo flushed', 3)
def z_catch(kk, E=E0):
    if kk not in zread:
        wait(f'z{kk}'); w2_read(kk, E); zread.add(kk)
def z_refill():
    for kk in sorted(zread):
        if kk not in zenq and W2N[0] < 11:
            wait(None, f'zr{kk}'); W2FREE.append(W2SLOT[kk]); w2_more(); zenq.add(kk)
z_refill()
for kk in range(opt('zc0', 4)): z_catch(kk)
if not opt('g2h', 1): gelu(2, A, 1)
service()
gelu(3, A, 1)
service()
z_refill()
assert W2N[0] == 11
stamp('gelu done', 3)
win()
bg_flush()
vGG = 136
lg(f'ds_read_b64 {vr(vGG+2,2)}, v{vMC} offset:{5*1024}', 'c5')
A(f'v_lshlrev_b32 v{vT}, 3, v{vG}')
A(f's_lshl_b32 s{sT0}, s{sWAVE}, 5')
A(f's_add_u32 s{sT0}, s{sT0}, {L_B2}')
A(f'v_add_u32 v{vT}, s{sT0}, v{vT}')
lg(f'ds_read_b64 {vr(134,2)}, v{vT}', 'c5')
hs = [4, 5, 6, 7, 8, 9, 10, 11, 12, 13, sLN, sLN+1]
A(f's_mul_i32 s{hs[0]}, s{sWAVE}, {11*1024}')
A(f's_add_u32 s{hs[0]}, s{hs[0]}, s{sCB}')
for k in range(1, 6): A(f's_add_u32 s{hs[k]}, s{hs[0]}, {(k//3)*HRT + (k%3)*4096}')

def pubHB():
    wait('stB'); R_('s_barrier'); flag(6, 'stB', E0)
task('pub6', lambda: M.done['stB'], pubHB)
TDONE.add('P4')
zs = [lambda kk=kk: z_catch(kk) if landed(f'z{kk}') else None for kk in range(11)]
fill_until(lambda: 'seen5' in TDONE, zs)
service('seen5')
stamp('h1A seen')
aAC = 112
NH = 16
hb = [144 + 4*k for k in range(NH)]
hseq = [(r, kk) for kk in range(11) for r in (0, 1)] + [(r, kk) for r in (2, 3) for kk in range(11)]
def h_load(n, E):
    r, kk = hseq[n]
    vo = vLAST if kk == 10 else vOFF16
    E(f'buffer_load_dwordx4 {vr(hb[n%NH],4)}, v{vo}, {srd(SWS)}, s{hs[3*r+(kk>>2)]} offen offset:{(kk&3)*1024} sc1', 'vm', f'h{n}')
LH = opt('lh', 10)
for n in range(opt('lh0', 6)): h_load(n, A)
nload = opt('lh0', 6)
fill_until(lambda: False, zs)
for kk in range(2): z_catch(kk)
okB = [False]
def setB(): okB[0] = True
t_seen(6, setB)
for k in range(6, 12): lo(f's_add_u32 s{hs[k]}, s{hs[0]}, {(k//3)*HRT + (k%3)*4096}')
vRA = vT + 2; vPX = vDQ
L_RED = L_B
for c in range(4):
    lo(f's_add_u32 s{sT0}, s{sWAVE}, {c}')
    lo(f's_and_b32 s{sT0}, s{sT0}, 3')
    lo(f's_mul_i32 s{sT0}, s{sT0}, 12288')
    lo(f's_add_u32 s{sT0}, s{sT0}, {L_RED + max(c-1, 0)*4096}')
    lo(f'v_add_u32 v{vRA + (c-1 if c else 3)}, s{sT0}, v{vOFF16}')
lo(f'v_and_b32 v{vT+1}, 1, v{vG}')
lo(f'v_lshlrev_b32 v{vPX}, 10, v{vI}')
lo(f'v_lshl_add_u32 v{vPX}, v{vT+1}, 14, v{vPX}')
lo(f'v_lshrrev_b32 v{vT+1}, 1, v{vG}')
lo(f'v_lshl_add_u32 v{vPX}, v{vT+1}, 4, v{vPX}')
sXO2 = sLN+2
lo(f's_add_u32 s{sXO2}, s{sXO}, 32768')
lo_wait(None, 'c5')
unpack(vGG, vGG+2, lo); unpack(vGG+2, vGG+3, lo); unpack(132, 134, lo); unpack(134, 135, lo)
for r2 in range(4):
    for e in range(4): lo(f'v_fmac_f32 v{vX1+4*r2+e}, v{vGG+e}, v{132+e}')
vR, vOW, vOUT = 64, 208, 224
def red_write(r, E):
    for c in range(1, 4):
        E(f'ds_write_b128 v{vRA+c-1}, {ar(aAC+16*r+4*c,4)} offset:{r*1024}', 'lg', f'rw{r}')
def red_read(r, E):
    for c in range(3):
        E(f'ds_read_b128 {vr(vR+12*r+4*c,4)}, v{vRA+3} offset:{c*4096 + r*1024}', 'lg', f'rr{r}')
def fin(r, E, pk):
    y = vR + 12*r
    for e in range(4): E(f'v_accvgpr_read_b32 v{vOW+4*r+e}, a{aAC+16*r+e}')
    if pk:
        for h in range(2): E(f'v_pk_add_f32 {vr(y+2*h,2)}, {vr(y+2*h,2)}, {vr(y+4+2*h,2)}')
        for h in range(2): E(f'v_pk_add_f32 {vr(y+8+2*h,2)}, {vr(y+8+2*h,2)}, {vr(vOW+4*r+2*h,2)}')
        for h in range(2): E(f'v_pk_add_f32 {vr(y+2*h,2)}, {vr(y+2*h,2)}, {vr(y+8+2*h,2)}')
        for h in range(2): E(f'v_pk_fma_f32 {vr(y+2*h,2)}, {vr(vGG+2*h,2)}, {vr(y+2*h,2)}, {vr(vX1+4*r+2*h,2)}')
    else:
        for e in range(4): E(f'v_add_f32 v{y+e}, v{y+e}, v{y+4+e}')
        for e in range(4): E(f'v_add_f32 v{y+8+e}, v{y+8+e}, v{vOW+4*r+e}')
        for e in range(4): E(f'v_add_f32 v{y+e}, v{y+e}, v{y+8+e}')
        for e in range(4): E(f'v_fma_f32 v{y+e}, v{vGG+e}, v{y+e}, v{vX1+4*r+e}')
    o = vOUT + 4*(r >> 1)
    for h in range(2): E(f'v_cvt_pk_bf16_f32 v{o+2*(r&1)+h}, v{y+2*h}, v{y+2*h+1}')
    if r & 1:
        E(f'v_permlane16_swap_b32 v{o}, v{o+2}')
        E(f'v_permlane16_swap_b32 v{o+1}, v{o+3}')
        E(f'buffer_store_dwordx4 {vr(o,4)}, v{vPX}, {srd(SOUT)}, s{sXO2 if r >> 1 else sXO} offen', 'vm', 'out')
for n, (r, kk) in enumerate(hseq):
    if n == 6: lo_flush()
    service('seen6' if n == 21 else None)
    for _ in range(2):
        if nload < min(n + LH, 44 if okB[0] and n >= 6 else 22) and len(HI) < 2:
            h_load(nload, hi); nload += 1
    if n < 22 and r == 0 and kk + 2 < 11: z_catch(kk + 2, mid)
    if n == 23:
        mid_flush(); wait_all_lg(); R_('s_barrier')
    if n == 24: red_write(0, mid); red_write(1, mid)
    if n == 35: red_write(2, mid)
    if n == opt('rb', 38):
        wait(None, 'rw2'); R_('s_barrier')
        for r2 in range(3): red_read(r2, mid)
        for r2 in range(3):
            lo_wait(None, f'rr{r2}'); fin(r2, lo, False)
    assert nload > n
    wait(f'h{n}', f'zr{kk}')
    cs_ = [1, 2, 3, 0]
    for ci, c in enumerate(cs_):
        acc = ar(aAC+16*r+4*c, 4)
        mfma(f'v_mfma_f32_16x16x32_bf16 {acc}, {ar(w2_areg(kk)+4*c,4)}, {vr(hb[n%NH],4)}, {"0" if kk==0 else acc}', 2 if ci < 3 else 1)
stamp('P4 gemm done')
mid_flush()
red_write(3, A)
lo_flush()
wait(None, 'rw3'); R_('s_barrier')
red_read(3, A)
wait(None, 'rr3')
fin(3, A, True)
if TWICE:
    R_('s_waitcnt vmcnt(0)')
    R_('s_barrier')
    R_(f'v_readlane_b32 s{sT0}, v31, 42'); R_('s_nop 3'); R_(f's_cmp_lg_u32 s{sT0}, 0'); R_('s_cbranch_scc1 L_fin')
    R_(f's_mov_b32 s{sT0}, 256'); R_(f'v_writelane_b32 v31, s{sT0}, 42')
    R_('v_readlane_b32 s0, v31, 40'); R_('v_readlane_b32 s1, v31, 41')
    R_(f's_lshl_b32 s{sT0}, s{sWAVE}, 6'); R_(f'v_or_b32 v0, s{sT0}, v0'); R_('s_nop 4')
    R_('s_branch L_again')
    R_('L_fin:')
if STAMP:
    R_('s_waitcnt vmcnt(0)')
    stamp('end')
    R_(f's_memrealtime {sp(sTM)}')
    R_('s_waitcnt lgkmcnt(0)')
    R_(f's_lshl_b32 s{sT0}, s2, 7')
    R_(f's_lshl_b32 s{sT1}, s{sWAVE}, 15')
    R_(f's_add_u32 s{sT0}, s{sT0}, s{sT1}')
    R_(f's_add_u32 s{sT0}, s{sT0}, {WS_STAMP}')
    R_(f'v_writelane_b32 v31, s{sTM}, 29')
    R_(f'v_writelane_b32 v31, s{sSPIN}, 30')
    R_(f'v_writelane_b32 v31, s{sLOCAL}, 31')
    R_(f'v_lshlrev_b32 v{vT}, 2, v{vLANE}')
    R_('s_mov_b64 exec, 0xffffffff')
    R_(f'buffer_store_dword v31, v{vT}, {srd(SWS)}, s{sT0} offen')
if opt('padto', 0):
    R_('s_waitcnt vmcnt(0)')
    R_('v_readlane_b32 s6, v31, 52')
    R_('Lpad:')
    R_(f's_memrealtime {sp(sTM)}'); R_('s_waitcnt lgkmcnt(0)')
    R_(f's_sub_u32 s7, s{sTM}, s6'); R_(f's_cmp_lt_u32 s7, {opt("padto", 0)}'); R_('s_cbranch_scc1 Lpad')
if DBG:
    l = label('Ldbg')
    R_('s_waitcnt vmcnt(0)')
    R_('s_cmp_ge_u32 s2, 8'); R_(f's_cbranch_scc1 {l}')
    R_(f's_cmp_lg_u32 s{sWAVE}, 0'); R_(f's_cbranch_scc1 {l}')
    R_(f's_memrealtime {sp(sTM)}'); R_('s_memtime s[4:5]'); R_('s_waitcnt lgkmcnt(0)')
    R_('v_readlane_b32 s6, v31, 52'); R_('v_readlane_b32 s7, v31, 53'); R_('v_readlane_b32 s8, v31, 54')
    R_('v_readlane_b32 s10, v31, 50'); R_('v_readlane_b32 s11, v31, 51'); R_('s_nop 4')
    R_(f's_sub_u32 s9, s{sTM}, s6'); R_('s_and_b32 s6, s6, 0xffff'); R_('s_mul_i32 s6, s6, 10000'); R_('s_add_u32 s9, s9, s6')
    R_('s_sub_u32 s4, s4, s7'); R_('s_sub_u32 s8, s8, s7'); R_('s_lshr_b32 s8, s8, 4'); R_('s_mul_i32 s8, s8, 1000000'); R_('s_add_u32 s4, s4, s8')
    R_('v_mov_b32 v10, s10'); R_('v_mov_b32 v11, s11'); R_('s_lshl_b32 s5, s2, 2'); R_('v_add_u32 v10, s5, v10')
    R_('v_mov_b32 v12, s9'); R_('v_mov_b32 v13, s4')
    R_('s_mov_b64 exec, 1')
    R_('global_store_dword v[10:11], v12, off'); R_('global_store_dword v[10:11], v13, off offset:32')
    R_(f'{l}:')
R_('s_endpgm')
R_('.fill 2048, 4, 0xbf800000')
assert not HI and not LO and not BG.q and not MID
print(f"""; Kernarg layout (104 bytes, ptrs only, base s[0:1]): A_x, A_wqkv, A_wo, B_x, B_w1, B_b1, B_w2, B_b2, c, w_mod, d_out, d_debug, d_ws
; Persistent fused kernel: 256 workgroups = 32 clusters x 8 members; a cluster owns 64 tokens.
; @launch grid=(256,1,1) block=(256,1,1) lds={LDS_BYTES}
.amdgcn_target "amdgcn-amd-amdhsa--gfx950"
.text
.globl {NAME}_kernel
.p2align 8
.type {NAME}_kernel,@function
{NAME}_kernel:""")
sys.stdout.write(ASM.render())
print(f""".section .rodata,"a"
.p2align 6
.amdhsa_kernel {NAME}_kernel
  .amdhsa_next_free_vgpr 512
  .amdhsa_next_free_sgpr 102
  .amdhsa_accum_offset 256
  .amdhsa_group_segment_fixed_size 0
  .amdhsa_kernarg_size 104
  .amdhsa_user_sgpr_count 2
  .amdhsa_user_sgpr_kernarg_segment_ptr 1
  .amdhsa_system_sgpr_workgroup_id_x 1
.end_amdhsa_kernel""")
sys.stderr.write(f'\nstamps={nstamp[0]} nops={ASM.nnop} lines={len(ASM.lines)}\n')
finish()
```
